```python
import torch

def _softmax(x, axis=-1):
    return torch.softmax(x, dim=axis)
def _gelu(x):
    return torch.nn.functional.gelu(x, approximate="tanh")
def _silu(x):
    return torch.nn.functional.silu(x)
def _sigmoid(x):
    return torch.sigmoid(x)
def _layernorm(x, axis=-1, eps=1e-5):
    m = x.mean(dim=axis, keepdim=True)
    v = x.var(dim=axis, keepdim=True, unbiased=False)
    return (x - m) / torch.sqrt(v + eps)
def _scatter_add(tgt, idx, src, axis=0):
    return tgt.clone().index_add_(axis, idx, src)
def _segment_sum(src, seg, n):
    out = torch.zeros((n,) + src.shape[1:], dtype=src.dtype)
    return out.index_add_(0, seg, src)
def _pad(x, pw):
    flat = tuple(v for pair in reversed(pw) for v in pair)
    return torch.nn.functional.pad(x, flat)

kernel_name = 'gated_mix__spectral_fnet__softmax_full_mha__prompt'

def setup_inputs():

    _w = (lambda a: (lambda t: t.to(torch.bfloat16) if t.is_floating_point() else t)(torch.as_tensor(a)))
    def _A_setup():
        B, S, D = 1, 2048, 1024
        ns = torch.arange(S)[:, None] * torch.arange(S)[None, :]
        nd = torch.arange(D)[:, None] * torch.arange(D)[None, :]
        Ws_re = torch.cos(-2.0 * torch.pi * ns / S).to(float)
        Ws_im = torch.sin(-2.0 * torch.pi * ns / S).to(float)
        Wd_re = torch.cos(-2.0 * torch.pi * nd / D).to(float)
        Wd_im = torch.sin(-2.0 * torch.pi * nd / D).to(float)
        return {
            "x": _w((lambda *s: torch.randn(*s, dtype=torch.bfloat16) * 0.05)(B, S, D)),
            "dft_seq_re": _w(Ws_re),
            "dft_seq_im": _w(Ws_im),
            "dft_hid_re": _w(Wd_re),
            "dft_hid_im": _w(Wd_im),
        }
    _A_in = _A_setup()

    def _B_setup():
        B, S, D = 1, 2048, 1024
        return {
            "x": _w((lambda *s: torch.randn(*s, dtype=torch.bfloat16) * 0.05)(B, S, D)),
            "wqkv": _w((lambda *s: torch.randn(*s, dtype=torch.bfloat16) * 1.6)(D, 3 * D)),
            "wo": _w((lambda *s: torch.randn(*s, dtype=torch.bfloat16) * 0.2)(D, D)),
        }
    _B_in = _B_setup()

    return {
        "A_x": _A_in["x"],
        "A_dft_seq_re": _A_in["dft_seq_re"],
        "A_dft_seq_im": _A_in["dft_seq_im"],
        "A_dft_hid_re": _A_in["dft_hid_re"],
        "A_dft_hid_im": _A_in["dft_hid_im"],
        "B_x": _B_in["x"],
        "B_wqkv": _B_in["wqkv"],
        "B_wo": _B_in["wo"],
        "gate_w": _w((lambda *s: torch.randn(*s, dtype=torch.bfloat16) * 0.05)(1024) * 16.0),
    }

def reference(A_x, A_dft_seq_re, A_dft_seq_im, A_dft_hid_re, A_dft_hid_im, B_x, B_wqkv, B_wo, gate_w):
    def _A_ref(x, dft_seq_re, dft_seq_im, dft_hid_re, dft_hid_im):
        a = torch.einsum("bsd,ed->bse", x, dft_hid_re)
        b = torch.einsum("bsd,ed->bse", x, dft_hid_im)
        y = torch.einsum("ts,bse->bte", dft_seq_re, a) - torch.einsum("ts,bse->bte", dft_seq_im, b)
        return y

    def _B_ref(x, wqkv, wo):
        B, S, D = x.shape
        H = 32; Dh = D // H
        qkv = (lambda x, *d: x.permute(*d))((x @ wqkv).reshape(B, S, 3, H, Dh), 2, 0, 3, 1, 4)
        q, k, v = qkv[0], qkv[1], qkv[2]
        scale = Dh ** -0.5
        scores = torch.einsum("bhqd,bhkd->bhqk", q, k) * scale
        p = _softmax(scores, axis=-1)
        o = torch.einsum("bhqk,bhkd->bhqd", p, v)
        return (lambda x, *d: x.permute(*d))(o, 0, 2, 1, 3).reshape(B, S, D) @ wo

    x = A_x
    g = _sigmoid((x * gate_w).sum(-1, keepdims=True))
    a = _A_ref(x, A_dft_seq_re, A_dft_seq_im, A_dft_hid_re, A_dft_hid_im)
    b = _B_ref(x, B_wqkv, B_wo)
    return g * a + (1 - g) * b
```

```python
import re

def vr(b, n=1):
    return f"v{b}" if n == 1 else f"v[{b}:{b+n-1}]"
def sr(b, n=1):
    return f"s{b}" if n == 1 else f"s[{b}:{b+n-1}]"

TRANS = ("v_exp_f32", "v_log_f32", "v_rcp_f32", "v_rsq_f32", "v_sqrt_f32", "v_sin_f32", "v_cos_f32")

def parse_regs(tok):
    tok = tok.strip()
    tok = tok.lstrip("-")
    if tok.startswith("abs(") or tok.startswith("|"):
        tok = tok.replace("abs(", "").replace(")", "").replace("|", "")
    m = re.fullmatch(r"([vsa])(\d+)", tok)
    if m:
        return [(m.group(1), int(m.group(2)))]
    m = re.fullmatch(r"([vsa])\[(\d+):(\d+)\]", tok)
    if m:
        return [(m.group(1), i) for i in range(int(m.group(2)), int(m.group(3)) + 1)]
    if tok == "vcc":
        return [("s", 106), ("s", 107)]
    if tok == "exec":
        return [("s", 126), ("s", 127)]
    if tok == "m0":
        return [("s", 124)]
    return []

def split_ops(s):
    out, cur, d = [], "", 0
    for ch in s:
        if ch == "[": d += 1
        if ch == "]": d -= 1
        if ch == "," and d == 0:
            out.append(cur); cur = ""
        else:
            cur += ch
    if cur.strip(): out.append(cur)
    return [o.strip() for o in out]

class Ins:
    def __init__(self, text):
        self.text = text
        t = text.split(";")[0].strip()
        self.op = t.split()[0] if t else ""
        rest = t[len(self.op):].strip()
        ops = split_ops(rest)
        self.mods = ""
        if ops:
            parts = ops[-1].split()
            if len(parts) > 1:
                ops[-1] = parts[0]; self.mods = " ".join(parts[1:])
        self.ops = ops
        op = self.op
        self.kind = None; self.wr = []; self.rd = []; self.srcc = []; self.passes = 0
        self.ws = 1
        if op.endswith(":") or op == "" or op.startswith("."):
            self.kind = "label"; self.ws = 0
        elif op == "s_nop":
            self.kind = "nop"; self.ws = int(ops[0], 0) + 1
        elif op == "s_waitcnt":
            self.kind = "wait"
        elif op.startswith("v_mfma"):
            self.kind = "mfma"
            self.passes = 8 if "32x32x16" in op else 4
            self.wr = parse_regs(ops[0]); self.rd = parse_regs(ops[1]) + parse_regs(ops[2])
            self.srcc = parse_regs(ops[3])
        elif op.startswith("v_permlane"):
            self.kind = "valu"; self.wr = parse_regs(ops[0]) + parse_regs(ops[1]); self.rd = list(self.wr)
        elif op.startswith("v_cmp"):
            self.kind = "valu"; self.wr = parse_regs(ops[0]); self.rd = sum((parse_regs(o) for o in ops[1:]), [])
        elif op.startswith("v_readfirstlane") or op.startswith("v_readlane"):
            self.kind = "valu"; self.wr = parse_regs(ops[0]); self.rd = sum((parse_regs(o) for o in ops[1:]), [])
        elif op.startswith("v_"):
            self.kind = "valu"
            self.wr = parse_regs(ops[0]); self.rd = sum((parse_regs(o) for o in ops[1:]), [])
            if op.startswith("v_fmac") or op.startswith("v_pk_fmac") or op.startswith("v_dot2c"): self.rd += self.wr
            if op.startswith("v_add_co") or op.startswith("v_addc_co"):
                self.wr += parse_regs(ops[1]); self.rd = sum((parse_regs(o) for o in ops[2:]), [])
        elif op.startswith("ds_read") or op.startswith("ds_swizzle") or op.startswith("ds_bpermute"):
            self.kind = "ds"; self.wr = parse_regs(ops[0]); self.rd = sum((parse_regs(o) for o in ops[1:]), [])
        elif op.startswith("ds_write"):
            self.kind = "ds"; self.rd = sum((parse_regs(o) for o in ops), [])
        elif op.startswith("buffer_load"):
            self.kind = "vmem"
            if "lds" in self.mods.split():
                self.rd = sum((parse_regs(o) for o in ops), []) + [("s", 124)]
                self.dma = True
            else:
                self.wr = parse_regs(ops[0]); self.rd = sum((parse_regs(o) for o in ops[1:]), [])
        elif op.startswith("global_load"):
            self.kind = "vmem"; self.wr = parse_regs(ops[0]); self.rd = parse_regs(ops[1])
        elif op.startswith("buffer_store") or op.startswith("buffer_atomic"):
            self.kind = "vmem"; self.rd = sum((parse_regs(o) for o in ops), [])
            self.store_data = parse_regs(ops[0])
        elif op.startswith("s_load") or op.startswith("s_memtime") or op.startswith("s_memrealtime"):
            self.kind = "smem"; self.wr = parse_regs(ops[0]); self.rd = sum((parse_regs(o) for o in ops[1:]), [])
        elif op.startswith("s_cmp") or op.startswith("s_cbranch") or op.startswith("s_branch") or op in ("s_barrier", "s_endpgm", "s_setprio", "s_sleep"):
            self.kind = "salu"; self.rd = sum((parse_regs(o) for o in ops), [])
        elif op.startswith("s_"):
            self.kind = "salu"; self.wr = parse_regs(ops[0]); self.rd = sum((parse_regs(o) for o in ops[1:]), [])
            if "saveexec" in op: self.wr += [("s", 126), ("s", 127)]
        else:
            raise ValueError("unknown instr: " + text)

def check_trace(lines, name=""):
    errs = []
    pos = 0
    last_valu_w = {}
    last_trans_w = {}
    last_mfma_w = {}
    last_mfma_c = {}
    last_salu_m0 = -100
    last_store = {}
    lgkm = []
    vm = []
    def gap(p): return pos - p
    for idx, l in enumerate(lines):
        I = Ins(l)
        if I.kind == "label": continue
        def err(msg): errs.append(f"[{name}] line {idx}: {l.strip()}  :: {msg}")
        if I.kind == "wait":
            m = re.search(r"vmcnt\((\d+)\)", l)
            if m:
                n = int(m.group(1))
                while len(vm) > n: vm.pop(0)
            m = re.search(r"lgkmcnt\((\d+)\)", l)
            if m:
                n = int(m.group(1))
                if any(k == "smem" for k, _ in lgkm) and n != 0: err("counted lgkmcnt with smem outstanding")
                while len(lgkm) > n: lgkm.pop(0)
        allr = I.rd + I.srcc
        for r in allr + I.wr:
            for k, d in lgkm:
                if r in d: err(f"reg {r} has outstanding lgkm load")
            for d in vm:
                if r in d: err(f"reg {r} has outstanding vm load")
        if I.kind == "mfma":
            for r in allr:
                if r in last_valu_w and gap(last_valu_w[r]) < 2: err(f"VALU->MFMA {r} gap {gap(last_valu_w[r])}")
            for r in I.rd:
                if r in last_mfma_w:
                    p, ps, _ = last_mfma_w[r]
                    need = 12 if ps == 8 else 8
                    if gap(p) < need: err(f"MFMA D->MFMA A/B {r} gap {gap(p)} need {need}")
            for r in I.srcc:
                if r in last_mfma_w:
                    p, ps, dt = last_mfma_w[r]
                    if tuple(I.srcc) == dt and ps == I.passes: continue
                    need = 10 if ps == 8 else 6
                    if gap(p) < need: err(f"MFMA D->MFMA C partial {r} gap {gap(p)} need {need}")
            for r in I.wr:
                if r in last_mfma_w and r not in I.srcc:
                    p, ps, dt = last_mfma_w[r]
                    need = 12 if ps == 8 else 8
                    if gap(p) < need: err(f"MFMA D->MFMA D WAW {r} gap {gap(p)} need {need}")
        else:
            if I.kind in ("valu", "ds", "vmem"):
                for r in allr + I.wr:
                    if r in last_mfma_w:
                        p, ps, _ = last_mfma_w[r]
                        need = 12 if ps == 8 else 8
                        if gap(p) < need: err(f"MFMA D->{I.kind} {r} gap {gap(p)} need {need}")
            if I.kind in ("valu", "ds", "vmem"):
                for r in I.wr:
                    if r in last_mfma_c:
                        p, ps = last_mfma_c[r]
                        need = 7 if ps == 8 else 3
                        if gap(p) < need: err(f"MFMA C read -> write {r} gap {gap(p)} need {need}")
            if I.kind == "valu":
                istrans = I.op.replace("_e32", "").replace("_e64", "") in TRANS
                for r in I.rd:
                    if r in last_trans_w and not istrans and gap(last_trans_w[r]) < 1: err(f"trans->valu {r}")
                    if r[0] == "s" and r in last_valu_w and gap(last_valu_w[r]) < 2: err(f"VALU sgpr write->VALU read {r}")
                if I.op.startswith("v_permlane") or "dpp" in I.mods or "row_" in I.mods:
                    for r in I.rd:
                        if r in last_valu_w and gap(last_valu_w[r]) < 2: err(f"VALU->permlane/dpp {r} gap {gap(last_valu_w[r])}")
                if I.op.startswith("v_readfirstlane") or I.op.startswith("v_readlane"):
                    for r in I.rd:
                        if r[0] == "v" and r in last_valu_w and gap(last_valu_w[r]) < 1: err(f"VALU->readlane {r}")
                for r in I.wr:
                    if r in last_store and gap(last_store[r]) < 2: err(f"store data WAR {r}")
            if I.kind == "vmem":
                for r in I.rd:
                    if r[0] == "s" and r in last_valu_w and gap(last_valu_w[r]) < 5: err(f"VALU sgpr->VMEM {r}")
                if getattr(I, "dma", False) and gap(last_salu_m0) < 1: err("m0 write -> DMA")
        pos += I.ws
        if I.kind == "valu":
            for r in I.wr:
                last_valu_w[r] = pos
                if I.op.replace("_e32", "").replace("_e64", "") in TRANS: last_trans_w[r] = pos
                else: last_trans_w.pop(r, None)
                last_mfma_w.pop(r, None)
        if I.kind == "mfma":
            for r in I.wr:
                last_mfma_w[r] = (pos, I.passes, tuple(I.wr)); last_valu_w.pop(r, None)
            for r in I.srcc: last_mfma_c[r] = (pos, I.passes)
        if I.kind == "salu":
            if ("s", 124) in I.wr: last_salu_m0 = pos
            for r in I.wr: last_valu_w.pop(r, None)
        if I.kind == "ds":
            lgkm.append(("ds", set(I.wr)))
            for r in I.wr: last_valu_w.pop(r, None); last_mfma_w.pop(r, None)
        if I.kind == "smem":
            lgkm.append(("smem", set(I.wr)))
        if I.kind == "vmem":
            vm.append(set(I.wr))
            for r in I.wr: last_valu_w.pop(r, None); last_mfma_w.pop(r, None)
            if hasattr(I, "store_data") and len(I.store_data) >= 3:
                for r in I.store_data: last_store[r] = pos
    return errs

def interleave(main, fill, start=0, every=1, per=1):
    out = []; fi = 0
    for i, m in enumerate(main):
        out.append(m)
        if i >= start and (i - start) % every == 0:
            for _ in range(per):
                if fi < len(fill):
                    out.append(fill[fi]); fi += 1
    out += fill[fi:]
    return out

def spread(main, fill):
    out = []; n = len(main); k = len(fill); fi = 0
    for i, m in enumerate(main):
        out.append(m)
        tgt = ((i + 1) * k + n - 1) // n if n else k
        tgt = min(k, tgt)
        while fi < tgt:
            out.append(fill[fi]); fi += 1
    out += fill[fi:]
    return out
```

```python
import sys, struct
from asmlib import *

MB = 1 << 20
WS_AT, WS_BT, WS_Q, WS_K, WS_V, WS_O, WS_Y1, WS_Y2, WS_G = [i * 4 * MB for i in range(9)]
WS_SIZE = 40 * MB
LOG2E = 1.4426950408889634
QSCALE = (32 ** -0.5) * LOG2E

def f32bits(x):
    return struct.unpack("<I", struct.pack("<f", x))[0]

def srd(base, lo, hi, size):
    return [f"s_mov_b32 s{base}, s{lo}", f"s_mov_b32 s{base+1}, s{hi}",
            f"s_mov_b32 s{base+2}, {size}", f"s_mov_b32 s{base+3}, 0x00020000"]

def desc(name, nv, ns=102):
    acc = (nv + 3) // 4 * 4
    return f"""
.p2align 6
.amdhsa_kernel {name}
  .amdhsa_next_free_vgpr {nv}
  .amdhsa_next_free_sgpr {ns}
  .amdhsa_accum_offset {acc}
  .amdhsa_group_segment_fixed_size 0
  .amdhsa_kernarg_size 96
  .amdhsa_user_sgpr_count 2
  .amdhsa_user_sgpr_kernarg_segment_ptr 1
  .amdhsa_system_sgpr_workgroup_id_x 1
.end_amdhsa_kernel
"""

def mfma32(d, a, b, c=None):
    cs = vr(d, 16) if c is None else (str(c) if isinstance(c, str) else vr(c, 16))
    return f"v_mfma_f32_32x32x16_bf16 {vr(d,16)}, {vr(a,4)}, {vr(b,4)}, {cs}"
def mfma16(d, a, b):
    return f"v_mfma_f32_16x16x32_bf16 {vr(d,4)}, {vr(a,4)}, {vr(b,4)}, {vr(d,4)}"

STAMPS = False
def stamp(i):
    if not STAMPS: return []
    return ([f"s_memrealtime s[68:69]"] if i == 0 else []) + [f"s_memtime s[{70+2*i}:{71+2*i}]", "s_waitcnt lgkmcnt(0)"]
def stamp_dump(n, wgsel=0, slot=0):
    if not STAMPS: return []
    o = ["s_load_dwordx2 s[90:91], s[0:1], 80", "s_waitcnt lgkmcnt(0)",
         "s_mov_b32 s92, s90", "s_mov_b32 s93, s91", "s_mov_b32 s94, 256", "s_mov_b32 s95, 0x00020000",
         "s_mov_b64 exec, 1", "s_lshl_b32 s96, s3, 5"]
    o += [f"s_cmp_lg_u32 s2, {wgsel}", "s_cselect_b32 s96, 0x1000, s96"]
    o += ["s_memrealtime s[98:99]", "s_load_dwordx2 s[60:61], s[0:1], 88", "s_waitcnt lgkmcnt(0)",
          "s_mov_b32 s62, 0x10000000", "s_mov_b32 s63, 0x00020000",
          "s_lshl_b32 s97, s2, 4", f"s_add_u32 s97, s97, {64*MB + slot*65536}",
          "v_mov_b32 v4, s68", "v_mov_b32 v5, s69", "v_mov_b32 v6, s98", "v_mov_b32 v7, s99", "v_mov_b32 v2, 0",
          "buffer_store_dwordx4 v[4:7], v2, s[60:63], s97 offen"]
    for i in range(n):
        o += [f"s_sub_u32 s97, s{70+2*i}, s70", "v_mov_b32 v1, s97", f"v_mov_b32 v2, {4*i}",
              "buffer_store_dword v1, v2, s[92:95], s96 offen"]
    return o

def header(name):
    return [f".globl {name}", ".p2align 8", f".type {name},@function", f"{name}:"]

def gen_proj():
    N = "proj_kernel"
    STG = 53248
    L_HR, L_HI, L_W = 32768, 36864, 40960
    ACC = 96
    def acc(b, c): return ACC + (b * 5 + c) * 16
    def fr(s, i): return 32 + s * 28 + i * 4
    VX = list(range(1, 9)); VH = 9; VW = [10, 88, 89]
    XA0 = [11, 12, 13, 14]; HA0 = [15, 16, 17, 18]; WA0 = 19
    XA = [20, 21, 22, 23]; HA = [24, 25, 26, 27]; WA = 28
    VL16 = 29
    VG = 90
    T0, T1, T2, T3 = 30, 31, 92, 93
    P = []
    P += [f"s_cmp_ge_u32 s2, 256", f"s_cbranch_scc1 {N}_done"]
    P += stamp(0)
    P += ["s_load_dwordx2 s[4:5], s[0:1], 0", "s_load_dwordx4 s[32:35], s[0:1], 24",
          "s_load_dwordx2 s[36:37], s[0:1], 48", "s_load_dwordx2 s[38:39], s[0:1], 64",
          "s_load_dwordx2 s[40:41], s[0:1], 88"]
    P += ["v_lshrrev_b32 v1, 6, v0", "v_and_b32 v0, 63, v0", "v_readfirstlane_b32 s3, v1"]
    P += ["s_and_b32 s42, s2, 7", "s_lshr_b32 s43, s2, 3",
          "s_and_b32 s44, s42, 1", "s_lshl_b32 s44, s44, 2", "s_and_b32 s45, s43, 3", "s_add_u32 s44, s44, s45",
          "s_lshr_b32 s42, s42, 1", "s_lshl_b32 s42, s42, 3", "s_lshr_b32 s43, s43, 2", "s_add_u32 s43, s43, s42"]
    P += ["s_mov_b32 s42, s44"]
    P += ["s_lshl_b32 s44, s42, 8", "s_lshl_b32 s45, s3, 6", "s_add_u32 s44, s44, s45",
          "s_lshl_b32 s50, s3, 13", "s_lshl_b32 s51, s3, 10"]
    P += [f"v_lshrrev_b32 v{T0}, 3, v0", f"v_and_b32 v{T1}, 7, v0", f"v_lshrrev_b32 v{T2}, 4, v0",
          f"v_lshlrev_b32 v{VL16}, 4, v0"]
    P += [f"v_add_u32 v{T3}, s44, v{T0}", f"v_lshlrev_b32 v{T3}, 11, v{T3}",
          f"v_xor_b32 v{VX[0]}, v{T1}, v{T2}", f"v_lshlrev_b32 v{VX[0]}, 4, v{VX[0]}",
          f"v_add_u32 v{VX[0]}, v{VX[0]}, v{T3}"]
    for q in range(1, 8):
        if q % 2 == 1:
            P += [f"v_xor_b32 v{VX[q]}, 64, v{VX[0]}", f"v_add_u32 v{VX[q]}, {q*8*2048}, v{VX[q]}"]
        else:
            P += [f"v_add_u32 v{VX[q]}, {q*8*2048}, v{VX[0]}"]
    P += ["s_lshl_b32 s45, s43, 5", "s_lshl_b32 s46, s3, 3", "s_add_u32 s45, s45, s46",
          f"v_add_u32 v{T3}, s45, v{T0}", f"v_lshlrev_b32 v{T3}, 11, v{T3}",
          "s_lshl_b32 s46, s3, 2", f"v_add_u32 v{VH}, s46, v{T2}", f"v_and_b32 v{VH}, 7, v{VH}",
          f"v_xor_b32 v{VH}, v{VH}, v{T1}", f"v_lshlrev_b32 v{VH}, 4, v{VH}", f"v_add_u32 v{VH}, v{VH}, v{T3}"]
    P += [f"v_lshrrev_b32 v{T3}, 2, v0", "s_lshl_b32 s46, s3, 4", f"v_add_u32 v{T3}, s46, v{T3}",
          "s_movk_i32 s46, 6144", f"v_mul_lo_u32 v{T3}, v{T3}, s46",
          f"v_and_b32 v{VW[0]}, 3, v0", f"v_lshlrev_b32 v{VW[0]}, 4, v{VW[0]}", f"v_add_u32 v{VW[0]}, v{VW[0]}, v{T3}",
          "s_lshl_b32 s46, s43, 6", f"v_add_u32 v{VW[0]}, s46, v{VW[0]}",
          f"v_add_u32 v{VW[1]}, 2048, v{VW[0]}", f"v_add_u32 v{VW[2]}, 4096, v{VW[0]}"]
    P += [f"v_lshrrev_b32 v{T0}, 5, v0", f"v_lshrrev_b32 v{T1}, 1, v0", f"v_and_b32 v{T1}, 7, v{T1}",
          f"v_xor_b32 v{T0}, v{T0}, v{T1}",
          f"v_and_b32 v{T1}, 31, v0", f"v_lshlrev_b32 v{T1}, 7, v{T1}"]
    for ks in range(4):
        P += [f"v_xor_b32 v{T2}, {2*ks}, v{T0}", f"v_lshlrev_b32 v{T2}, 4, v{T2}", f"v_add_u32 v{T2}, v{T2}, v{T1}",
              f"v_add_u32 v{XA0[ks]}, s50, v{T2}", f"v_add_u32 v{HA0[ks]}, {L_HR}, v{T2}"]
    P += [f"v_lshrrev_b32 v{T0}, 5, v0", f"v_lshlrev_b32 v{T0}, 3, v{T0}", f"v_bfe_u32 v{T1}, v0, 2, 2",
          f"v_add_u32 v{T0}, v{T0}, v{T1}", f"v_lshlrev_b32 v{T0}, 6, v{T0}",
          f"v_bfe_u32 v{T1}, v0, 4, 1", f"v_lshlrev_b32 v{T1}, 5, v{T1}", f"v_add_u32 v{T0}, v{T0}, v{T1}",
          f"v_and_b32 v{T1}, 3, v0", f"v_lshlrev_b32 v{T1}, 3, v{T1}", f"v_add_u32 v{T0}, v{T0}, v{T1}",
          f"v_add_u32 v{WA0}, {L_W}, v{T0}"]
    P += ["s_waitcnt lgkmcnt(0)"]
    P += srd(8, 4, 5, 4 * MB) + srd(12, 32, 33, 2 * MB) + srd(16, 34, 35, 2 * MB) + srd(20, 36, 37, 6 * MB) \
        + srd(24, 40, 41, WS_SIZE) + srd(28, 38, 39, 2048)
    GX = 96
    P += ["s_lshl_b32 s45, s42, 8", "s_lshl_b32 s46, s43, 3", "s_add_u32 s45, s45, s46",
          "s_lshl_b32 s46, s3, 1", "s_add_u32 s52, s45, s46",
          "s_lshl_b32 s45, s52, 11",
          f"v_lshlrev_b32 v{T0}, 5, v0"]
    P += [f"buffer_load_dwordx4 v[{GX}:{GX+3}], v{T0}, s[8:11], s45 offen",
          f"buffer_load_dwordx4 v[{GX+4}:{GX+7}], v{T0}, s[8:11], s45 offen offset:16",
          f"buffer_load_dwordx4 v[{GX+8}:{GX+11}], v{T0}, s[8:11], s45 offen offset:2048",
          f"buffer_load_dwordx4 v[{GX+12}:{GX+15}], v{T0}, s[8:11], s45 offen offset:2064",
          f"buffer_load_dwordx4 v[{GX+16}:{GX+19}], v{T0}, s[28:31], 0 offen",
          f"buffer_load_dwordx4 v[{GX+20}:{GX+23}], v{T0}, s[28:31], 0 offen offset:16"]
    def dma():
        out = []
        for q in range(8):
            out.append([f"s_add_u32 m0, s53, {1024*q}", f"buffer_load_dwordx4 v{VX[q]}, s[8:11], s45 offen lds"])
        out.append([f"s_add_u32 m0, s54, {L_HR}", f"buffer_load_dwordx4 v{VH}, s[12:15], s45 offen lds"])
        out.append([f"s_add_u32 m0, s54, {L_HI}", f"buffer_load_dwordx4 v{VH}, s[16:19], s45 offen lds"])
        for c in range(3):
            out.append([f"s_add_u32 m0, s54, {L_W + 4096*c}", f"buffer_load_dwordx4 v{VW[c]}, s[20:23], s46 offen lds"])
        return out
    def dma_adv():
        return ["s_add_u32 s47, s47, %d" % STG, "s_cmp_ge_u32 s47, %d" % (3 * STG), "s_cselect_b32 s47, 0, s47",
                "s_add_u32 s53, s47, s50", "s_add_u32 s54, s47, s51",
                "s_add_u32 s45, s45, 128", "s_add_u32 s46, s46, %d" % (64 * 6144)]
    P += ["s_mov_b32 s47, 0", "s_mov_b32 s45, 0", "s_mov_b32 s46, 0", "s_mov_b32 s53, s50", "s_mov_b32 s54, s51"]
    for t in range(2):
        for a, b in dma():
            P += [a, "s_nop 0", b]
        P += dma_adv()
    P += stamp(1)
    P += ["s_waitcnt vmcnt(26)"]
    P += stamp(2)
    A0, A1 = 120, 121
    P += [f"v_mov_b32 v{A0}, 0", f"v_mov_b32 v{A1}, 0"]
    for i in range(8):
        w = GX + 16 + i
        P += [f"v_lshlrev_b32 v122, 16, v{w}", f"v_and_b32 v123, 0xffff0000, v{w}"]
        for r, a in ((0, A0), (1, A1)):
            x = GX + 8 * r + i
            P += [f"v_lshlrev_b32 v124, 16, v{x}", f"v_and_b32 v125, 0xffff0000, v{x}",
                  "v_mul_f32 v124, v124, v122", "v_mul_f32 v125, v125, v123",
                  "v_cvt_pk_bf16_f32 v126, v124, v125",
                  "v_lshlrev_b32 v124, 16, v126", "v_and_b32 v125, 0xffff0000, v126",
                  f"v_add_f32 v{a}, v{a}, v124", f"v_add_f32 v{a}, v{a}, v125"]
    for off in (0x041F, 0x081F, 0x101F, 0x201F, 0x401F):
        P += [f"ds_swizzle_b32 v122, v{A0} offset:{off}", f"ds_swizzle_b32 v123, v{A1} offset:{off}",
              "s_waitcnt lgkmcnt(0)", f"v_add_f32 v{A0}, v{A0}, v122", f"v_add_f32 v{A1}, v{A1}, v123"]
    P += ["s_nop 0", f"v_readlane_b32 s55, v{A0}, 32", f"v_readlane_b32 s56, v{A1}, 32", "s_nop 1",
          f"v_add_f32 v{A0}, s55, v{A0}", f"v_add_f32 v{A1}, s56, v{A1}",
          "v_cmp_eq_u32 vcc, 1, v0", "s_nop 1", f"v_cndmask_b32 v{A0}, v{A0}, v{A1}, vcc",
          f"v_cvt_pk_bf16_f32 v{A0}, v{A0}, v{A0}", f"v_lshlrev_b32 v{A0}, 16, v{A0}",
          f"v_mul_f32 v{A0}, {hex(f32bits(-LOG2E))}, v{A0}", f"v_exp_f32 v{A0}, v{A0}", "s_nop 0",
          f"v_add_f32 v{A0}, 1.0, v{A0}", f"v_rcp_f32 v{A0}, v{A0}", "s_nop 0",
          f"v_cvt_pk_bf16_f32 v{A0}, v{A0}, v{A0}", f"v_lshlrev_b32 v{VG}, 16, v{A0}"]
    for r in range(ACC, ACC + 160):
        P += [f"v_mov_b32 v{r}, 0"]
    for i in range(4):
        P += [f"v_mov_b32 v{XA[i]}, v{XA0[i]}", f"v_mov_b32 v{HA[i]}, v{HA0[i]}"]
    P += [f"v_mov_b32 v{WA}, v{WA0}", "s_mov_b32 s48, 0", "s_mov_b32 s49, 0"]
    def reads(s, ks):
        return [f"ds_read_b128 {vr(fr(s,0),4)}, v{XA[ks]}",
                f"ds_read_b128 {vr(fr(s,2),4)}, v{HA[ks]}",
                f"ds_read_b128 {vr(fr(s,3),4)}, v{HA[ks]} offset:4096",
                f"ds_read_b64_tr_b16 {vr(fr(s,4),2)}, v{WA} offset:{ks*1024}",
                f"ds_read_b64_tr_b16 {vr(fr(s,4)+2,2)}, v{WA} offset:{ks*1024+256}",
                f"ds_read_b64_tr_b16 {vr(fr(s,5),2)}, v{WA} offset:{4096+ks*1024}",
                f"ds_read_b64_tr_b16 {vr(fr(s,5)+2,2)}, v{WA} offset:{4096+ks*1024+256}",
                f"ds_read_b64_tr_b16 {vr(fr(s,6),2)}, v{WA} offset:{8192+ks*1024}",
                f"ds_read_b64_tr_b16 {vr(fr(s,6)+2,2)}, v{WA} offset:{8192+ks*1024+256}",
                f"ds_read_b128 {vr(fr(s,1),4)}, v{XA[ks]} offset:4096"]
    def mfmas(s):
        out = []
        for b in range(2):
            X = fr(s, b)
            out += [mfma32(acc(b, 0), X, fr(s, 2)), mfma32(acc(b, 1), X, fr(s, 3)),
                    mfma32(acc(b, 2), fr(s, 4), X), mfma32(acc(b, 3), fr(s, 5), X),
                    mfma32(acc(b, 4), X, fr(s, 6))]
        return out
    def rd_adv():
        o = ["s_add_u32 s48, s48, %d" % STG, "s_cmp_ge_u32 s48, %d" % (3 * STG), "s_cselect_b32 s48, 0, s48"]
        for i in range(4):
            o += [f"v_add_u32 v{XA[i]}, s48, v{XA0[i]}", f"v_add_u32 v{HA[i]}, s48, v{HA0[i]}"]
        o += [f"v_add_u32 v{WA}, s48, v{WA0}"]
        return o
    P += stamp(3)
    P += ["s_waitcnt vmcnt(13)", "s_barrier"] + stamp(4) + reads(0, 0)
    def body(do_dma, last):
        o = []
        d = dma() if do_dma else []
        def mix(rd, dd):
            out = []
            for i, r in enumerate(rd):
                if i < len(dd): out += [dd[i][0], r, dd[i][1]]
                else: out += [r]
            return out
        o += ["s_waitcnt lgkmcnt(0)"]
        o += spread(mfmas(0), mix(reads(1, 1), d[:7]))
        o += ["s_waitcnt lgkmcnt(0)"]
        o += spread(mfmas(1), mix(reads(0, 2), d[7:]) + (dma_adv() if do_dma else []))
        o += ["s_waitcnt lgkmcnt(0)"]
        o += spread(mfmas(0), reads(1, 3) + ([] if last else rd_adv()))
        o += ["s_waitcnt lgkmcnt(0)"]
        m = mfmas(1)
        if last:
            o += m
        else:
            o += m[:2] + [f"s_waitcnt vmcnt({13 if do_dma else 0})", "s_barrier"] + spread(m[2:], reads(0, 0))
        return o
    B = body(True, False)
    loop_tail = ["s_add_u32 s49, s49, 1", "s_cmp_lt_u32 s49, 14", f"s_cbranch_scc1 {N}_loop"]
    B14 = body(False, False)
    B15 = body(False, True)
    E = ["s_nop 15"] + stamp(5)
    E += ["s_lshl_b32 s45, s43, 17", "s_lshl_b32 s46, s42, 14", "s_add_u32 s45, s45, s46",
          "s_lshl_b32 s46, s3, 12", "s_add_u32 s45, s45, s46", f"s_mov_b32 s57, {hex(f32bits(QSCALE))}"]
    pk = 32
    for c in range(5):
        for b in range(2):
            a = acc(b, c)
            if c == 2:
                for r in range(16):
                    E += [f"v_mul_f32 v{a+r}, s57, v{a+r}"]
            for r in range(8):
                E += [f"v_cvt_pk_bf16_f32 v{pk+r}, v{a+2*r}, v{a+2*r+1}"]
            if c < 2:
                E += ["s_nop 1"]
                for t in range(2):
                    E += [f"v_permlane32_swap_b32 v{pk+4*t}, v{pk+4*t+2}", f"v_permlane32_swap_b32 v{pk+4*t+1}, v{pk+4*t+3}"]
            for t in range(2):
                E += [f"buffer_store_dwordx4 {vr(pk+4*t,4)}, v{VL16}, s[24:27], s45 offen offset:{(2*b+t)*1024}"]
            pk = 32 + (pk - 32 + 8) % 56
        E += [f"s_add_u32 s45, s45, {4*MB}"]
    E += [f"v_lshlrev_b32 v{T0}, 2, v0", "s_lshl_b32 s45, s52, 2", f"s_add_u32 s45, s45, {WS_G}",
          "v_cmp_gt_u32 vcc, 2, v0", "s_and_saveexec_b64 s[58:59], vcc",
          f"buffer_store_dword v{VG}, v{T0}, s[24:27], s45 offen"]
    E += stamp(6) + ["s_waitcnt vmcnt(0)"] * STAMPS + stamp(7) + stamp_dump(8, 9)
    E += [f"{N}_done:", "s_endpgm"]
    text = header(N) + P + [f"{N}_loop:"] + B + loop_tail + B14 + B15 + E
    trace = P + B + loop_tail + B + loop_tail + B14 + B15 + E
    errs = check_trace(trace, N)
    return N, text, desc(N, 256), errs, (256, 256, 3 * STG)


ATT_OFF = 40.0
ATT_LMAX = 2.0 ** 60
def gen_attn():
    N = "attn_kernel"
    NST = 4; STG = 8192
    Q = {"A": 16, "B": 24}
    S = {"A": 32, "B": 48}
    Pk = {"A": 64, "B": 72}
    O = {"A": 80, "B": 96}
    L = {"A": 112, "B": 116}
    CN = {"A": 120, "B": 136}
    KF = [152, 160]
    VF = [168, 176]
    ONES = 184
    VL16 = 1; VRD = 2; VG = {"A": 3, "B": 4}; T0, T1, T2, T3 = 5, 6, 7, 8
    P = []
    P += ["s_cmp_ge_u32 s2, 256", f"s_cbranch_scc1 {N}_done"]
    P += stamp(0)
    P += ["s_load_dwordx2 s[40:41], s[0:1], 88"]
    P += ["v_lshrrev_b32 v1, 6, v0", "v_and_b32 v0, 63, v0", "v_readfirstlane_b32 s3, v1"]
    P += ["s_and_b32 s42, s2, 7", "s_lshr_b32 s43, s2, 3", "s_lshl_b32 s42, s42, 2", "s_lshr_b32 s44, s43, 3",
          "s_add_u32 s42, s42, s44",
          "s_and_b32 s43, s43, 7",
          "s_lshl_b32 s43, s43, 3", "s_lshl_b32 s44, s3, 1", "s_add_u32 s43, s43, s44",
          "s_lshl_b32 s44, s42, 17"]
    P += [f"v_lshlrev_b32 v{VL16}, 4, v0"]
    P += ["s_waitcnt lgkmcnt(0)"] + srd(24, 40, 41, WS_SIZE)
    P += ["s_lshl_b32 s45, s43, 11", "s_add_u32 s45, s45, s44", f"s_add_u32 s45, s45, {WS_Q}",
          f"s_add_u32 s46, s44, {WS_K}", f"s_add_u32 s47, s44, {WS_V}"]
    for i in range(4):
        P += [f"buffer_load_dwordx4 {vr(16+4*i,4)}, v{VL16}, s[24:27], s45 offen offset:{1024*i}"]
    for i in range(4):
        P += [f"buffer_load_dwordx4 {vr(KF[0]+4*i,4)}, v{VL16}, s[24:27], s46 offen offset:{1024*i}"]
    P += [f"v_and_b32 v{T0}, 31, v0", f"v_lshlrev_b32 v{T0}, 2, v{T0}", "s_lshl_b32 s45, s43, 7", f"s_add_u32 s45, s45, {WS_G}",
          f"buffer_load_dword v{VG['A']}, v{T0}, s[24:27], s45 offen",
          f"buffer_load_dword v{VG['B']}, v{T0}, s[24:27], s45 offen offset:128"]
    P += ["s_lshl_b32 s51, s3, 10", "s_add_u32 s48, s46, s51", "s_add_u32 s48, s48, 2048", "s_add_u32 s49, s47, s51",
          "s_mov_b32 s50, s51"]
    def dma():
        return [["s_mov_b32 m0, s50", f"buffer_load_dwordx4 v{VL16}, s[24:27], s48 offen lds"],
                ["s_add_u32 m0, s50, 4096", f"buffer_load_dwordx4 v{VL16}, s[24:27], s49 offen lds"]]
    def dma_adv():
        return ["s_add_u32 s48, s48, 4096", "s_add_u32 s49, s49, 4096", f"s_add_u32 s50, s50, {STG}",
                f"s_and_b32 s50, s50, {NST*STG-1}"]
    for t in range(NST - 1):
        for a, b in dma(): P += [a, "s_nop 0", b]
        P += dma_adv()
    for r in list(range(80, 120)) + list(range(Pk["B"], Pk["B"] + 8)) + list(range(VF[0], VF[0] + 16)):
        P += [f"v_mov_b32 v{r}, 0"]
    P += [f"v_bfe_u32 v{T0}, v0, 2, 1", f"v_bfe_u32 v{T1}, v0, 4, 1", f"v_cmp_eq_u32 vcc, v{T0}, v{T1}",
          f"v_mov_b32 v{T2}, 0x3f803f80", "s_nop 0", f"v_cndmask_b32 v{ONES}, 0, v{T2}, vcc"]
    for i in range(1, 4): P += [f"v_mov_b32 v{ONES+i}, v{ONES}"]
    P += [f"v_mov_b32 v{VRD}, v{VL16}", "s_mov_b32 s52, 0", "s_mov_b32 s53, 0"]
    P += [f"s_waitcnt vmcnt({2*(NST-1)})"]
    for X in "AB":
        P += [mfma32(S[X], KF[0], Q[X], "0"), mfma32(S[X], KF[0] + 4, Q[X] + 4),
              mfma32(CN[X], KF[1], Q[X], "0"), mfma32(CN[X], KF[1] + 4, Q[X] + 4)]
    P += ["s_nop 15"]
    for X in "AB":
        m = T0 if X == "A" else T1
        P += [f"v_max3_f32 v{m}, v{S[X]}, v{S[X]+1}, v{S[X]+2}"]
        vals = [S[X] + i for i in range(3, 16)] + [CN[X] + i for i in range(16)]
        for i in range(0, 28, 2):
            P += [f"v_max3_f32 v{m}, v{m}, v{vals[i]}, v{vals[i+1]}"]
        P += [f"v_max_f32 v{m}, v{m}, v{vals[28]}"]
    P += [f"v_mov_b32 v{T2}, v{T0}", f"v_mov_b32 v{T3}, v{T1}", "s_nop 1",
          f"v_permlane32_swap_b32 v{T0}, v{T2}", f"v_permlane32_swap_b32 v{T1}, v{T3}",
          f"v_max_f32 v{T0}, v{T0}, v{T2}", f"v_max_f32 v{T1}, v{T1}, v{T3}",
          f"s_mov_b32 s54, {hex(f32bits(-ATT_OFF))}",
          f"v_sub_f32 v{T0}, s54, v{T0}", f"v_sub_f32 v{T1}, s54, v{T1}"]
    for i in range(16):
        P += [f"v_mov_b32 v{CN['A']+i}, v{T0}", f"v_mov_b32 v{CN['B']+i}, v{T1}"]
    P += ["s_nop 1", mfma32(S["A"], KF[0], Q["A"], CN["A"]), mfma32(S["A"], KF[0] + 4, Q["A"] + 4)]
    P += stamp(1)
    def slot(X, kset_qk, vset_pv, rd):
        Y = "B" if X == "A" else "A"
        mf = [mfma32(S[Y], KF[kset_qk], Q[Y], CN[Y]), mfma32(S[Y], KF[kset_qk] + 4, Q[Y] + 4),
              mfma32(O[Y], VF[vset_pv], Pk[Y]), mfma16(L[Y], ONES, Pk[Y]),
              mfma32(O[Y], VF[vset_pv] + 4, Pk[Y] + 4), mfma16(L[Y], ONES, Pk[Y] + 4)]
        e = [f"v_exp_f32 v{S[X]+i}, v{S[X]+i}" for i in range(16)]
        c = [f"v_cvt_pk_bf16_f32 v{Pk[X]+j}, v{S[X]+2*j}, v{S[X]+2*j+1}" for j in range(8)]
        va = e[0:3] + [c[0]] + e[3:5] + [c[1]] + e[5:7] + [c[2]] + e[7:9] + [c[3]] + e[9:11] + [c[4]] + e[11:13] + [c[5]] + e[13:16] + [c[6], c[7]]
        o = []
        for i in range(6):
            o += [mf[i]]
            if i < 2: o += rd[2*i:2*i+2]
            o += va[4*i:4*i+4]
        return o
    def rds(kb_par, half):
        return [f"ds_read_b128 {vr(KF[1-kb_par],4)}, v{VRD} offset:{half*2048}",
                f"ds_read_b128 {vr(KF[1-kb_par]+4,4)}, v{VRD} offset:{half*2048+1024}",
                f"ds_read_b128 {vr(VF[kb_par],4)}, v{VRD} offset:{4096+half*2048}",
                f"ds_read_b128 {vr(VF[kb_par]+4,4)}, v{VRD} offset:{4096+half*2048+1024}"]
    B = [f"s_waitcnt vmcnt({2*(NST-2)})", "s_barrier"]
    d = dma()
    B += [d[0][0], "s_nop 0", d[0][1], d[1][0], "s_nop 0", d[1][1]] + dma_adv()
    B += slot("A", 0, 1, rds(0, 0))
    B += ["s_waitcnt lgkmcnt(0)"]
    B += slot("B", 1, 0, [])
    B += slot("A", 1, 0, rds(1, 1))
    B += ["s_waitcnt lgkmcnt(0)"]
    B += [f"s_add_u32 s53, s53, {STG}", f"s_and_b32 s53, s53, {NST*STG-1}", f"v_add_u32 v{VRD}, s53, v{VL16}"]
    B += slot("B", 0, 1, [])
    tail = ["s_add_u32 s52, s52, 1", "s_cmp_lt_u32 s52, 32", f"s_cbranch_scc1 {N}_loop"]
    E = stamp(2)
    E += ["s_nop 1", mfma32(O["B"], VF[1], Pk["B"]), mfma16(L["B"], ONES, Pk["B"]),
          mfma32(O["B"], VF[1] + 4, Pk["B"] + 4), mfma16(L["B"], ONES, Pk["B"] + 4), "s_nop 15"]
    E += [f"s_mov_b32 s54, {hex(f32bits(ATT_LMAX))}",
          f"v_cmp_gt_f32 vcc, s54, v{L['A']}", f"v_cmp_gt_f32 s[56:57], s54, v{L['B']}", "s_nop 1",
          "s_and_b64 vcc, vcc, s[56:57]", "s_cmp_eq_u64 vcc, exec", f"s_cbranch_scc0 {N}_fallback"]
    E2 = [f"{N}_final:"]
    E2 += ["s_lshl_b32 s45, s43, 16", "s_lshl_b32 s46, s42, 11", "s_add_u32 s45, s45, s46", f"s_add_u32 s45, s45, {WS_O}"]
    for X in "AB":
        g = VG[X]
        E2 += [f"v_sub_f32 v{g}, 1.0, v{g}", f"v_cvt_pk_bf16_f32 v{g}, v{g}, v{g}", f"v_lshlrev_b32 v{g}, 16, v{g}",
               f"v_rcp_f32 v{T0}, v{L[X]}", "s_nop 0", f"v_mul_f32 v{T0}, v{T0}, v{g}"]
        for i in range(16):
            E2 += [f"v_mul_f32 v{O[X]+i}, v{O[X]+i}, v{T0}"]
        for j in range(8):
            E2 += [f"v_cvt_pk_bf16_f32 v{S[X]+j}, v{O[X]+2*j}, v{O[X]+2*j+1}"]
        for t in range(2):
            E2 += [f"buffer_store_dwordx4 {vr(S[X]+4*t,4)}, v{VL16}, s[24:27], s45 offen offset:{1024*t}"]
        E2 += ["s_add_u32 s45, s45, 65536"]
    E2 += stamp(3) + ["s_waitcnt vmcnt(0)"] + stamp(4) + stamp_dump(5, 9, 1)
    E2 += [f"{N}_done:", "s_endpgm"]
    F = [f"{N}_fallback:", "s_waitcnt vmcnt(0)"]
    M = {"A": 9, "B": 10}; AL = 11
    for X in "AB":
        F += [f"v_mov_b32 v{M[X]}, 0xff7fffff", f"v_mov_b32 v{L[X]}, 0"]
        for i in range(16): F += [f"v_mov_b32 v{O[X]+i}, 0"]
    F += [f"s_add_u32 s46, s44, {WS_K}", f"s_add_u32 s47, s44, {WS_V}", "s_mov_b32 s52, 0"]
    FB = []
    FB += [f"buffer_load_dwordx4 {vr(KF[0],4)}, v{VL16}, s[24:27], s46 offen",
           f"buffer_load_dwordx4 {vr(KF[0]+4,4)}, v{VL16}, s[24:27], s46 offen offset:1024",
           f"buffer_load_dwordx4 {vr(VF[0],4)}, v{VL16}, s[24:27], s47 offen",
           f"buffer_load_dwordx4 {vr(VF[0]+4,4)}, v{VL16}, s[24:27], s47 offen offset:1024",
           "s_waitcnt vmcnt(0)"]
    for X in "AB":
        FB += [mfma32(S[X], KF[0], Q[X], "0"), mfma32(S[X], KF[0] + 4, Q[X] + 4), "s_nop 15"]
        FB += [f"v_max3_f32 v{T0}, v{S[X]}, v{S[X]+1}, v{M[X]}"]
        for i in range(2, 16, 2): FB += [f"v_max3_f32 v{T0}, v{T0}, v{S[X]+i}, v{S[X]+i+1}"]
        FB += [f"v_mov_b32 v{T1}, v{T0}", "s_nop 1", f"v_permlane32_swap_b32 v{T0}, v{T1}", f"v_max_f32 v{T0}, v{T0}, v{T1}",
               f"v_sub_f32 v{AL}, v{M[X]}, v{T0}", f"v_exp_f32 v{AL}, v{AL}", f"v_mov_b32 v{M[X]}, v{T0}",
               f"v_mul_f32 v{L[X]}, v{L[X]}, v{AL}"]
        for i in range(16):
            FB += [f"v_sub_f32 v{S[X]+i}, v{S[X]+i}, v{T0}", f"v_exp_f32 v{S[X]+i}, v{S[X]+i}", f"v_mul_f32 v{O[X]+i}, v{O[X]+i}, v{AL}"]
        for j in range(8):
            FB += [f"v_cvt_pk_bf16_f32 v{Pk[X]+j}, v{S[X]+2*j}, v{S[X]+2*j+1}",
                   f"v_lshlrev_b32 v{T1}, 16, v{Pk[X]+j}", f"v_and_b32 v{T2}, 0xffff0000, v{Pk[X]+j}",
                   f"v_add_f32 v{L[X]}, v{L[X]}, v{T1}", f"v_add_f32 v{L[X]}, v{L[X]}, v{T2}"]
        FB += ["s_nop 1", mfma32(O[X], VF[0], Pk[X]), mfma32(O[X], VF[0] + 4, Pk[X] + 4)]
    FB += ["s_nop 15", "s_add_u32 s46, s46, 2048", "s_add_u32 s47, s47, 2048", "s_add_u32 s52, s52, 1", "s_cmp_lt_u32 s52, 64",
           f"s_cbranch_scc1 {N}_fbloop"]
    FE = []
    for X in "AB":
        FE += [f"v_mov_b32 v{T1}, v{L[X]}", "s_nop 1", f"v_permlane32_swap_b32 v{L[X]}, v{T1}", f"v_add_f32 v{L[X]}, v{L[X]}, v{T1}"]
    FE += [f"s_branch {N}_final"]
    text = header(N) + P + [f"{N}_loop:"] + B + tail + E + E2 + F + [f"{N}_fbloop:"] + FB + FE
    errs = check_trace(P + B + tail + B + tail + E + E2, N)
    errs += check_trace(P + B + tail + E + F + FB + FB + FE + E2, N + "_fb")
    return N, text, desc(N, 192), errs, (256, 256, NST * STG)


def mix(rd, dd):
    out = []
    for i, r in enumerate(rd):
        if i < len(dd): out += [dd[i][0], r, dd[i][1]] if dd[i][0] else [r, dd[i][1]]
        else: out += [r]
    for j in range(len(rd), len(dd)):
        out += ([dd[j][0], "s_nop 0"] if dd[j][0] else []) + [dd[j][1]]
    return out

def kloop(N, nkt, nst, ndma, dma, dma_adv, reads, mfmas, rd_adv, cnt_sreg, npre=1):
    pre = [f"s_waitcnt vmcnt({ndma*(nst-2)})", "s_barrier"] + reads(0, 0) + [f"s_mov_b32 s{cnt_sreg}, 0"]
    def body(do_dma, last, inflight):
        o = []
        d = dma() if do_dma else []
        h = (len(d) + 1) // 2
        o += ["s_waitcnt lgkmcnt(0)"]
        o += spread(mfmas(0), mix(reads(1, 1), d[:h]))
        o += ["s_waitcnt lgkmcnt(0)"]
        o += spread(mfmas(1), mix(reads(0, 2), d[h:]) + (dma_adv() if do_dma else []))
        o += ["s_waitcnt lgkmcnt(0)"]
        o += spread(mfmas(0), reads(1, 3) + ([] if last else rd_adv()))
        o += ["s_waitcnt lgkmcnt(0)"]
        m = mfmas(1)
        if last:
            o += m
        else:
            o += m[:npre] + [f"s_waitcnt vmcnt({inflight*ndma})", "s_barrier"] + spread(m[npre:], reads(0, 0))
        return o
    nmain = nkt - (nst - 1)
    B = body(True, False, nst - 2)
    tail = [f"s_add_u32 s{cnt_sreg}, s{cnt_sreg}, 1", f"s_cmp_lt_u32 s{cnt_sreg}, {nmain}", f"s_cbranch_scc1 {N}_loop"]
    rest = []
    for i in range(nst - 1):
        last = (i == nst - 2)
        rest += body(False, last, nst - 3 - i if not last else 0)
    text = [f"{N}_loop:"] + B + tail + rest
    trace = B + tail + B + tail + rest
    return pre, text, trace

def gen_ygemm():
    N = "ygemm_kernel"
    NST = 4; STG = 32768; L_B = 16384
    ACC = 64
    def acc(i, j): return ACC + (i * 2 + j) * 16
    def fr(s, i): return 32 + s * 16 + i * 4
    VL16 = 1; VB = [2, 3, 4, 5]; AA0 = 6; BA0 = [7, 8, 9, 10]; AA = 11; BA = [12, 13, 14, 15]
    T0, T1, T2, T3 = 16, 17, 18, 19
    P = ["s_cmp_ge_u32 s2, 256", f"s_cbranch_scc1 {N}_done"]
    P += stamp(0)
    P += ["s_and_b32 s42, s2, 1",
          "s_load_dwordx4 s[4:7], s[0:1], 8", "s_load_dwordx2 s[40:41], s[0:1], 88"]
    P += ["v_lshrrev_b32 v1, 6, v0", "v_and_b32 v0, 63, v0", "v_readfirstlane_b32 s3, v1"]
    P += ["s_bfe_u32 s44, s2, 0x10001", "s_lshl_b32 s44, s44, 2", "s_bfe_u32 s45, s2, 0x20003", "s_add_u32 s44, s44, s45",
          "s_bfe_u32 s45, s2, 0x10002", "s_lshl_b32 s45, s45, 3", "s_lshr_b32 s46, s2, 5", "s_add_u32 s45, s45, s46"]
    P += [f"v_lshlrev_b32 v{VL16}, 4, v0"]
    P += [f"v_lshrrev_b32 v{T0}, 3, v0", f"v_and_b32 v{T1}, 7, v0", f"v_lshrrev_b32 v{T2}, 4, v0",
          "s_lshl_b32 s46, s45, 7", "s_lshl_b32 s47, s3, 5", "s_add_u32 s46, s46, s47",
          f"v_add_u32 v{T3}, s46, v{T0}", f"v_lshlrev_b32 v{T3}, 12, v{T3}",
          f"v_xor_b32 v{VB[0]}, v{T1}, v{T2}", f"v_lshlrev_b32 v{VB[0]}, 4, v{VB[0]}", f"v_add_u32 v{VB[0]}, v{VB[0]}, v{T3}"]
    for q in range(1, 4):
        if q % 2: P += [f"v_xor_b32 v{VB[q]}, 64, v{VB[0]}", f"v_add_u32 v{VB[q]}, {q*8*4096}, v{VB[q]}"]
        else: P += [f"v_add_u32 v{VB[q]}, {q*8*4096}, v{VB[0]}"]
    P += ["s_and_b32 s46, s3, 1", "s_lshl_b32 s46, s46, 13", f"v_add_u32 v{AA0}, s46, v{VL16}",
          "s_lshr_b32 s46, s3, 1", "s_lshl_b32 s46, s46, 13", f"s_add_u32 s46, s46, {L_B}"]
    P += [f"v_lshrrev_b32 v{T0}, 5, v0", f"v_lshrrev_b32 v{T1}, 1, v0", f"v_and_b32 v{T1}, 7, v{T1}",
          f"v_xor_b32 v{T0}, v{T0}, v{T1}", f"v_and_b32 v{T1}, 31, v0", f"v_lshlrev_b32 v{T1}, 7, v{T1}",
          f"v_add_u32 v{T1}, s46, v{T1}"]
    for ks in range(4):
        P += [f"v_xor_b32 v{T2}, {2*ks}, v{T0}", f"v_lshlrev_b32 v{T2}, 4, v{T2}", f"v_add_u32 v{BA0[ks]}, v{T2}, v{T1}",
              f"v_mov_b32 v{BA[ks]}, v{BA0[ks]}"]
    P += [f"v_mov_b32 v{AA}, v{AA0}"]
    P += ["s_waitcnt lgkmcnt(0)", "s_cmp_eq_u32 s42, 0", "s_cselect_b32 s4, s4, s6", "s_cselect_b32 s5, s5, s7"] + srd(8, 4, 5, 8 * MB) + srd(24, 40, 41, WS_SIZE)
    P += ["s_lshl_b32 s47, s44, 2", "s_add_u32 s47, s47, s3", "s_lshl_b32 s47, s47, 17",
          f"s_mul_i32 s46, s42, {4*MB}", "s_add_u32 s47, s47, s46",
          "s_mov_b32 s48, 0", "s_lshl_b32 s50, s3, 12", "s_mov_b32 s49, s50", "s_mov_b32 s51, 0"]
    def dma():
        o = [["s_mov_b32 m0, s49", f"buffer_load_dwordx4 v{VL16}, s[24:27], s47 offen lds"]]
        for u in range(1, 4):
            o.append([None, f"buffer_load_dwordx4 v{VL16}, s[24:27], s47 offen offset:{1024*u} lds"])
        for q in range(4):
            o.append([f"s_add_u32 m0, s49, {L_B + 1024*q}", f"buffer_load_dwordx4 v{VB[q]}, s[8:11], s48 offen lds"])
        return o
    def dma_adv():
        return ["s_add_u32 s47, s47, 4096", "s_add_u32 s48, s48, 128", f"s_add_u32 s49, s49, {STG}", f"s_and_b32 s49, s49, {NST*STG-1}"]
    for t in range(NST - 1):
        P += mix([], dma()) + dma_adv()
    for r in range(ACC, ACC + 64): P += [f"v_mov_b32 v{r}, 0"]
    def reads(s_, ks):
        return [f"ds_read_b128 {vr(fr(s_,0),4)}, v{AA} offset:{ks*1024}",
                f"ds_read_b128 {vr(fr(s_,2),4)}, v{BA[ks]}",
                f"ds_read_b128 {vr(fr(s_,3),4)}, v{BA[ks]} offset:4096",
                f"ds_read_b128 {vr(fr(s_,1),4)}, v{AA} offset:{4096+ks*1024}"]
    def mfmas(s_):
        return [mfma32(acc(0, 0), fr(s_, 0), fr(s_, 2)), mfma32(acc(0, 1), fr(s_, 0), fr(s_, 3)),
                mfma32(acc(1, 0), fr(s_, 1), fr(s_, 2)), mfma32(acc(1, 1), fr(s_, 1), fr(s_, 3))]
    def rd_adv():
        o = [f"s_add_u32 s51, s51, {STG}", f"s_and_b32 s51, s51, {NST*STG-1}", f"v_add_u32 v{AA}, s51, v{AA0}"]
        for i in range(4): o += [f"v_add_u32 v{BA[i]}, s51, v{BA0[i]}"]
        return o
    P += stamp(1)
    pre, ktext, ktrace = kloop(N, 32, NST, 8, dma, dma_adv, reads, mfmas, rd_adv, 52)
    E = ["s_nop 15"] + stamp(2)
    E += ["s_lshl_b32 s46, s44, 2", "s_and_b32 s47, s3, 1", "s_lshl_b32 s47, s47, 1", "s_add_u32 s46, s46, s47", "s_lshl_b32 s46, s46, 17",
          "s_lshl_b32 s47, s45, 2", "s_lshr_b32 s48, s3, 1", "s_lshl_b32 s48, s48, 1", "s_add_u32 s47, s47, s48", "s_lshl_b32 s47, s47, 11",
          "s_add_u32 s46, s46, s47", f"s_mul_i32 s47, s42, {4*MB}", "s_add_u32 s46, s46, s47", f"s_add_u32 s46, s46, {WS_Y1}"]
    pk = 32
    for i in range(2):
        for j in range(2):
            a = acc(i, j)
            for r in range(8): E += [f"v_cvt_pk_bf16_f32 v{pk+r}, v{a+2*r}, v{a+2*r+1}"]
            for t in range(2):
                E += [f"buffer_store_dwordx4 {vr(pk+4*t,4)}, v{VL16}, s[24:27], s46 offen offset:{j*2048+t*1024}"]
            pk = 32 + (pk - 32 + 8) % 32
        E += ["s_add_u32 s46, s46, 131072"]
    E += stamp(3) + ["s_waitcnt vmcnt(0)"] * STAMPS + stamp(4) + stamp_dump(5, 9, 2)
    E += [f"{N}_done:", "s_endpgm"]
    text = header(N) + P + pre + ktext + E
    errs = check_trace(P + pre + ktrace + E, N)
    return N, text, desc(N, 128), errs, (256, 256, NST * STG)

def gen_out():
    N = "out_kernel"
    NST = 4; STG = 24576; L_B = 8192
    ACC = 64
    def acc(i): return ACC + i * 16
    def fr(s, i): return 32 + s * 12 + i * 4
    VL16 = 1; VW = [2, 3]; WA0 = 4; BA0 = 5; WA = 6; BA = 7; VG = 8; VO = 9
    T0, T1, T2, T3 = 16, 17, 18, 19
    Y = 96
    P = ["s_cmp_ge_u32 s2, 256", f"s_cbranch_scc1 {N}_done"]
    P += stamp(0)
    P += ["s_load_dwordx2 s[4:5], s[0:1], 56", "s_load_dwordx2 s[6:7], s[0:1], 72", "s_load_dwordx2 s[40:41], s[0:1], 88"]
    P += ["v_lshrrev_b32 v1, 6, v0", "v_and_b32 v0, 63, v0", "v_readfirstlane_b32 s3, v1"]
    P += ["s_and_b32 s45, s2, 3", "s_lshl_b32 s45, s45, 2", "s_bfe_u32 s46, s2, 0x20003", "s_add_u32 s45, s45, s46",
          "s_bfe_u32 s44, s2, 0x10002", "s_lshl_b32 s44, s44, 3", "s_lshr_b32 s46, s2, 5", "s_add_u32 s44, s44, s46",
          "s_lshl_b32 s43, s45, 2", "s_add_u32 s43, s43, s3"]
    P += [f"v_lshlrev_b32 v{VL16}, 4, v0"]
    P += [f"v_lshrrev_b32 v{T3}, 2, v0", "s_lshl_b32 s46, s3, 4", f"v_add_u32 v{T3}, s46, v{T3}", f"v_lshlrev_b32 v{T3}, 11, v{T3}",
          f"v_and_b32 v{VW[0]}, 3, v0", f"v_lshlrev_b32 v{VW[0]}, 4, v{VW[0]}", f"v_add_u32 v{VW[0]}, v{VW[0]}, v{T3}",
          "s_lshl_b32 s46, s44, 7", f"v_add_u32 v{VW[0]}, s46, v{VW[0]}", f"v_add_u32 v{VW[1]}, 64, v{VW[0]}"]
    P += [f"v_lshrrev_b32 v{T0}, 5, v0", f"v_lshlrev_b32 v{T0}, 2, v{T0}", f"v_bfe_u32 v{T1}, v0, 2, 2",
          f"v_add_u32 v{T0}, v{T0}, v{T1}", f"v_lshlrev_b32 v{T0}, 6, v{T0}",
          f"v_bfe_u32 v{T1}, v0, 4, 1", f"v_lshlrev_b32 v{T1}, 5, v{T1}", f"v_add_u32 v{T0}, v{T0}, v{T1}",
          f"v_and_b32 v{T1}, 3, v0", f"v_lshlrev_b32 v{T1}, 3, v{T1}", f"v_add_u32 v{WA0}, v{T0}, v{T1}",
          "s_lshl_b32 s50, s3, 12", f"s_add_u32 s46, s50, {L_B}", f"v_add_u32 v{BA0}, s46, v{VL16}",
          f"v_mov_b32 v{WA}, v{WA0}", f"v_mov_b32 v{BA}, v{BA0}"]
    P += [f"v_and_b32 v{T0}, 31, v0", "s_lshl_b32 s46, s43, 5", f"v_add_u32 v{T1}, s46, v{T0}", f"v_lshlrev_b32 v{VO}, 11, v{T1}",
          f"v_lshrrev_b32 v{T2}, 5, v0", f"v_lshlrev_b32 v{T2}, 4, v{T2}", f"v_add_u32 v{VO}, v{VO}, v{T2}",
          "s_lshl_b32 s46, s44, 7", f"v_add_u32 v{VO}, s46, v{VO}", f"v_lshlrev_b32 v{T1}, 2, v{T1}"]
    P += ["s_waitcnt lgkmcnt(0)"] + srd(8, 4, 5, 2 * MB) + srd(12, 6, 7, 4 * MB) + srd(24, 40, 41, WS_SIZE)
    P += ["s_lshl_b32 s47, s43, 16", f"s_add_u32 s47, s47, {WS_O}", "s_mov_b32 s48, 0", "s_mov_b32 s49, 0",
          "s_lshl_b32 s53, s3, 10", "s_mov_b32 s51, 0"]
    def dma():
        o = [["s_add_u32 m0, s49, s53", f"buffer_load_dwordx4 v{VW[0]}, s[8:11], s48 offen lds"],
             ["s_add_u32 m0, m0, 4096", f"buffer_load_dwordx4 v{VW[1]}, s[8:11], s48 offen lds"],
             ["s_add_u32 m0, s49, s54", f"buffer_load_dwordx4 v{VL16}, s[24:27], s47 offen lds"]]
        for u in range(1, 4):
            o.append([None, f"buffer_load_dwordx4 v{VL16}, s[24:27], s47 offen offset:{1024*u} lds"])
        return o
    def dma_adv():
        return ["s_add_u32 s47, s47, 4096", f"s_add_u32 s48, s48, {64*2048}", f"s_add_u32 s49, s49, {STG}",
                f"s_cmp_ge_u32 s49, {NST*STG}", "s_cselect_b32 s49, 0, s49"]
    P += [f"s_add_u32 s54, s50, {L_B}"]
    P += ["s_lshl_b32 s46, s44, 18", "s_lshl_b32 s55, s43, 11", "s_add_u32 s46, s46, s55", f"s_add_u32 s46, s46, {WS_Y1}"]
    for i in range(2):
        for p in range(2):
            P += [f"s_add_u32 s55, s46, {i*131072 + p*4*MB}"]
            for t in range(2):
                P += [f"buffer_load_dwordx4 {vr(Y+(i*2+p)*8+4*t,4)}, v{VL16}, s[24:27], s55 offen offset:{1024*t}"]
    P += [f"s_mov_b32 s55, {WS_G}", f"buffer_load_dword v{VG}, v{T1}, s[24:27], s55 offen"]
    for t in range(NST - 1):
        P += mix([], dma()) + dma_adv()
    for r in range(ACC, ACC + 32): P += [f"v_mov_b32 v{r}, 0"]
    def reads(s_, ks):
        return [f"ds_read_b128 {vr(fr(s_,2),4)}, v{BA} offset:{ks*1024}",
                f"ds_read_b64_tr_b16 {vr(fr(s_,0),2)}, v{WA} offset:{ks*1024}",
                f"ds_read_b64_tr_b16 {vr(fr(s_,0)+2,2)}, v{WA} offset:{ks*1024+512}",
                f"ds_read_b64_tr_b16 {vr(fr(s_,1),2)}, v{WA} offset:{4096+ks*1024}",
                f"ds_read_b64_tr_b16 {vr(fr(s_,1)+2,2)}, v{WA} offset:{4096+ks*1024+512}"]
    def mfmas(s_):
        return [mfma32(acc(0), fr(s_, 0), fr(s_, 2)), mfma32(acc(1), fr(s_, 1), fr(s_, 2))]
    def rd_adv():
        return [f"s_add_u32 s51, s51, {STG}", f"s_cmp_ge_u32 s51, {NST*STG}", "s_cselect_b32 s51, 0, s51",
                f"v_add_u32 v{WA}, s51, v{WA0}", f"v_add_u32 v{BA}, s51, v{BA0}"]
    P += stamp(1)
    pre, ktext, ktrace = kloop(N, 16, NST, 6, dma, dma_adv, reads, mfmas, rd_adv, 52)
    E = ["s_nop 15"] + stamp(2)
    pk = 32
    for i in range(2):
        a = acc(i)
        for r in range(8):
            y1 = Y + (i * 2) * 8 + r; y2 = Y + (i * 2 + 1) * 8 + r
            E += [f"v_lshlrev_b32 v{T0}, 16, v{y1}", f"v_lshlrev_b32 v{T1}, 16, v{y2}", f"v_sub_f32 v{T0}, v{T0}, v{T1}",
                  f"v_and_b32 v{T2}, 0xffff0000, v{y1}", f"v_and_b32 v{T3}, 0xffff0000, v{y2}", f"v_sub_f32 v{T2}, v{T2}, v{T3}",
                  f"v_fmac_f32 v{a+2*r}, v{VG}, v{T0}", f"v_fmac_f32 v{a+2*r+1}, v{VG}, v{T2}",
                  f"v_cvt_pk_bf16_f32 v{pk+r}, v{a+2*r}, v{a+2*r+1}"]
        E += ["s_nop 1"]
        for t in range(2):
            E += [f"v_permlane32_swap_b32 v{pk+4*t}, v{pk+4*t+2}", f"v_permlane32_swap_b32 v{pk+4*t+1}, v{pk+4*t+3}"]
        for t in range(2):
            E += [f"buffer_store_dwordx4 {vr(pk+4*t,4)}, v{VO}, s[12:15], 0 offen offset:{i*64+t*32}"]
        pk += 8
    E += stamp(3) + ["s_waitcnt vmcnt(0)"] * STAMPS + stamp(4) + stamp_dump(5, 9, 3)
    E += [f"{N}_done:", "s_endpgm"]
    text = header(N) + P + pre + ktext + E
    errs = check_trace(P + pre + ktrace + E, N)
    return N, text, desc(N, 128), errs, (256, 256, NST * STG)

def build(kernels, path):
    hdr = open("gated_mix__spectral_fnet__softmax_full_mha__prompt.s.ref").read().split("; Override launch")[0]
    out = hdr
    for (N, text, d, errs, (g, b, lds)) in kernels:
        out += f"; @launch kernel={N} grid=({g},1,1) block=({b},1,1) lds={lds}\n"
    out += '.amdgcn_target "amdgcn-amd-amdhsa--gfx950"\n.text\n'
    seen = set()
    for (N, text, d, errs, _) in kernels:
        if N in seen: continue
        seen.add(N)
        for e in errs: print("HAZARD", e)
        for l in text:
            out += (l if (l.endswith(":") or l.startswith(".")) else "    " + l) + "\n"
    out += '.section .rodata,"a"\n'
    seen = set()
    for (N, text, d, errs, _) in kernels:
        if N in seen: continue
        seen.add(N)
        out += d
    open(path, "w").write(out)

if __name__ == "__main__":
    if len(sys.argv) > 2 and sys.argv[2] == "stamps": STAMPS = True
    ks = [gen_proj(), gen_attn(), gen_ygemm(), gen_out()]
    build(ks, sys.argv[1] if len(sys.argv) > 1 else "k.s")
```

```python
import sys, struct
from asmlib import *

MB = 1 << 20
WS_AT, WS_BT, WS_Q, WS_K, WS_V, WS_O, WS_Y1, WS_Y2, WS_G = [i * 4 * MB for i in range(9)]
WS_SIZE = 40 * MB
LOG2E = 1.4426950408889634
QSCALE = (32 ** -0.5) * LOG2E

def f32bits(x):
    return struct.unpack("<I", struct.pack("<f", x))[0]

def srd(base, lo, hi, size):
    return [f"s_mov_b32 s{base}, s{lo}", f"s_mov_b32 s{base+1}, s{hi}",
            f"s_mov_b32 s{base+2}, {size}", f"s_mov_b32 s{base+3}, 0x00020000"]

def desc(name, nv, ns=102):
    acc = (nv + 3) // 4 * 4
    return f"""
.p2align 6
.amdhsa_kernel {name}
  .amdhsa_next_free_vgpr {nv}
  .amdhsa_next_free_sgpr {ns}
  .amdhsa_accum_offset {acc}
  .amdhsa_group_segment_fixed_size 0
  .amdhsa_kernarg_size 96
  .amdhsa_user_sgpr_count 2
  .amdhsa_user_sgpr_kernarg_segment_ptr 1
  .amdhsa_system_sgpr_workgroup_id_x 1
.end_amdhsa_kernel
"""

def mfma32(d, a, b, c=None):
    cs = vr(d, 16) if c is None else (str(c) if isinstance(c, str) else vr(c, 16))
    return f"v_mfma_f32_32x32x16_bf16 {vr(d,16)}, {vr(a,4)}, {vr(b,4)}, {cs}"
def mfma16(d, a, b):
    return f"v_mfma_f32_16x16x32_bf16 {vr(d,4)}, {vr(a,4)}, {vr(b,4)}, {vr(d,4)}"

STAMPS = False
EXP = set()
def stamp(i):
    if not STAMPS: return []
    return ([f"s_memrealtime s[68:69]"] if i == 0 else []) + [f"s_memtime s[{70+2*i}:{71+2*i}]", "s_waitcnt lgkmcnt(0)"]
def stamp_dump(n, wgsel=0, slot=0, dbgoff=0):
    if not STAMPS: return []
    o = ["s_load_dwordx2 s[90:91], s[0:1], 80", "s_waitcnt lgkmcnt(0)",
         "s_mov_b32 s92, s90", "s_mov_b32 s93, s91", "s_mov_b32 s94, 256", "s_mov_b32 s95, 0x00020000",
         "s_mov_b64 exec, 1", "s_lshl_b32 s96, s3, 5", f"s_add_u32 s96, s96, {dbgoff}"]
    o += [f"s_cmp_lg_u32 s2, {wgsel}", "s_cselect_b32 s96, 0x1000, s96"]
    o += ["s_memrealtime s[98:99]", "s_load_dwordx2 s[60:61], s[0:1], 88", "s_waitcnt lgkmcnt(0)",
          "s_mov_b32 s62, 0x10000000", "s_mov_b32 s63, 0x00020000",
          "s_lshl_b32 s97, s2, 4", f"s_add_u32 s97, s97, {64*MB + slot*65536}",
          "v_mov_b32 v4, s68", "v_mov_b32 v5, s69", "v_mov_b32 v6, s98", "v_mov_b32 v7, s99", "v_mov_b32 v2, 0",
          "buffer_store_dwordx4 v[4:7], v2, s[60:63], s97 offen"]
    for i in range(n):
        o += [f"s_sub_u32 s97, s{70+2*i}, s70", "v_mov_b32 v1, s97", f"v_mov_b32 v2, {4*i}",
              "buffer_store_dword v1, v2, s[92:95], s96 offen"]
    return o

def header(name):
    return [f".globl {name}", ".p2align 8", f".type {name},@function", f"{name}:"]

def gen_proj():
    N = "proj_kernel"
    STG = 53248
    L_HR, L_HI, L_W = 32768, 36864, 40960
    ACC = 96
    def acc(b, c): return ACC + (b * 5 + c) * 16
    def fr(s, i): return 32 + s * 28 + i * 4
    VX = list(range(1, 9)); VH = 9; VW = [10, 88, 89]
    XA0 = [11, 12, 13, 14]; HA0 = [15, 16, 17, 18]; WA0 = 19
    XA = [20, 21, 22, 23]; HA = [24, 25, 26, 27]; WA = 28
    VL16 = 29
    VG = 90
    T0, T1, T2, T3 = 30, 31, 92, 93
    P = []
    P += [f"s_cmp_ge_u32 s2, 256", f"s_cbranch_scc1 {N}_done"]
    P += stamp(0)
    P += ["s_load_dwordx2 s[4:5], s[0:1], 0", "s_load_dwordx4 s[32:35], s[0:1], 24",
          "s_load_dwordx2 s[36:37], s[0:1], 48", "s_load_dwordx2 s[38:39], s[0:1], 64",
          "s_load_dwordx2 s[40:41], s[0:1], 88"]
    P += ["v_lshrrev_b32 v1, 6, v0", "v_and_b32 v0, 63, v0", "v_readfirstlane_b32 s3, v1"]
    P += ["s_and_b32 s42, s2, 7", "s_lshr_b32 s43, s2, 3",
          "s_and_b32 s44, s42, 1", "s_lshl_b32 s44, s44, 2", "s_and_b32 s45, s43, 3", "s_add_u32 s44, s44, s45",
          "s_lshr_b32 s42, s42, 1", "s_lshl_b32 s42, s42, 3", "s_lshr_b32 s43, s43, 2", "s_add_u32 s43, s43, s42"]
    P += ["s_mov_b32 s42, s44"]
    P += ["s_lshl_b32 s44, s42, 8", "s_lshl_b32 s45, s3, 6", "s_add_u32 s44, s44, s45",
          "s_lshl_b32 s50, s3, 13", "s_lshl_b32 s51, s3, 10"]
    P += [f"v_lshrrev_b32 v{T0}, 3, v0", f"v_and_b32 v{T1}, 7, v0", f"v_lshrrev_b32 v{T2}, 4, v0",
          f"v_lshlrev_b32 v{VL16}, 4, v0"]
    P += [f"v_add_u32 v{T3}, s44, v{T0}", f"v_lshlrev_b32 v{T3}, 11, v{T3}",
          f"v_xor_b32 v{VX[0]}, v{T1}, v{T2}", f"v_lshlrev_b32 v{VX[0]}, 4, v{VX[0]}",
          f"v_add_u32 v{VX[0]}, v{VX[0]}, v{T3}"]
    for q in range(1, 8):
        if q % 2 == 1:
            P += [f"v_xor_b32 v{VX[q]}, 64, v{VX[0]}", f"v_add_u32 v{VX[q]}, {q*8*2048}, v{VX[q]}"]
        else:
            P += [f"v_add_u32 v{VX[q]}, {q*8*2048}, v{VX[0]}"]
    P += ["s_lshl_b32 s45, s43, 5", "s_lshl_b32 s46, s3, 3", "s_add_u32 s45, s45, s46",
          f"v_add_u32 v{T3}, s45, v{T0}", f"v_lshlrev_b32 v{T3}, 11, v{T3}",
          "s_lshl_b32 s46, s3, 2", f"v_add_u32 v{VH}, s46, v{T2}", f"v_and_b32 v{VH}, 7, v{VH}",
          f"v_xor_b32 v{VH}, v{VH}, v{T1}", f"v_lshlrev_b32 v{VH}, 4, v{VH}", f"v_add_u32 v{VH}, v{VH}, v{T3}"]
    P += [f"v_lshrrev_b32 v{T3}, 2, v0", "s_lshl_b32 s46, s3, 4", f"v_add_u32 v{T3}, s46, v{T3}",
          "s_movk_i32 s46, 6144", f"v_mul_lo_u32 v{T3}, v{T3}, s46",
          f"v_and_b32 v{VW[0]}, 3, v0", f"v_lshlrev_b32 v{VW[0]}, 4, v{VW[0]}", f"v_add_u32 v{VW[0]}, v{VW[0]}, v{T3}",
          "s_lshl_b32 s46, s43, 6", f"v_add_u32 v{VW[0]}, s46, v{VW[0]}",
          f"v_add_u32 v{VW[1]}, 2048, v{VW[0]}", f"v_add_u32 v{VW[2]}, 4096, v{VW[0]}"]
    P += [f"v_lshrrev_b32 v{T0}, 5, v0", f"v_lshrrev_b32 v{T1}, 1, v0", f"v_and_b32 v{T1}, 7, v{T1}",
          f"v_xor_b32 v{T0}, v{T0}, v{T1}",
          f"v_and_b32 v{T1}, 31, v0", f"v_lshlrev_b32 v{T1}, 7, v{T1}"]
    for ks in range(4):
        P += [f"v_xor_b32 v{T2}, {2*ks}, v{T0}", f"v_lshlrev_b32 v{T2}, 4, v{T2}", f"v_add_u32 v{T2}, v{T2}, v{T1}",
              f"v_add_u32 v{XA0[ks]}, s50, v{T2}", f"v_add_u32 v{HA0[ks]}, {L_HR}, v{T2}"]
    P += [f"v_lshrrev_b32 v{T0}, 5, v0", f"v_lshlrev_b32 v{T0}, 3, v{T0}", f"v_bfe_u32 v{T1}, v0, 2, 2",
          f"v_add_u32 v{T0}, v{T0}, v{T1}", f"v_lshlrev_b32 v{T0}, 6, v{T0}",
          f"v_bfe_u32 v{T1}, v0, 4, 1", f"v_lshlrev_b32 v{T1}, 5, v{T1}", f"v_add_u32 v{T0}, v{T0}, v{T1}",
          f"v_and_b32 v{T1}, 3, v0", f"v_lshlrev_b32 v{T1}, 3, v{T1}", f"v_add_u32 v{T0}, v{T0}, v{T1}",
          f"v_add_u32 v{WA0}, {L_W}, v{T0}"]
    P += ["s_waitcnt lgkmcnt(0)"]
    P += srd(8, 4, 5, 4 * MB) + srd(12, 32, 33, 2 * MB) + srd(16, 34, 35, 2 * MB) + srd(20, 36, 37, 6 * MB) \
        + srd(24, 40, 41, WS_SIZE) + srd(28, 38, 39, 2048)
    GX = 96
    P += ["s_lshl_b32 s45, s42, 8", "s_lshl_b32 s46, s43, 3", "s_add_u32 s45, s45, s46",
          "s_lshl_b32 s46, s3, 1", "s_add_u32 s52, s45, s46",
          "s_lshl_b32 s45, s52, 11",
          f"v_lshlrev_b32 v{T0}, 5, v0"]
    P += [f"buffer_load_dwordx4 v[{GX}:{GX+3}], v{T0}, s[8:11], s45 offen",
          f"buffer_load_dwordx4 v[{GX+4}:{GX+7}], v{T0}, s[8:11], s45 offen offset:16",
          f"buffer_load_dwordx4 v[{GX+8}:{GX+11}], v{T0}, s[8:11], s45 offen offset:2048",
          f"buffer_load_dwordx4 v[{GX+12}:{GX+15}], v{T0}, s[8:11], s45 offen offset:2064",
          f"buffer_load_dwordx4 v[{GX+16}:{GX+19}], v{T0}, s[28:31], 0 offen",
          f"buffer_load_dwordx4 v[{GX+20}:{GX+23}], v{T0}, s[28:31], 0 offen offset:16"]
    def dma():
        out = []
        for q in range(8):
            out.append([f"s_add_u32 m0, s53, {1024*q}", f"buffer_load_dwordx4 v{VX[q]}, s[8:11], s45 offen lds"])
        out.append([f"s_add_u32 m0, s54, {L_HR}", f"buffer_load_dwordx4 v{VH}, s[12:15], s45 offen lds"])
        out.append([f"s_add_u32 m0, s54, {L_HI}", f"buffer_load_dwordx4 v{VH}, s[16:19], s45 offen lds"])
        for c in range(3):
            out.append([f"s_add_u32 m0, s54, {L_W + 4096*c}", f"buffer_load_dwordx4 v{VW[c]}, s[20:23], s46 offen lds"])
        return out
    def dma_adv():
        return ["s_add_u32 s47, s47, %d" % STG, "s_cmp_ge_u32 s47, %d" % (3 * STG), "s_cselect_b32 s47, 0, s47",
                "s_add_u32 s53, s47, s50", "s_add_u32 s54, s47, s51",
                "s_add_u32 s45, s45, 128", "s_and_b32 s45, s45, 0x7ff", "s_mul_i32 s46, s45, 3072"]
    P += ["s_mov_b32 s47, 0", "s_mov_b32 s45, 0", "s_mov_b32 s46, 0", "s_mov_b32 s53, s50", "s_mov_b32 s54, s51"]
    if "rot" in EXP:
        P += ["s_lshr_b32 s45, s2, 5", "s_lshl_b32 s45, s45, 1", "s_bfe_u32 s46, s2, 0x20003", "s_lshl_b32 s46, s46, 2",
              "s_add_u32 s45, s45, s46", "s_and_b32 s45, s45, 15", "s_lshl_b32 s45, s45, 7", "s_mul_i32 s46, s45, 3072"]
    for t in range(2):
        for a, b in dma():
            P += [a, "s_nop 0", b]
        P += dma_adv()
    P += stamp(1)
    P += ["s_waitcnt vmcnt(26)"]
    P += stamp(2)
    A0, A1 = 120, 121
    P += [f"v_mov_b32 v{A0}, 0", f"v_mov_b32 v{A1}, 0"]
    for i in range(8):
        w = GX + 16 + i
        P += [f"v_lshlrev_b32 v122, 16, v{w}", f"v_and_b32 v123, 0xffff0000, v{w}"]
        for r, a in ((0, A0), (1, A1)):
            x = GX + 8 * r + i
            P += [f"v_lshlrev_b32 v124, 16, v{x}", f"v_and_b32 v125, 0xffff0000, v{x}",
                  "v_mul_f32 v124, v124, v122", "v_mul_f32 v125, v125, v123",
                  "v_cvt_pk_bf16_f32 v126, v124, v125",
                  "v_lshlrev_b32 v124, 16, v126", "v_and_b32 v125, 0xffff0000, v126",
                  f"v_add_f32 v{a}, v{a}, v124", f"v_add_f32 v{a}, v{a}, v125"]
    for off in (0x041F, 0x081F, 0x101F, 0x201F, 0x401F):
        P += [f"ds_swizzle_b32 v122, v{A0} offset:{off}", f"ds_swizzle_b32 v123, v{A1} offset:{off}",
              "s_waitcnt lgkmcnt(0)", f"v_add_f32 v{A0}, v{A0}, v122", f"v_add_f32 v{A1}, v{A1}, v123"]
    P += ["s_nop 0", f"v_readlane_b32 s55, v{A0}, 32", f"v_readlane_b32 s56, v{A1}, 32", "s_nop 1",
          f"v_add_f32 v{A0}, s55, v{A0}", f"v_add_f32 v{A1}, s56, v{A1}",
          "v_cmp_eq_u32 vcc, 1, v0", "s_nop 1", f"v_cndmask_b32 v{A0}, v{A0}, v{A1}, vcc",
          f"v_cvt_pk_bf16_f32 v{A0}, v{A0}, v{A0}", f"v_lshlrev_b32 v{A0}, 16, v{A0}",
          f"v_mul_f32 v{A0}, {hex(f32bits(-LOG2E))}, v{A0}", f"v_exp_f32 v{A0}, v{A0}", "s_nop 0",
          f"v_add_f32 v{A0}, 1.0, v{A0}", f"v_rcp_f32 v{A0}, v{A0}", "s_nop 0",
          f"v_cvt_pk_bf16_f32 v{A0}, v{A0}, v{A0}", f"v_lshlrev_b32 v{VG}, 16, v{A0}"]
    for r in range(ACC, ACC + 160):
        P += [f"v_mov_b32 v{r}, 0"]
    for i in range(4):
        P += [f"v_mov_b32 v{XA[i]}, v{XA0[i]}", f"v_mov_b32 v{HA[i]}, v{HA0[i]}"]
    P += [f"v_mov_b32 v{WA}, v{WA0}", "s_mov_b32 s48, 0", "s_mov_b32 s49, 0"]
    def reads(s, ks):
        return [f"ds_read_b128 {vr(fr(s,0),4)}, v{XA[ks]}",
                f"ds_read_b128 {vr(fr(s,2),4)}, v{HA[ks]}",
                f"ds_read_b128 {vr(fr(s,3),4)}, v{HA[ks]} offset:4096",
                f"ds_read_b64_tr_b16 {vr(fr(s,4),2)}, v{WA} offset:{ks*1024}",
                f"ds_read_b64_tr_b16 {vr(fr(s,4)+2,2)}, v{WA} offset:{ks*1024+256}",
                f"ds_read_b64_tr_b16 {vr(fr(s,5),2)}, v{WA} offset:{4096+ks*1024}",
                f"ds_read_b64_tr_b16 {vr(fr(s,5)+2,2)}, v{WA} offset:{4096+ks*1024+256}",
                f"ds_read_b64_tr_b16 {vr(fr(s,6),2)}, v{WA} offset:{8192+ks*1024}",
                f"ds_read_b64_tr_b16 {vr(fr(s,6)+2,2)}, v{WA} offset:{8192+ks*1024+256}",
                f"ds_read_b128 {vr(fr(s,1),4)}, v{XA[ks]} offset:4096"]
    def mfmas(s):
        out = []
        for b in range(2):
            X = fr(s, b)
            if "p16" in EXP:
                for c in range(5):
                    out += [mfma16(acc(b, c) + 8 * s, X, fr(s, 2 + c)), mfma16(acc(b, c) + 8 * s + 4, X, fr(s, 2 + c))]
                continue
            out += [mfma32(acc(b, 0), X, fr(s, 2)), mfma32(acc(b, 1), X, fr(s, 3)),
                    mfma32(acc(b, 2), fr(s, 4), X), mfma32(acc(b, 3), fr(s, 5), X),
                    mfma32(acc(b, 4), X, fr(s, 6))]
        return out
    def rd_adv():
        o = ["s_add_u32 s48, s48, %d" % STG, "s_cmp_ge_u32 s48, %d" % (3 * STG), "s_cselect_b32 s48, 0, s48"]
        for i in range(4):
            o += [f"v_add_u32 v{XA[i]}, s48, v{XA0[i]}", f"v_add_u32 v{HA[i]}, s48, v{HA0[i]}"]
        o += [f"v_add_u32 v{WA}, s48, v{WA0}"]
        return o
    P += stamp(3)
    P += ["s_waitcnt vmcnt(13)", "s_barrier"] + stamp(4) + reads(0, 0)
    def body(do_dma, last):
        o = []
        d = dma() if do_dma else []
        def mix(rd, dd):
            out = []
            for i, r in enumerate(rd):
                if i < len(dd): out += [dd[i][0], r, dd[i][1]]
                else: out += [r]
            return out
        o += ["s_waitcnt lgkmcnt(0)"]
        o += spread(mfmas(0), mix(reads(1, 1), d[:7]))
        o += ["s_waitcnt lgkmcnt(0)"]
        o += spread(mfmas(1), mix(reads(0, 2), d[7:]) + (dma_adv() if do_dma else []))
        o += ["s_waitcnt lgkmcnt(0)"]
        o += spread(mfmas(0), reads(1, 3) + ([] if last else rd_adv()))
        o += ["s_waitcnt lgkmcnt(0)"]
        m = mfmas(1)
        if last:
            o += m
        else:
            o += m[:2] + [f"s_waitcnt vmcnt({13 if do_dma else 0})", "s_barrier"] + spread(m[2:], reads(0, 0))
        return o
    B = body(True, False)
    loop_tail = ["s_add_u32 s49, s49, 1", "s_cmp_lt_u32 s49, 14", f"s_cbranch_scc1 {N}_loop"]
    B14 = body(False, False)
    B15 = body(False, True)
    E = ["s_nop 15"] + stamp(5)
    E += ["s_lshl_b32 s45, s43, 17", "s_lshl_b32 s46, s42, 14", "s_add_u32 s45, s45, s46",
          "s_lshl_b32 s46, s3, 12", "s_add_u32 s45, s45, s46", f"s_mov_b32 s57, {hex(f32bits(QSCALE))}"]
    pk = 32
    for c in range(5):
        for b in range(2):
            a = acc(b, c)
            if c == 2:
                for r in range(16):
                    E += [f"v_mul_f32 v{a+r}, s57, v{a+r}"]
            for r in range(8):
                E += [f"v_cvt_pk_bf16_f32 v{pk+r}, v{a+2*r}, v{a+2*r+1}"]
            if c < 2:
                E += ["s_nop 1"]
                for t in range(2):
                    E += [f"v_permlane32_swap_b32 v{pk+4*t}, v{pk+4*t+2}", f"v_permlane32_swap_b32 v{pk+4*t+1}, v{pk+4*t+3}"]
            for t in range(2):
                E += [f"buffer_store_dwordx4 {vr(pk+4*t,4)}, v{VL16}, s[24:27], s45 offen offset:{(2*b+t)*1024}"]
            pk = 32 + (pk - 32 + 8) % 56
        E += [f"s_add_u32 s45, s45, {4*MB}"]
    E += [f"v_lshlrev_b32 v{T0}, 2, v0", "s_lshl_b32 s45, s52, 2", f"s_add_u32 s45, s45, {WS_G}",
          "v_cmp_gt_u32 vcc, 2, v0", "s_and_saveexec_b64 s[58:59], vcc",
          f"buffer_store_dword v{VG}, v{T0}, s[24:27], s45 offen"]
    E += stamp(6) + ["s_waitcnt vmcnt(0)"] * STAMPS + stamp(7) + stamp_dump(8, 9)
    E += [f"{N}_done:", "s_endpgm"]
    text = header(N) + P + [f"{N}_loop:"] + B + loop_tail + B14 + B15 + E
    trace = P + B + loop_tail + B + loop_tail + B14 + B15 + E
    errs = check_trace(trace, N)
    return N, text, desc(N, 256), errs, (256, 256, 3 * STG)


ATT_OFF = 40.0
ATT_LMAX = 2.0 ** 60
def gen_attn(merged=False):
    N = "attn_kernel" if not merged else "mix_kernel_a"
    NST = 4; STG = 8192
    Q = {"A": 16, "B": 24}
    S = {"A": 32, "B": 48}
    Pk = {"A": 64, "B": 72}
    O = {"A": 80, "B": 96}
    L = {"A": 112, "B": 116}
    CN = {"A": 120, "B": 136}
    KF = [152, 160]
    VF = [168, 176]
    ONES = 184
    VL16 = 1; VRD = 2; VG = {"A": 3, "B": 4}; T0, T1, T2, T3 = 5, 6, 7, 8
    P = []
    if not merged:
        P += ["s_cmp_ge_u32 s2, 256", f"s_cbranch_scc1 {N}_done"]
        P += ["v_lshrrev_b32 v1, 6, v0", "v_and_b32 v0, 63, v0", "v_readfirstlane_b32 s3, v1"]
    P += stamp(0)
    P += ["s_load_dwordx2 s[40:41], s[0:1], 88"]
    P += ["s_and_b32 s42, s2, 7", "s_lshr_b32 s43, s2, 3", "s_lshl_b32 s42, s42, 2", "s_lshr_b32 s44, s43, 3",
          "s_add_u32 s42, s42, s44",
          "s_and_b32 s43, s43, 7",
          "s_lshl_b32 s43, s43, 3", "s_lshl_b32 s44, s3, 1", "s_add_u32 s43, s43, s44",
          "s_lshl_b32 s44, s42, 17"]
    P += [f"v_lshlrev_b32 v{VL16}, 4, v0"]
    P += ["s_waitcnt lgkmcnt(0)"] + srd(24, 40, 41, WS_SIZE)
    P += ["s_lshl_b32 s45, s43, 11", "s_add_u32 s45, s45, s44", f"s_add_u32 s45, s45, {WS_Q}",
          f"s_add_u32 s46, s44, {WS_K}", f"s_add_u32 s47, s44, {WS_V}"]
    if "rot" in EXP: P += ["s_bfe_u32 s58, s2, 0x30003", "s_lshl_b32 s58, s58, 14"]
    else: P += ["s_mov_b32 s58, 0"]
    P += ["s_add_u32 s59, s46, s58"]
    for i in range(4):
        P += [f"buffer_load_dwordx4 {vr(16+4*i,4)}, v{VL16}, s[24:27], s45 offen offset:{1024*i}"]
    for i in range(4):
        P += [f"buffer_load_dwordx4 {vr(KF[0]+4*i,4)}, v{VL16}, s[24:27], s59 offen offset:{1024*i}"]
    P += [f"v_and_b32 v{T0}, 31, v0", f"v_lshlrev_b32 v{T0}, 2, v{T0}", "s_lshl_b32 s45, s43, 7", f"s_add_u32 s45, s45, {WS_G}",
          f"buffer_load_dword v{VG['A']}, v{T0}, s[24:27], s45 offen",
          f"buffer_load_dword v{VG['B']}, v{T0}, s[24:27], s45 offen offset:128"]
    P += ["s_lshl_b32 s51, s3, 10", "s_add_u32 s61, s58, s51", "s_add_u32 s60, s61, 2048", "s_and_b32 s60, s60, 0x1ffff",
          "s_add_u32 s48, s46, s60", "s_add_u32 s49, s47, s61", "s_mov_b32 s50, s51"]
    def dma():
        return [["s_mov_b32 m0, s50", f"buffer_load_dwordx4 v{VL16}, s[24:27], s48 offen lds"],
                ["s_add_u32 m0, s50, 4096", f"buffer_load_dwordx4 v{VL16}, s[24:27], s49 offen lds"]]
    def dma_adv():
        return ["s_add_u32 s60, s60, 4096", "s_and_b32 s60, s60, 0x1ffff", "s_add_u32 s61, s61, 4096", "s_and_b32 s61, s61, 0x1ffff",
                "s_add_u32 s48, s46, s60", "s_add_u32 s49, s47, s61", f"s_add_u32 s50, s50, {STG}",
                f"s_and_b32 s50, s50, {NST*STG-1}"]
    for t in range(NST - 1):
        for a, b in dma(): P += [a, "s_nop 0", b]
        P += dma_adv()
    for r in list(range(80, 120)) + list(range(Pk["B"], Pk["B"] + 8)) + list(range(VF[0], VF[0] + 16)):
        P += [f"v_mov_b32 v{r}, 0"]
    P += [f"v_bfe_u32 v{T0}, v0, 2, 1", f"v_bfe_u32 v{T1}, v0, 4, 1", f"v_cmp_eq_u32 vcc, v{T0}, v{T1}",
          f"v_mov_b32 v{T2}, 0x3f803f80", "s_nop 0", f"v_cndmask_b32 v{ONES}, 0, v{T2}, vcc"]
    for i in range(1, 4): P += [f"v_mov_b32 v{ONES+i}, v{ONES}"]
    P += [f"v_mov_b32 v{VRD}, v{VL16}", "s_mov_b32 s52, 0", "s_mov_b32 s53, 0"]
    P += [f"s_waitcnt vmcnt({2*(NST-1)})"]
    for X in "AB":
        P += [mfma32(S[X], KF[0], Q[X], "0"), mfma32(S[X], KF[0] + 4, Q[X] + 4),
              mfma32(CN[X], KF[1], Q[X], "0"), mfma32(CN[X], KF[1] + 4, Q[X] + 4)]
    P += ["s_nop 15"]
    for X in "AB":
        m = T0 if X == "A" else T1
        P += [f"v_max3_f32 v{m}, v{S[X]}, v{S[X]+1}, v{S[X]+2}"]
        vals = [S[X] + i for i in range(3, 16)] + [CN[X] + i for i in range(16)]
        for i in range(0, 28, 2):
            P += [f"v_max3_f32 v{m}, v{m}, v{vals[i]}, v{vals[i+1]}"]
        P += [f"v_max_f32 v{m}, v{m}, v{vals[28]}"]
    P += [f"v_mov_b32 v{T2}, v{T0}", f"v_mov_b32 v{T3}, v{T1}", "s_nop 1",
          f"v_permlane32_swap_b32 v{T0}, v{T2}", f"v_permlane32_swap_b32 v{T1}, v{T3}",
          f"v_max_f32 v{T0}, v{T0}, v{T2}", f"v_max_f32 v{T1}, v{T1}, v{T3}",
          f"s_mov_b32 s54, {hex(f32bits(-ATT_OFF))}",
          f"v_sub_f32 v{T0}, s54, v{T0}", f"v_sub_f32 v{T1}, s54, v{T1}"]
    for i in range(16):
        P += [f"v_mov_b32 v{CN['A']+i}, v{T0}", f"v_mov_b32 v{CN['B']+i}, v{T1}"]
    P += ["s_nop 1", mfma32(S["A"], KF[0], Q["A"], CN["A"]), mfma32(S["A"], KF[0] + 4, Q["A"] + 4)]
    P += stamp(1)
    def slot(X, kset_qk, vset_pv, rd):
        Y = "B" if X == "A" else "A"
        mf = [mfma32(S[Y], KF[kset_qk], Q[Y], CN[Y]), mfma32(S[Y], KF[kset_qk] + 4, Q[Y] + 4),
              mfma32(O[Y], VF[vset_pv], Pk[Y]), mfma16(L[Y], ONES, Pk[Y]),
              mfma32(O[Y], VF[vset_pv] + 4, Pk[Y] + 4), mfma16(L[Y], ONES, Pk[Y] + 4)]
        e = [f"v_exp_f32 v{S[X]+i}, v{S[X]+i}" for i in range(16)]
        c = [f"v_cvt_pk_bf16_f32 v{Pk[X]+j}, v{S[X]+2*j}, v{S[X]+2*j+1}" for j in range(8)]
        va = e[0:3] + [c[0]] + e[3:5] + [c[1]] + e[5:7] + [c[2]] + e[7:9] + [c[3]] + e[9:11] + [c[4]] + e[11:13] + [c[5]] + e[13:16] + [c[6], c[7]]
        o = []
        if "ladd" in EXP:
            mf = [mf[0], mf[1], mf[2], mf[4]]
            adds = [f"v_add_f32 v{L[X]+(i%4)}, v{L[X]+(i%4)}, v{S[X]+i}" for i in range(16)]
            va2 = []
            ai = 0
            for k_, ins in enumerate(va):
                va2.append(ins)
                if ins.startswith("v_cvt"):
                    va2 += adds[ai:ai+2]; ai += 2
            for i in range(4):
                o += [mf[i]]
                if i < 2: o += rd[2*i:2*i+2]
                o += va2[10*i:10*i+10]
            return o
        for i in range(6):
            o += [mf[i]]
            if i < 2: o += rd[2*i:2*i+2]
            o += va[4*i:4*i+4]
        return o
    def rds(kb_par, half):
        return [f"ds_read_b128 {vr(KF[1-kb_par],4)}, v{VRD} offset:{half*2048}",
                f"ds_read_b128 {vr(KF[1-kb_par]+4,4)}, v{VRD} offset:{half*2048+1024}",
                f"ds_read_b128 {vr(VF[kb_par],4)}, v{VRD} offset:{4096+half*2048}",
                f"ds_read_b128 {vr(VF[kb_par]+4,4)}, v{VRD} offset:{4096+half*2048+1024}"]
    B = [f"s_waitcnt vmcnt({2*(NST-2)})", "s_barrier"]
    d = dma()
    B += [d[0][0], "s_nop 0", d[0][1], d[1][0], "s_nop 0", d[1][1]] + dma_adv()
    B += slot("A", 0, 1, rds(0, 0))
    B += ["s_waitcnt lgkmcnt(0)"]
    B += slot("B", 1, 0, [])
    B += slot("A", 1, 0, rds(1, 1))
    B += ["s_waitcnt lgkmcnt(0)"]
    B += [f"s_add_u32 s53, s53, {STG}", f"s_and_b32 s53, s53, {NST*STG-1}", f"v_add_u32 v{VRD}, s53, v{VL16}"]
    B += slot("B", 0, 1, [])
    tail = ["s_add_u32 s52, s52, 1", "s_cmp_lt_u32 s52, 32", f"s_cbranch_scc1 {N}_loop"]
    E = stamp(2)
    E += ["s_nop 1", mfma32(O["B"], VF[1], Pk["B"]), mfma16(L["B"], ONES, Pk["B"]),
          mfma32(O["B"], VF[1] + 4, Pk["B"] + 4), mfma16(L["B"], ONES, Pk["B"] + 4), "s_nop 15"]
    E += [f"s_mov_b32 s54, {hex(f32bits(ATT_LMAX))}",
          f"v_cmp_gt_f32 vcc, s54, v{L['A']}", f"v_cmp_gt_f32 s[56:57], s54, v{L['B']}", "s_nop 1",
          "s_and_b64 vcc, vcc, s[56:57]", "s_cmp_eq_u64 vcc, exec", f"s_cbranch_scc0 {N}_fallback"]
    E2 = [f"{N}_final:"]
    E2 += ["s_lshl_b32 s45, s43, 16", "s_lshl_b32 s46, s42, 11", "s_add_u32 s45, s45, s46", f"s_add_u32 s45, s45, {WS_O}"]
    for X in "AB":
        g = VG[X]
        E2 += [f"v_sub_f32 v{g}, 1.0, v{g}", f"v_cvt_pk_bf16_f32 v{g}, v{g}, v{g}", f"v_lshlrev_b32 v{g}, 16, v{g}",
               f"v_rcp_f32 v{T0}, v{L[X]}", "s_nop 0", f"v_mul_f32 v{T0}, v{T0}, v{g}"]
        for i in range(16):
            E2 += [f"v_mul_f32 v{O[X]+i}, v{O[X]+i}, v{T0}"]
        for j in range(8):
            E2 += [f"v_cvt_pk_bf16_f32 v{S[X]+j}, v{O[X]+2*j}, v{O[X]+2*j+1}"]
        for t in range(2):
            E2 += [f"buffer_store_dwordx4 {vr(S[X]+4*t,4)}, v{VL16}, s[24:27], s45 offen offset:{1024*t}"]
        E2 += ["s_add_u32 s45, s45, 65536"]
    E2 += stamp(3) + ["s_waitcnt vmcnt(0)"] + stamp(4) + stamp_dump(5, 9, 1)
    E2 += [f"{N}_done:", "s_endpgm"]
    F = [f"{N}_fallback:", "s_waitcnt vmcnt(0)"]
    M = {"A": 9, "B": 10}; AL = 11
    for X in "AB":
        F += [f"v_mov_b32 v{M[X]}, 0xff7fffff", f"v_mov_b32 v{L[X]}, 0"]
        for i in range(16): F += [f"v_mov_b32 v{O[X]+i}, 0"]
    F += [f"s_add_u32 s46, s44, {WS_K}", f"s_add_u32 s47, s44, {WS_V}", "s_mov_b32 s52, 0"]
    FB = []
    FB += [f"buffer_load_dwordx4 {vr(KF[0],4)}, v{VL16}, s[24:27], s46 offen",
           f"buffer_load_dwordx4 {vr(KF[0]+4,4)}, v{VL16}, s[24:27], s46 offen offset:1024",
           f"buffer_load_dwordx4 {vr(VF[0],4)}, v{VL16}, s[24:27], s47 offen",
           f"buffer_load_dwordx4 {vr(VF[0]+4,4)}, v{VL16}, s[24:27], s47 offen offset:1024",
           "s_waitcnt vmcnt(0)"]
    for X in "AB":
        FB += [mfma32(S[X], KF[0], Q[X], "0"), mfma32(S[X], KF[0] + 4, Q[X] + 4), "s_nop 15"]
        FB += [f"v_max3_f32 v{T0}, v{S[X]}, v{S[X]+1}, v{M[X]}"]
        for i in range(2, 16, 2): FB += [f"v_max3_f32 v{T0}, v{T0}, v{S[X]+i}, v{S[X]+i+1}"]
        FB += [f"v_mov_b32 v{T1}, v{T0}", "s_nop 1", f"v_permlane32_swap_b32 v{T0}, v{T1}", f"v_max_f32 v{T0}, v{T0}, v{T1}",
               f"v_sub_f32 v{AL}, v{M[X]}, v{T0}", f"v_exp_f32 v{AL}, v{AL}", f"v_mov_b32 v{M[X]}, v{T0}",
               f"v_mul_f32 v{L[X]}, v{L[X]}, v{AL}"]
        for i in range(16):
            FB += [f"v_sub_f32 v{S[X]+i}, v{S[X]+i}, v{T0}", f"v_exp_f32 v{S[X]+i}, v{S[X]+i}", f"v_mul_f32 v{O[X]+i}, v{O[X]+i}, v{AL}"]
        for j in range(8):
            FB += [f"v_cvt_pk_bf16_f32 v{Pk[X]+j}, v{S[X]+2*j}, v{S[X]+2*j+1}",
                   f"v_lshlrev_b32 v{T1}, 16, v{Pk[X]+j}", f"v_and_b32 v{T2}, 0xffff0000, v{Pk[X]+j}",
                   f"v_add_f32 v{L[X]}, v{L[X]}, v{T1}", f"v_add_f32 v{L[X]}, v{L[X]}, v{T2}"]
        FB += ["s_nop 1", mfma32(O[X], VF[0], Pk[X]), mfma32(O[X], VF[0] + 4, Pk[X] + 4)]
    FB += ["s_nop 15", "s_add_u32 s46, s46, 2048", "s_add_u32 s47, s47, 2048", "s_add_u32 s52, s52, 1", "s_cmp_lt_u32 s52, 64",
           f"s_cbranch_scc1 {N}_fbloop"]
    FE = []
    for X in "AB":
        FE += [f"v_mov_b32 v{T1}, v{L[X]}", "s_nop 1", f"v_permlane32_swap_b32 v{L[X]}, v{T1}", f"v_add_f32 v{L[X]}, v{L[X]}, v{T1}"]
    FE += [f"s_branch {N}_final"]
    text = (header(N) if not merged else []) + P + [f"{N}_loop:"] + B + tail + E + E2 + F + [f"{N}_fbloop:"] + FB + FE
    errs = check_trace(P + B + tail + B + tail + E + E2, N)
    errs += check_trace(P + B + tail + E + F + FB + FB + FE + E2, N + "_fb")
    return N, text, desc(N, 192), errs, (256, 256, NST * STG)


def mix(rd, dd):
    out = []
    for i, r in enumerate(rd):
        if i < len(dd): out += [dd[i][0], r, dd[i][1]] if dd[i][0] else [r, dd[i][1]]
        else: out += [r]
    for j in range(len(rd), len(dd)):
        out += ([dd[j][0], "s_nop 0"] if dd[j][0] else []) + [dd[j][1]]
    return out

def kloop(N, nkt, nst, ndma, dma, dma_adv, reads, mfmas, rd_adv, cnt_sreg, npre=1):
    pre = [f"s_waitcnt vmcnt({ndma*(nst-2)})", "s_barrier"] + reads(0, 0) + [f"s_mov_b32 s{cnt_sreg}, 0"]
    def body(do_dma, last, inflight):
        o = []
        d = dma() if do_dma else []
        h = (len(d) + 1) // 2
        o += ["s_waitcnt lgkmcnt(0)"]
        o += spread(mfmas(0), mix(reads(1, 1), d[:h]))
        o += ["s_waitcnt lgkmcnt(0)"]
        o += spread(mfmas(1), mix(reads(0, 2), d[h:]) + (dma_adv() if do_dma else []))
        o += ["s_waitcnt lgkmcnt(0)"]
        o += spread(mfmas(0), reads(1, 3) + ([] if last else rd_adv()))
        o += ["s_waitcnt lgkmcnt(0)"]
        m = mfmas(1)
        if last:
            o += m
        else:
            o += m[:npre] + [f"s_waitcnt vmcnt({inflight*ndma})", "s_barrier"] + spread(m[npre:], reads(0, 0))
        return o
    nmain = nkt - (nst - 1)
    B = body(True, False, nst - 2)
    tail = [f"s_add_u32 s{cnt_sreg}, s{cnt_sreg}, 1", f"s_cmp_lt_u32 s{cnt_sreg}, {nmain}", f"s_cbranch_scc1 {N}_loop"]
    rest = []
    for i in range(nst - 1):
        last = (i == nst - 2)
        rest += body(False, last, nst - 3 - i if not last else 0)
    text = [f"{N}_loop:"] + B + tail + rest
    trace = B + tail + B + tail + rest
    return pre, text, trace

def gen_ygemm(merged=False):
    N = "ygemm_kernel" if not merged else "mix_kernel_y"
    NST = 4; STG = 32768; L_B = 16384
    LB0 = 32768 if merged else 0
    ACC = 64
    def acc(i, j): return ACC + (i * 2 + j) * 16
    def fr(s, i): return 32 + s * 16 + i * 4
    VL16 = 1; VB = [2, 3, 4, 5]; AA0 = 6; BA0 = [7, 8, 9, 10]; AA = 11; BA = [12, 13, 14, 15]
    T0, T1, T2, T3 = 16, 17, 18, 19
    P = []
    if not merged:
        P += ["s_cmp_ge_u32 s2, 256", f"s_cbranch_scc1 {N}_done"]
        P += ["v_lshrrev_b32 v1, 6, v0", "v_and_b32 v0, 63, v0", "v_readfirstlane_b32 s3, v1"]
    P += stamp(0)
    P += ["s_and_b32 s42, s2, 1",
          "s_load_dwordx4 s[4:7], s[0:1], 8", "s_load_dwordx2 s[40:41], s[0:1], 88"]
    P += ["s_bfe_u32 s44, s2, 0x10001", "s_lshl_b32 s44, s44, 2", "s_bfe_u32 s45, s2, 0x20003", "s_add_u32 s44, s44, s45",
          "s_bfe_u32 s45, s2, 0x10002", "s_lshl_b32 s45, s45, 3", "s_lshr_b32 s46, s2, 5", "s_add_u32 s45, s45, s46"]
    P += [f"v_lshlrev_b32 v{VL16}, 4, v0"]
    P += [f"v_lshrrev_b32 v{T0}, 3, v0", f"v_and_b32 v{T1}, 7, v0", f"v_lshrrev_b32 v{T2}, 4, v0",
          "s_lshl_b32 s46, s45, 7", "s_lshl_b32 s47, s3, 5", "s_add_u32 s46, s46, s47",
          f"v_add_u32 v{T3}, s46, v{T0}", f"v_lshlrev_b32 v{T3}, 12, v{T3}",
          f"v_xor_b32 v{VB[0]}, v{T1}, v{T2}", f"v_lshlrev_b32 v{VB[0]}, 4, v{VB[0]}", f"v_add_u32 v{VB[0]}, v{VB[0]}, v{T3}"]
    for q in range(1, 4):
        if q % 2: P += [f"v_xor_b32 v{VB[q]}, 64, v{VB[0]}", f"v_add_u32 v{VB[q]}, {q*8*4096}, v{VB[q]}"]
        else: P += [f"v_add_u32 v{VB[q]}, {q*8*4096}, v{VB[0]}"]
    P += ["s_and_b32 s46, s3, 1", "s_lshl_b32 s46, s46, 13", f"s_add_u32 s46, s46, {LB0}", f"v_add_u32 v{AA0}, s46, v{VL16}",
          "s_lshr_b32 s46, s3, 1", "s_lshl_b32 s46, s46, 13", f"s_add_u32 s46, s46, {L_B + LB0}"]
    P += [f"v_lshrrev_b32 v{T0}, 5, v0", f"v_lshrrev_b32 v{T1}, 1, v0", f"v_and_b32 v{T1}, 7, v{T1}",
          f"v_xor_b32 v{T0}, v{T0}, v{T1}", f"v_and_b32 v{T1}, 31, v0", f"v_lshlrev_b32 v{T1}, 7, v{T1}",
          f"v_add_u32 v{T1}, s46, v{T1}"]
    for ks in range(4):
        P += [f"v_xor_b32 v{T2}, {2*ks}, v{T0}", f"v_lshlrev_b32 v{T2}, 4, v{T2}", f"v_add_u32 v{BA0[ks]}, v{T2}, v{T1}",
              f"v_mov_b32 v{BA[ks]}, v{BA0[ks]}"]
    P += [f"v_mov_b32 v{AA}, v{AA0}"]
    P += ["s_waitcnt lgkmcnt(0)", "s_cmp_eq_u32 s42, 0", "s_cselect_b32 s4, s4, s6", "s_cselect_b32 s5, s5, s7"] + srd(8, 4, 5, 8 * MB) + srd(24, 40, 41, WS_SIZE)
    P += ["s_lshl_b32 s47, s44, 2", "s_add_u32 s47, s47, s3", "s_lshl_b32 s47, s47, 17",
          f"s_mul_i32 s46, s42, {4*MB}", "s_add_u32 s47, s47, s46",
          "s_mov_b32 s48, 0", "s_lshl_b32 s50, s3, 12", "s_mov_b32 s49, s50", "s_mov_b32 s51, 0", "s_mov_b32 s57, s47"]
    if "rot" in EXP:
        P += ["s_lshr_b32 s48, s2, 5", "s_lshl_b32 s48, s48, 2", "s_bfe_u32 s56, s2, 0x20003", "s_lshl_b32 s56, s56, 3",
              "s_add_u32 s48, s48, s56", "s_and_b32 s48, s48, 31", "s_lshl_b32 s48, s48, 7",
              "s_lshl_b32 s56, s48, 5", "s_add_u32 s47, s57, s56"]
    def dma():
        o = [[f"s_add_u32 m0, s49, {LB0}", f"buffer_load_dwordx4 v{VL16}, s[24:27], s47 offen lds"]]
        for u in range(1, 4):
            o.append([None, f"buffer_load_dwordx4 v{VL16}, s[24:27], s47 offen offset:{1024*u} lds"])
        for q in range(4):
            o.append([f"s_add_u32 m0, s49, {LB0 + L_B + 1024*q}", f"buffer_load_dwordx4 v{VB[q]}, s[8:11], s48 offen lds"])
        return o
    def dma_adv():
        return ["s_add_u32 s48, s48, 128", "s_and_b32 s48, s48, 0xfff", "s_lshl_b32 s56, s48, 5", "s_add_u32 s47, s57, s56",
                f"s_add_u32 s49, s49, {STG}", f"s_and_b32 s49, s49, {NST*STG-1}"]
    for t in range(NST - 1):
        P += mix([], dma()) + dma_adv()
    for r in range(ACC, ACC + 64): P += [f"v_mov_b32 v{r}, 0"]
    def reads(s_, ks):
        return [f"ds_read_b128 {vr(fr(s_,0),4)}, v{AA} offset:{ks*1024}",
                f"ds_read_b128 {vr(fr(s_,2),4)}, v{BA[ks]}",
                f"ds_read_b128 {vr(fr(s_,3),4)}, v{BA[ks]} offset:4096",
                f"ds_read_b128 {vr(fr(s_,1),4)}, v{AA} offset:{4096+ks*1024}"]
    def mfmas(s_):
        if "y16" in EXP:
            o = []
            for (i, j) in ((0, 0), (0, 1), (1, 0), (1, 1)):
                o += [mfma16(acc(i, j) + 8 * s_, fr(s_, i), fr(s_, 2 + j)), mfma16(acc(i, j) + 8 * s_ + 4, fr(s_, i), fr(s_, 2 + j))]
            return o
        return [mfma32(acc(0, 0), fr(s_, 0), fr(s_, 2)), mfma32(acc(0, 1), fr(s_, 0), fr(s_, 3)),
                mfma32(acc(1, 0), fr(s_, 1), fr(s_, 2)), mfma32(acc(1, 1), fr(s_, 1), fr(s_, 3))]
    def rd_adv():
        o = [f"s_add_u32 s51, s51, {STG}", f"s_and_b32 s51, s51, {NST*STG-1}", f"v_add_u32 v{AA}, s51, v{AA0}"]
        for i in range(4): o += [f"v_add_u32 v{BA[i]}, s51, v{BA0[i]}"]
        return o
    P += stamp(1)
    pre, ktext, ktrace = kloop(N, 32, NST, 8, dma, dma_adv, reads, mfmas, rd_adv, 52)
    E = ["s_nop 15"] + stamp(2)
    E += ["s_lshl_b32 s46, s44, 2", "s_and_b32 s47, s3, 1", "s_lshl_b32 s47, s47, 1", "s_add_u32 s46, s46, s47", "s_lshl_b32 s46, s46, 17",
          "s_lshl_b32 s47, s45, 2", "s_lshr_b32 s48, s3, 1", "s_lshl_b32 s48, s48, 1", "s_add_u32 s47, s47, s48", "s_lshl_b32 s47, s47, 11",
          "s_add_u32 s46, s46, s47", f"s_mul_i32 s47, s42, {4*MB}", "s_add_u32 s46, s46, s47", f"s_add_u32 s46, s46, {WS_Y1}"]
    pk = 32
    for i in range(2):
        for j in range(2):
            a = acc(i, j)
            for r in range(8): E += [f"v_cvt_pk_bf16_f32 v{pk+r}, v{a+2*r}, v{a+2*r+1}"]
            for t in range(2):
                E += [f"buffer_store_dwordx4 {vr(pk+4*t,4)}, v{VL16}, s[24:27], s46 offen offset:{j*2048+t*1024}"]
            pk = 32 + (pk - 32 + 8) % 32
        E += ["s_add_u32 s46, s46, 131072"]
    E += stamp(3) + ["s_waitcnt vmcnt(0)"] * STAMPS + stamp(4) + stamp_dump(5, 9, 2, 128 if merged else 0)
    E += [f"{N}_done:", "s_endpgm"]
    text = (header(N) if not merged else []) + P + pre + ktext + E
    errs = check_trace(P + pre + ktrace + E, N)
    return N, text, desc(N, 128), errs, (256, 256, NST * STG)

def gen_mix():
    N = "mix_kernel"
    _, ta, _, ea, _ = gen_attn(True)
    _, ty, _, ey, _ = gen_ygemm(True)
    H = header(N) + ["s_cmp_ge_u32 s2, 256", "s_cbranch_scc1 mix_kernel_a_done",
         "v_lshrrev_b32 v1, 6, v0", "v_and_b32 v0, 63, v0", "v_readfirstlane_b32 s3, v1", "s_nop 3",
         "s_cmp_ge_u32 s3, 4", "s_cbranch_scc1 mix_kernel_ystart"]
    text = H + ta + ["mix_kernel_ystart:", "s_sub_u32 s3, s3, 4"] + ty
    return N, text, desc(N, 192), ea + ey, (256, 512, 163840)

def gen_out():
    N = "out_kernel"
    NST = 6 if "o6" in EXP else 4; STG = 24576; L_B = 8192
    ACC = 64
    def acc(i): return ACC + i * 16
    def fr(s, i): return 32 + s * 12 + i * 4
    VL16 = 1; VW = [2, 3]; WA0 = 4; BA0 = 5; WA = 6; BA = 7; VG = 8; VO = 9
    T0, T1, T2, T3 = 16, 17, 18, 19
    Y = 96
    P = ["s_cmp_ge_u32 s2, 256", f"s_cbranch_scc1 {N}_done"]
    P += stamp(0)
    P += ["s_load_dwordx2 s[4:5], s[0:1], 56", "s_load_dwordx2 s[6:7], s[0:1], 72", "s_load_dwordx2 s[40:41], s[0:1], 88"]
    P += ["v_lshrrev_b32 v1, 6, v0", "v_and_b32 v0, 63, v0", "v_readfirstlane_b32 s3, v1"]
    P += ["s_and_b32 s45, s2, 3", "s_lshl_b32 s45, s45, 2", "s_bfe_u32 s46, s2, 0x20003", "s_add_u32 s45, s45, s46",
          "s_bfe_u32 s44, s2, 0x10002", "s_lshl_b32 s44, s44, 3", "s_lshr_b32 s46, s2, 5", "s_add_u32 s44, s44, s46",
          "s_lshl_b32 s43, s45, 2", "s_add_u32 s43, s43, s3"]
    P += [f"v_lshlrev_b32 v{VL16}, 4, v0"]
    P += [f"v_lshrrev_b32 v{T3}, 2, v0", "s_lshl_b32 s46, s3, 4", f"v_add_u32 v{T3}, s46, v{T3}", f"v_lshlrev_b32 v{T3}, 11, v{T3}",
          f"v_and_b32 v{VW[0]}, 3, v0", f"v_lshlrev_b32 v{VW[0]}, 4, v{VW[0]}", f"v_add_u32 v{VW[0]}, v{VW[0]}, v{T3}",
          "s_lshl_b32 s46, s44, 7", f"v_add_u32 v{VW[0]}, s46, v{VW[0]}", f"v_add_u32 v{VW[1]}, 64, v{VW[0]}"]
    P += [f"v_lshrrev_b32 v{T0}, 5, v0", f"v_lshlrev_b32 v{T0}, 2, v{T0}", f"v_bfe_u32 v{T1}, v0, 2, 2",
          f"v_add_u32 v{T0}, v{T0}, v{T1}", f"v_lshlrev_b32 v{T0}, 6, v{T0}",
          f"v_bfe_u32 v{T1}, v0, 4, 1", f"v_lshlrev_b32 v{T1}, 5, v{T1}", f"v_add_u32 v{T0}, v{T0}, v{T1}",
          f"v_and_b32 v{T1}, 3, v0", f"v_lshlrev_b32 v{T1}, 3, v{T1}", f"v_add_u32 v{WA0}, v{T0}, v{T1}",
          "s_lshl_b32 s50, s3, 12", f"s_add_u32 s46, s50, {L_B}", f"v_add_u32 v{BA0}, s46, v{VL16}",
          f"v_mov_b32 v{WA}, v{WA0}", f"v_mov_b32 v{BA}, v{BA0}"]
    P += [f"v_and_b32 v{T0}, 31, v0", "s_lshl_b32 s46, s43, 5", f"v_add_u32 v{T1}, s46, v{T0}", f"v_lshlrev_b32 v{VO}, 11, v{T1}",
          f"v_lshrrev_b32 v{T2}, 5, v0", f"v_lshlrev_b32 v{T2}, 4, v{T2}", f"v_add_u32 v{VO}, v{VO}, v{T2}",
          "s_lshl_b32 s46, s44, 7", f"v_add_u32 v{VO}, s46, v{VO}", f"v_lshlrev_b32 v{T1}, 2, v{T1}"]
    P += ["s_waitcnt lgkmcnt(0)"] + stamp(5) + srd(8, 4, 5, 2 * MB) + srd(12, 6, 7, 4 * MB) + srd(24, 40, 41, WS_SIZE)
    P += ["s_lshl_b32 s47, s43, 16", f"s_add_u32 s47, s47, {WS_O}", "s_mov_b32 s48, 0", "s_mov_b32 s49, 0",
          "s_lshl_b32 s53, s3, 10", "s_mov_b32 s51, 0"]
    def dma():
        o = [["s_add_u32 m0, s49, s53", f"buffer_load_dwordx4 v{VW[0]}, s[8:11], s48 offen lds"],
             ["s_add_u32 m0, m0, 4096", f"buffer_load_dwordx4 v{VW[1]}, s[8:11], s48 offen lds"],
             ["s_add_u32 m0, s49, s54", f"buffer_load_dwordx4 v{VL16}, s[24:27], s47 offen lds"]]
        for u in range(1, 4):
            o.append([None, f"buffer_load_dwordx4 v{VL16}, s[24:27], s47 offen offset:{1024*u} lds"])
        if "nowo" in EXP:
            o[0][1] = f"buffer_load_dwordx4 v{VL16}, s[24:27], s47 offen lds"
            o[1][1] = f"buffer_load_dwordx4 v{VL16}, s[24:27], s47 offen lds"
        if "noo" in EXP:
            for u in range(2, 6): o[u][1] = f"buffer_load_dwordx4 v{VW[0]}, s[8:11], s48 offen lds"
        return o
    def dma_adv():
        if "norot3" not in EXP:
            return ["s_add_u32 s56, s56, 4096", "s_and_b32 s56, s56, 0xffff", "s_add_u32 s47, s57, s56", "s_lshl_b32 s48, s56, 5",
                    f"s_add_u32 s49, s49, {STG}", f"s_cmp_ge_u32 s49, {NST*STG}", "s_cselect_b32 s49, 0, s49"]
        return ["s_add_u32 s47, s47, 4096", f"s_add_u32 s48, s48, {64*2048}", f"s_add_u32 s49, s49, {STG}",
                f"s_cmp_ge_u32 s49, {NST*STG}", "s_cselect_b32 s49, 0, s49"]
    P += [f"s_add_u32 s54, s50, {L_B}"]
    if "norot3" not in EXP:
        P += ["s_lshr_b32 s56, s2, 5", "s_lshl_b32 s56, s56, 1", "s_bfe_u32 s57, s2, 0x20003", "s_lshl_b32 s57, s57, 2",
              "s_add_u32 s56, s56, s57", "s_and_b32 s56, s56, 15", "s_lshl_b32 s56, s56, 12",
              "s_mov_b32 s57, s47", "s_add_u32 s47, s57, s56", "s_lshl_b32 s48, s56, 5"]
    YL = []
    YL += ["s_lshl_b32 s46, s44, 18", "s_lshl_b32 s55, s43, 11", "s_add_u32 s46, s46, s55", f"s_add_u32 s46, s46, {WS_Y1}"]
    for i in range(2):
        for p in range(2):
            YL += [f"s_add_u32 s55, s46, {i*131072 + p*4*MB}"]
            for t in range(2):
                YL += [f"buffer_load_dwordx4 {vr(Y+(i*2+p)*8+4*t,4)}, v{VL16}, s[24:27], s55 offen offset:{1024*t}"]
    YL += [f"s_mov_b32 s55, {WS_G}", f"buffer_load_dword v{VG}, v{T1}, s[24:27], s55 offen"]
    if "ylate" not in EXP: P += YL
    P += stamp(6)
    for t in range(NST - 1):
        P += mix([], dma()) + dma_adv()
    P += stamp(7)
    if "ylate" in EXP: P += YL
    for r in range(ACC, ACC + 32): P += [f"v_mov_b32 v{r}, 0"]
    def reads(s_, ks):
        return [f"ds_read_b128 {vr(fr(s_,2),4)}, v{BA} offset:{ks*1024}",
                f"ds_read_b64_tr_b16 {vr(fr(s_,0),2)}, v{WA} offset:{ks*1024}",
                f"ds_read_b64_tr_b16 {vr(fr(s_,0)+2,2)}, v{WA} offset:{ks*1024+512}",
                f"ds_read_b64_tr_b16 {vr(fr(s_,1),2)}, v{WA} offset:{4096+ks*1024}",
                f"ds_read_b64_tr_b16 {vr(fr(s_,1)+2,2)}, v{WA} offset:{4096+ks*1024+512}"]
    def mfmas(s_):
        if "nomf" in EXP: return ["s_nop 0", "s_nop 0"]
        return [mfma32(acc(0), fr(s_, 0), fr(s_, 2)), mfma32(acc(1), fr(s_, 1), fr(s_, 2))]
    def rd_adv():
        return [f"s_add_u32 s51, s51, {STG}", f"s_cmp_ge_u32 s51, {NST*STG}", "s_cselect_b32 s51, 0, s51",
                f"v_add_u32 v{WA}, s51, v{WA0}", f"v_add_u32 v{BA}, s51, v{BA0}"]
    P += stamp(1)
    pre, ktext, ktrace = kloop(N, 16, NST, 6, dma, dma_adv, reads, mfmas, rd_adv, 52)
    E = ["s_nop 15"] + stamp(2)
    pk = 32
    for i in range(2):
        a = acc(i)
        for r in range(8):
            y1 = Y + (i * 2) * 8 + r; y2 = Y + (i * 2 + 1) * 8 + r
            E += [f"v_lshlrev_b32 v{T0}, 16, v{y1}", f"v_lshlrev_b32 v{T1}, 16, v{y2}", f"v_sub_f32 v{T0}, v{T0}, v{T1}",
                  f"v_and_b32 v{T2}, 0xffff0000, v{y1}", f"v_and_b32 v{T3}, 0xffff0000, v{y2}", f"v_sub_f32 v{T2}, v{T2}, v{T3}",
                  f"v_fmac_f32 v{a+2*r}, v{VG}, v{T0}", f"v_fmac_f32 v{a+2*r+1}, v{VG}, v{T2}",
                  f"v_cvt_pk_bf16_f32 v{pk+r}, v{a+2*r}, v{a+2*r+1}"]
        E += ["s_nop 1"]
        for t in range(2):
            E += [f"v_permlane32_swap_b32 v{pk+4*t}, v{pk+4*t+2}", f"v_permlane32_swap_b32 v{pk+4*t+1}, v{pk+4*t+3}"]
        for t in range(2):
            E += [f"buffer_store_dwordx4 {vr(pk+4*t,4)}, v{VO}, s[12:15], 0 offen offset:{i*64+t*32}"]
        pk += 8
    E += stamp(3) + ["s_waitcnt vmcnt(0)"] * STAMPS + stamp(4) + stamp_dump(8, 9, 3)
    E += [f"{N}_done:", "s_endpgm"]
    text = header(N) + P + pre + ktext + E
    errs = check_trace(P + pre + ktrace + E, N)
    return N, text, desc(N, 128), errs, (256, 256, NST * STG)

def build(kernels, path):
    hdr = open("gated_mix__spectral_fnet__softmax_full_mha__prompt.s.ref").read().split("; Override launch")[0]
    out = hdr
    for (N, text, d, errs, (g, b, lds)) in kernels:
        out += f"; @launch kernel={N} grid=({g},1,1) block=({b},1,1) lds={lds}\n"
    out += '.amdgcn_target "amdgcn-amd-amdhsa--gfx950"\n.text\n'
    seen = set()
    for (N, text, d, errs, _) in kernels:
        if N in seen: continue
        seen.add(N)
        for e in errs: print("HAZARD", e)
        for l in text:
            out += (l if (l.endswith(":") or l.startswith(".")) else "    " + l) + "\n"
    out += '.section .rodata,"a"\n'
    seen = set()
    for (N, text, d, errs, _) in kernels:
        if N in seen: continue
        seen.add(N)
        out += d
    open(path, "w").write(out)

if __name__ == "__main__":
    if len(sys.argv) > 2 and sys.argv[2] == "stamps": STAMPS = True
    for a in sys.argv[3:]: EXP.add(a)
    ks = [gen_proj(), gen_mix(), gen_out()]
    build(ks, sys.argv[1] if len(sys.argv) > 1 else "k.s")
```

```python
import sys, struct
from asmlib import *

MB = 1 << 20
WS_AT, WS_BT, WS_Q, WS_K, WS_V, WS_O, WS_Y1, WS_Y2, WS_G = [i * 4 * MB for i in range(9)]
WS_SIZE = 40 * MB
LOG2E = 1.4426950408889634
QSCALE = (32 ** -0.5) * LOG2E

def f32bits(x):
    return struct.unpack("<I", struct.pack("<f", x))[0]

def srd(base, lo, hi, size):
    return [f"s_mov_b32 s{base}, s{lo}", f"s_mov_b32 s{base+1}, s{hi}",
            f"s_mov_b32 s{base+2}, {size}", f"s_mov_b32 s{base+3}, 0x00020000"]

def desc(name, nv, ns=102):
    acc = (nv + 3) // 4 * 4
    return f"""
.p2align 6
.amdhsa_kernel {name}
  .amdhsa_next_free_vgpr {nv}
  .amdhsa_next_free_sgpr {ns}
  .amdhsa_accum_offset {acc}
  .amdhsa_group_segment_fixed_size 0
  .amdhsa_kernarg_size 96
  .amdhsa_user_sgpr_count 2
  .amdhsa_user_sgpr_kernarg_segment_ptr 1
  .amdhsa_system_sgpr_workgroup_id_x 1
.end_amdhsa_kernel
"""

def mfma32(d, a, b, c=None):
    cs = vr(d, 16) if c is None else (str(c) if isinstance(c, str) else vr(c, 16))
    return f"v_mfma_f32_32x32x16_bf16 {vr(d,16)}, {vr(a,4)}, {vr(b,4)}, {cs}"
def mfma16(d, a, b):
    return f"v_mfma_f32_16x16x32_bf16 {vr(d,4)}, {vr(a,4)}, {vr(b,4)}, {vr(d,4)}"

STAMPS = False
EXP = set()
def stamp(i):
    if not STAMPS: return []
    return ([f"s_memrealtime s[68:69]"] if i == 0 else [f"s_memrealtime s[100:101]"]) + [f"s_memtime s[{70+2*i}:{71+2*i}]", "s_waitcnt lgkmcnt(0)"] + ([] if i == 0 else [f"s_sub_u32 s{71+2*i}, s100, s68"])
def stamp_dump(n, wgsel=0, slot=0, dbgoff=0):
    if not STAMPS: return []
    o = ["s_load_dwordx2 s[90:91], s[0:1], 80", "s_waitcnt lgkmcnt(0)",
         "s_mov_b32 s92, s90", "s_mov_b32 s93, s91", "s_mov_b32 s94, 256", "s_mov_b32 s95, 0x00020000",
         "s_mov_b64 exec, 1", f"s_mov_b32 s96, {dbgoff}", "s_cmp_lg_u32 s3, 0", "s_cselect_b32 s96, 0x1000, s96"]
    o += [f"s_cmp_lg_u32 s2, {wgsel}", "s_cselect_b32 s96, 0x1000, s96"]
    o += ["s_memrealtime s[98:99]", "s_load_dwordx2 s[60:61], s[0:1], 88", "s_waitcnt lgkmcnt(0)",
          "s_mov_b32 s62, 0x10000000", "s_mov_b32 s63, 0x00020000",
          "s_lshl_b32 s97, s2, 4", f"s_add_u32 s97, s97, {64*MB + slot*65536}",
          "v_mov_b32 v4, s68", "v_mov_b32 v5, s69", "v_mov_b32 v6, s98", "v_mov_b32 v7, s99", "v_mov_b32 v2, 0",
          "buffer_store_dwordx4 v[4:7], v2, s[60:63], s97 offen"]
    for i in range(n):
        o += [f"s_sub_u32 s97, s{70+2*i}, s70", "v_mov_b32 v1, s97", f"v_mov_b32 v2, {4*i}",
              "buffer_store_dword v1, v2, s[92:95], s96 offen"]
    o += ["s_cmp_lg_u32 s3, 0", "s_cselect_b32 s96, 0x1000, s96"]
    for i in range(1, n):
        o += [f"v_mov_b32 v1, s{71+2*i}", f"v_mov_b32 v2, {4*i + 32}", "buffer_store_dword v1, v2, s[92:95], s96 offen"]
    return o

def header(name):
    return [f".globl {name}", ".p2align 8", f".type {name},@function", f"{name}:"]

def gen_proj():
    N = "proj_kernel"
    STG = 53248
    L_HR, L_HI, L_W = 32768, 36864, 40960
    ACC = 96
    def acc(b, c): return ACC + (b * 5 + c) * 16
    def fr(s, i): return 32 + s * 28 + i * 4
    VX = list(range(1, 9)); VH = 9; VW = [10, 88, 89]
    XA0 = [11, 12, 13, 14]; HA0 = [15, 16, 17, 18]; WA0 = 19
    XA = [20, 21, 22, 23]; HA = [24, 25, 26, 27]; WA = 28
    VL16 = 29
    VG = 90
    T0, T1, T2, T3 = 30, 31, 92, 93
    P = []
    P += [f"s_cmp_ge_u32 s2, 256", f"s_cbranch_scc1 {N}_done"]
    P += stamp(0)
    P += ["s_load_dwordx2 s[4:5], s[0:1], 0", "s_load_dwordx4 s[32:35], s[0:1], 24",
          "s_load_dwordx2 s[36:37], s[0:1], 48",
          "s_load_dwordx2 s[40:41], s[0:1], 88"]
    P += ["v_lshrrev_b32 v1, 6, v0", "v_and_b32 v0, 63, v0", "v_readfirstlane_b32 s3, v1"]
    P += ["s_and_b32 s42, s2, 7", "s_lshr_b32 s43, s2, 3",
          "s_and_b32 s44, s42, 1", "s_lshl_b32 s44, s44, 2", "s_and_b32 s45, s43, 3", "s_add_u32 s44, s44, s45",
          "s_lshr_b32 s42, s42, 1", "s_lshl_b32 s42, s42, 3", "s_lshr_b32 s43, s43, 2", "s_add_u32 s43, s43, s42"]
    P += ["s_mov_b32 s42, s44"]
    P += ["s_lshl_b32 s44, s42, 8", "s_lshl_b32 s45, s3, 6", "s_add_u32 s44, s44, s45",
          "s_lshl_b32 s50, s3, 13", "s_lshl_b32 s51, s3, 10"]
    P += [f"v_lshrrev_b32 v{T0}, 3, v0", f"v_and_b32 v{T1}, 7, v0", f"v_lshrrev_b32 v{T2}, 4, v0",
          f"v_lshlrev_b32 v{VL16}, 4, v0"]
    P += [f"v_add_u32 v{T3}, s44, v{T0}", f"v_lshlrev_b32 v{T3}, 11, v{T3}",
          f"v_xor_b32 v{VX[0]}, v{T1}, v{T2}", f"v_lshlrev_b32 v{VX[0]}, 4, v{VX[0]}",
          f"v_add_u32 v{VX[0]}, v{VX[0]}, v{T3}"]
    for q in range(1, 8):
        if q % 2 == 1:
            P += [f"v_xor_b32 v{VX[q]}, 64, v{VX[0]}", f"v_add_u32 v{VX[q]}, {q*8*2048}, v{VX[q]}"]
        else:
            P += [f"v_add_u32 v{VX[q]}, {q*8*2048}, v{VX[0]}"]
    P += ["s_lshl_b32 s45, s43, 5", "s_lshl_b32 s46, s3, 3", "s_add_u32 s45, s45, s46",
          f"v_add_u32 v{T3}, s45, v{T0}", f"v_lshlrev_b32 v{T3}, 11, v{T3}",
          "s_lshl_b32 s46, s3, 2", f"v_add_u32 v{VH}, s46, v{T2}", f"v_and_b32 v{VH}, 7, v{VH}",
          f"v_xor_b32 v{VH}, v{VH}, v{T1}", f"v_lshlrev_b32 v{VH}, 4, v{VH}", f"v_add_u32 v{VH}, v{VH}, v{T3}"]
    P += [f"v_lshrrev_b32 v{T3}, 2, v0", "s_lshl_b32 s46, s3, 4", f"v_add_u32 v{T3}, s46, v{T3}",
          "s_movk_i32 s46, 6144", f"v_mul_lo_u32 v{T3}, v{T3}, s46",
          f"v_and_b32 v{VW[0]}, 3, v0", f"v_lshlrev_b32 v{VW[0]}, 4, v{VW[0]}", f"v_add_u32 v{VW[0]}, v{VW[0]}, v{T3}",
          "s_lshl_b32 s46, s43, 6", f"v_add_u32 v{VW[0]}, s46, v{VW[0]}",
          f"v_add_u32 v{VW[1]}, 2048, v{VW[0]}", f"v_add_u32 v{VW[2]}, 4096, v{VW[0]}"]
    P += ["s_waitcnt lgkmcnt(0)"]
    P += srd(8, 4, 5, 4 * MB) + srd(12, 32, 33, 2 * MB) + srd(16, 34, 35, 2 * MB) + srd(20, 36, 37, 6 * MB)
    def dma():
        out = []
        for q in range(8):
            out.append([f"s_add_u32 m0, s53, {1024*q}", f"buffer_load_dwordx4 v{VX[q]}, s[8:11], s45 offen lds"])
        out.append([f"s_add_u32 m0, s54, {L_HR}", f"buffer_load_dwordx4 v{VH}, s[12:15], s45 offen lds"])
        out.append([f"s_add_u32 m0, s54, {L_HI}", f"buffer_load_dwordx4 v{VH}, s[16:19], s45 offen lds"])
        for c in range(3):
            out.append([f"s_add_u32 m0, s54, {L_W + 4096*c}", f"buffer_load_dwordx4 v{VW[c]}, s[20:23], s46 offen lds"])
        return out
    def dma_adv():
        return ["s_add_u32 s47, s47, %d" % STG, "s_cmp_ge_u32 s47, %d" % (3 * STG), "s_cselect_b32 s47, 0, s47",
                "s_add_u32 s53, s47, s50", "s_add_u32 s54, s47, s51",
                "s_add_u32 s45, s45, 128", "s_and_b32 s45, s45, 0x7ff", "s_mul_i32 s46, s45, 3072"]
    P += ["s_mov_b32 s47, 0", "s_mov_b32 s45, 0", "s_mov_b32 s46, 0", "s_mov_b32 s53, s50", "s_mov_b32 s54, s51"]
    for a_, b_ in dma():
        P += [a_, "s_nop 0", b_]
    P += dma_adv()
    P += stamp(1)
    F = []
    F += srd(24, 40, 41, WS_SIZE)
    F += [f"v_lshrrev_b32 v{T0}, 5, v0", f"v_lshrrev_b32 v{T1}, 1, v0", f"v_and_b32 v{T1}, 7, v{T1}",
          f"v_xor_b32 v{T0}, v{T0}, v{T1}",
          f"v_and_b32 v{T1}, 31, v0", f"v_lshlrev_b32 v{T1}, 7, v{T1}"]
    for ks in range(4):
        F += [f"v_xor_b32 v{T2}, {2*ks}, v{T0}", f"v_lshlrev_b32 v{T2}, 4, v{T2}", f"v_add_u32 v{T2}, v{T2}, v{T1}",
              f"v_add_u32 v{XA0[ks]}, s50, v{T2}", f"v_add_u32 v{HA0[ks]}, {L_HR}, v{T2}"]
    F += [f"v_lshrrev_b32 v{T0}, 5, v0", f"v_lshlrev_b32 v{T0}, 3, v{T0}", f"v_bfe_u32 v{T1}, v0, 2, 2",
          f"v_add_u32 v{T0}, v{T0}, v{T1}", f"v_lshlrev_b32 v{T0}, 6, v{T0}",
          f"v_bfe_u32 v{T1}, v0, 4, 1", f"v_lshlrev_b32 v{T1}, 5, v{T1}", f"v_add_u32 v{T0}, v{T0}, v{T1}",
          f"v_and_b32 v{T1}, 3, v0", f"v_lshlrev_b32 v{T1}, 3, v{T1}", f"v_add_u32 v{T0}, v{T0}, v{T1}",
          f"v_add_u32 v{WA0}, {L_W}, v{T0}"]
    for i in range(4):
        F += [f"v_mov_b32 v{XA[i]}, v{XA0[i]}", f"v_mov_b32 v{HA[i]}, v{HA0[i]}"]
    F += [f"v_mov_b32 v{WA}, v{WA0}", "s_mov_b32 s48, 0", "s_mov_b32 s49, 0"]
    for r in range(ACC, ACC + 160):
        F += [f"v_mov_b32 v{r}, 0"]
    d1 = dma()
    per = (len(F) + len(d1) - 1) // len(d1)
    for i, (a_, b_) in enumerate(d1):
        chunk = F[i * per:(i + 1) * per]
        P += [a_] + chunk[:1] + [b_] + chunk[1:]
    P += dma_adv()
    def reads(s, ks):
        return [f"ds_read_b128 {vr(fr(s,0),4)}, v{XA[ks]}",
                f"ds_read_b128 {vr(fr(s,2),4)}, v{HA[ks]}",
                f"ds_read_b128 {vr(fr(s,3),4)}, v{HA[ks]} offset:4096",
                f"ds_read_b64_tr_b16 {vr(fr(s,4),2)}, v{WA} offset:{ks*1024}",
                f"ds_read_b64_tr_b16 {vr(fr(s,4)+2,2)}, v{WA} offset:{ks*1024+256}",
                f"ds_read_b64_tr_b16 {vr(fr(s,5),2)}, v{WA} offset:{4096+ks*1024}",
                f"ds_read_b64_tr_b16 {vr(fr(s,5)+2,2)}, v{WA} offset:{4096+ks*1024+256}",
                f"ds_read_b64_tr_b16 {vr(fr(s,6),2)}, v{WA} offset:{8192+ks*1024}",
                f"ds_read_b64_tr_b16 {vr(fr(s,6)+2,2)}, v{WA} offset:{8192+ks*1024+256}",
                f"ds_read_b128 {vr(fr(s,1),4)}, v{XA[ks]} offset:4096"]
    def mfmas(s):
        out = []
        for b in range(2):
            X = fr(s, b)
            if "p16" in EXP:
                for c in range(5):
                    out += [mfma16(acc(b, c) + 8 * s, X, fr(s, 2 + c)), mfma16(acc(b, c) + 8 * s + 4, X, fr(s, 2 + c))]
                continue
            out += [mfma32(acc(b, 0), X, fr(s, 2)), mfma32(acc(b, 1), X, fr(s, 3)),
                    mfma32(acc(b, 2), fr(s, 4), X), mfma32(acc(b, 3), fr(s, 5), X),
                    mfma32(acc(b, 4), X, fr(s, 6))]
        return out
    def rd_adv():
        o = ["s_add_u32 s48, s48, %d" % STG, "s_cmp_ge_u32 s48, %d" % (3 * STG), "s_cselect_b32 s48, 0, s48"]
        for i in range(4):
            o += [f"v_add_u32 v{XA[i]}, s48, v{XA0[i]}", f"v_add_u32 v{HA[i]}, s48, v{HA0[i]}"]
        o += [f"v_add_u32 v{WA}, s48, v{WA0}"]
        return o
    P += stamp(2) + stamp(3)
    P += ["s_waitcnt vmcnt(13)", "s_barrier"] + stamp(4) + reads(0, 0)
    def body(do_dma, last):
        o = []
        d = dma() if do_dma else []
        def mix(rd, dd):
            out = []
            for i, r in enumerate(rd):
                if i < len(dd): out += [dd[i][0], r, dd[i][1]]
                else: out += [r]
            return out
        o += ["s_waitcnt lgkmcnt(0)"]
        o += spread(mfmas(0), mix(reads(1, 1), d[:7]))
        o += ["s_waitcnt lgkmcnt(0)"]
        o += spread(mfmas(1), mix(reads(0, 2), d[7:]) + (dma_adv() if do_dma else []))
        o += ["s_waitcnt lgkmcnt(0)"]
        o += spread(mfmas(0), reads(1, 3) + ([] if last else rd_adv()))
        o += ["s_waitcnt lgkmcnt(0)"]
        m = mfmas(1)
        if last:
            o += m
        else:
            o += m[:2] + [f"s_waitcnt vmcnt({13 if do_dma else 0})", "s_barrier"] + spread(m[2:], reads(0, 0))
        return o
    B = body(True, False)
    loop_tail = ["s_add_u32 s49, s49, 1", "s_cmp_lt_u32 s49, 14", f"s_cbranch_scc1 {N}_loop"]
    B14 = body(False, False)
    B15 = body(False, True)
    E = stamp(5)
    E += ["s_nop 7"]
    if "touch" in EXP:
        E += ["s_load_dwordx4 s[64:67], s[0:1], 8", "s_lshl_b32 s60, s2, 2", "s_add_u32 s60, s60, s3", "s_lshl_b32 s60, s60, 13",
              f"v_lshlrev_b32 v{T0}, 7, v0", "s_waitcnt lgkmcnt(0)"]
        E += srd(32, 64, 65, 8 * MB) + srd(36, 66, 67, 8 * MB)
        E += [f"buffer_load_dword v{T1}, v{T0}, s[32:35], s60 offen", f"buffer_load_dword v{T2}, v{T0}, s[36:39], s60 offen"]
    E += ["s_lshl_b32 s45, s43, 17", "s_lshl_b32 s46, s42, 14", "s_add_u32 s45, s45, s46",
          "s_lshl_b32 s46, s3, 12", "s_add_u32 s45, s45, s46", f"s_mov_b32 s57, {hex(f32bits(QSCALE))}"]
    pk = 32
    for c in range(5):
        for b in range(2):
            a = acc(b, c)
            if c == 2:
                for r in range(16):
                    E += [f"v_mul_f32 v{a+r}, s57, v{a+r}"]
            for r in range(8):
                E += [f"v_cvt_pk_bf16_f32 v{pk+r}, v{a+2*r}, v{a+2*r+1}"]
            if c < 2:
                E += ["s_nop 1"]
                for t in range(2):
                    E += [f"v_permlane32_swap_b32 v{pk+4*t}, v{pk+4*t+2}", f"v_permlane32_swap_b32 v{pk+4*t+1}, v{pk+4*t+3}"]
            for t in range(2):
                E += [f"buffer_store_dwordx4 {vr(pk+4*t,4)}, v{VL16}, s[24:27], s45 offen offset:{(2*b+t)*1024}"]
            pk = 32 + (pk - 32 + 8) % 56
        E += [f"s_add_u32 s45, s45, {4*MB}"]
    E += stamp(6) + ["s_waitcnt vmcnt(0)"] * STAMPS + stamp(7) + stamp_dump(8, 9)
    E += [f"{N}_done:", "s_endpgm"]
    text = header(N) + P + [f"{N}_loop:"] + B + loop_tail + B14 + B15 + E
    trace = P + B + loop_tail + B + loop_tail + B14 + B15 + E
    errs = check_trace(trace, N)
    return N, text, desc(N, 256), errs, (256, 256, 3 * STG)


ATT_OFF = 40.0
ATT_LMAX = 2.0 ** 60
def gen_attn(merged=False):
    N = "attn_kernel" if not merged else "mix_kernel_a"
    NST = 4; STG = 8192
    Q = {"A": 16, "B": 24}
    S = {"A": 32, "B": 48}
    Pk = {"A": 64, "B": 72}
    O = {"A": 80, "B": 96}
    L = {"A": 112, "B": 116}
    CN = {"A": 120, "B": 136}
    KF = [152, 160]
    VF = [168, 176]
    ONES = 184
    VL16 = 1; VRD = 2; VG = {"A": 3, "B": 4}; T0, T1, T2, T3 = 5, 6, 7, 8
    P = []
    if not merged:
        P += ["s_cmp_ge_u32 s2, 256", f"s_cbranch_scc1 {N}_done"]
        P += ["v_lshrrev_b32 v1, 6, v0", "v_and_b32 v0, 63, v0", "v_readfirstlane_b32 s3, v1"]
    P += stamp(0)
    P += ["s_load_dwordx2 s[40:41], s[0:1], 88", "s_load_dwordx2 s[4:5], s[0:1], 0", "s_load_dwordx2 s[38:39], s[0:1], 64"]
    P += ["s_and_b32 s42, s2, 7", "s_lshr_b32 s43, s2, 3", "s_lshl_b32 s42, s42, 2", "s_lshr_b32 s44, s43, 3",
          "s_add_u32 s42, s42, s44",
          "s_and_b32 s43, s43, 7",
          "s_lshl_b32 s43, s43, 3", "s_lshl_b32 s44, s3, 1", "s_add_u32 s43, s43, s44",
          "s_lshl_b32 s44, s42, 17"]
    P += [f"v_lshlrev_b32 v{VL16}, 4, v0"]
    P += ["s_waitcnt lgkmcnt(0)"] + srd(24, 40, 41, WS_SIZE) + srd(8, 4, 5, 4 * MB) + srd(28, 38, 39, 2048)
    P += ["s_lshl_b32 s45, s43, 11", "s_add_u32 s45, s45, s44", f"s_add_u32 s45, s45, {WS_Q}",
          f"s_add_u32 s46, s44, {WS_K}", f"s_add_u32 s47, s44, {WS_V}"]
    if "rot" in EXP: P += ["s_bfe_u32 s58, s2, 0x30003", "s_lshl_b32 s58, s58, 14"]
    else: P += ["s_mov_b32 s58, 0"]
    P += ["s_add_u32 s59, s46, s58"]
    for i in range(4):
        P += [f"buffer_load_dwordx4 {vr(16+4*i,4)}, v{VL16}, s[24:27], s45 offen offset:{1024*i}"]
    for i in range(4):
        P += [f"buffer_load_dwordx4 {vr(KF[0]+4*i,4)}, v{VL16}, s[24:27], s59 offen offset:{1024*i}"]
    P += ["s_lshl_b32 s51, s3, 10", "s_add_u32 s61, s58, s51", "s_add_u32 s60, s61, 2048", "s_and_b32 s60, s60, 0x1ffff",
          "s_add_u32 s48, s46, s60", "s_add_u32 s49, s47, s61", "s_mov_b32 s50, s51"]
    def dma():
        return [["s_mov_b32 m0, s50", f"buffer_load_dwordx4 v{VL16}, s[24:27], s48 offen lds"],
                ["s_add_u32 m0, s50, 4096", f"buffer_load_dwordx4 v{VL16}, s[24:27], s49 offen lds"]]
    def dma_adv():
        return ["s_add_u32 s60, s60, 4096", "s_and_b32 s60, s60, 0x1ffff", "s_add_u32 s61, s61, 4096", "s_and_b32 s61, s61, 0x1ffff",
                "s_add_u32 s48, s46, s60", "s_add_u32 s49, s47, s61", f"s_add_u32 s50, s50, {STG}",
                f"s_and_b32 s50, s50, {NST*STG-1}"]
    for t in range(NST - 1):
        for a, b in dma(): P += [a, "s_nop 0", b]
        P += dma_adv()
    GX = 192
    P += ["s_lshl_b32 s62, s2, 3", "s_lshl_b32 s45, s3, 1", "s_add_u32 s62, s62, s45", "s_lshl_b32 s45, s62, 11",
          f"v_lshlrev_b32 v{T0}, 5, v0"]
    P += [f"buffer_load_dwordx4 v[{GX}:{GX+3}], v{T0}, s[8:11], s45 offen",
          f"buffer_load_dwordx4 v[{GX+4}:{GX+7}], v{T0}, s[8:11], s45 offen offset:16",
          f"buffer_load_dwordx4 v[{GX+8}:{GX+11}], v{T0}, s[8:11], s45 offen offset:2048",
          f"buffer_load_dwordx4 v[{GX+12}:{GX+15}], v{T0}, s[8:11], s45 offen offset:2064",
          f"buffer_load_dwordx4 v[{GX+16}:{GX+19}], v{T0}, s[28:31], 0 offen",
          f"buffer_load_dwordx4 v[{GX+20}:{GX+23}], v{T0}, s[28:31], 0 offen offset:16"]
    for r in list(range(80, 120)) + list(range(Pk["B"], Pk["B"] + 8)) + list(range(VF[0], VF[0] + 16)):
        P += [f"v_mov_b32 v{r}, 0"]
    P += [f"v_bfe_u32 v{T0}, v0, 2, 1", f"v_bfe_u32 v{T1}, v0, 4, 1", f"v_cmp_eq_u32 vcc, v{T0}, v{T1}",
          f"v_mov_b32 v{T2}, 0x3f803f80", "s_nop 0", f"v_cndmask_b32 v{ONES}, 0, v{T2}, vcc"]
    for i in range(1, 4): P += [f"v_mov_b32 v{ONES+i}, v{ONES}"]
    P += [f"v_mov_b32 v{VRD}, v{VL16}", "s_mov_b32 s52, 0", "s_mov_b32 s53, 0", "s_mov_b32 s63, 0x3f803f80"]
    P += [f"s_waitcnt vmcnt({2*(NST-1)+6})"]
    for X in "AB":
        P += [mfma32(S[X], KF[0], Q[X], "0"), mfma32(S[X], KF[0] + 4, Q[X] + 4),
              mfma32(CN[X], KF[1], Q[X], "0"), mfma32(CN[X], KF[1] + 4, Q[X] + 4)]
    P += ["s_nop 15"]
    for X in "AB":
        m = T0 if X == "A" else T1
        P += [f"v_max3_f32 v{m}, v{S[X]}, v{S[X]+1}, v{S[X]+2}"]
        vals = [S[X] + i for i in range(3, 16)] + [CN[X] + i for i in range(16)]
        for i in range(0, 28, 2):
            P += [f"v_max3_f32 v{m}, v{m}, v{vals[i]}, v{vals[i+1]}"]
        P += [f"v_max_f32 v{m}, v{m}, v{vals[28]}"]
    P += [f"v_mov_b32 v{T2}, v{T0}", f"v_mov_b32 v{T3}, v{T1}", "s_nop 1",
          f"v_permlane32_swap_b32 v{T0}, v{T2}", f"v_permlane32_swap_b32 v{T1}, v{T3}",
          f"v_max_f32 v{T0}, v{T0}, v{T2}", f"v_max_f32 v{T1}, v{T1}, v{T3}",
          f"s_mov_b32 s54, {hex(f32bits(-ATT_OFF))}",
          f"v_sub_f32 v{T0}, s54, v{T0}", f"v_sub_f32 v{T1}, s54, v{T1}"]
    for i in range(16):
        P += [f"v_mov_b32 v{CN['A']+i}, v{T0}", f"v_mov_b32 v{CN['B']+i}, v{T1}"]
    P += ["s_nop 1", mfma32(S["A"], KF[0], Q["A"], CN["A"]), mfma32(S["A"], KF[0] + 4, Q["A"] + 4)]
    P += stamp(1)
    def slot(X, kset_qk, vset_pv, rd):
        Y = "B" if X == "A" else "A"
        mf = [mfma32(S[Y], KF[kset_qk], Q[Y], CN[Y]), mfma32(S[Y], KF[kset_qk] + 4, Q[Y] + 4),
              mfma32(O[Y], VF[vset_pv], Pk[Y]), mfma16(L[Y], ONES, Pk[Y]),
              mfma32(O[Y], VF[vset_pv] + 4, Pk[Y] + 4), mfma16(L[Y], ONES, Pk[Y] + 4)]
        if "a16" in EXP:
            def two(d, a, b): return [mfma16(d, a, b), mfma16(d + 4, a, b)]
            def twoc(d, a, b, c): return [f"v_mfma_f32_16x16x32_bf16 {vr(d,4)}, {vr(a,4)}, {vr(b,4)}, {vr(c,4)}", f"v_mfma_f32_16x16x32_bf16 {vr(d+4,4)}, {vr(a,4)}, {vr(b+4,4)}, {vr(c,4)}"]
            mf = [twoc(S[Y], KF[kset_qk], Q[Y], CN[Y]), twoc(S[Y] + 8, KF[kset_qk] + 4, Q[Y], CN[Y]),
                  two(O[Y], VF[vset_pv], Pk[Y]), [mfma16(L[Y], ONES, Pk[Y])],
                  two(O[Y] + 8, VF[vset_pv] + 4, Pk[Y] + 4), [mfma16(L[Y], ONES, Pk[Y] + 4)]]
        e = [f"v_exp_f32 v{S[X]+i}, v{S[X]+i}" for i in range(16)]
        if "noexp" in EXP: e = [f"v_mov_b32 v{S[X]+i}, v{S[X]+i}" for i in range(16)]
        c = [f"v_cvt_pk_bf16_f32 v{Pk[X]+j}, v{S[X]+2*j}, v{S[X]+2*j+1}" for j in range(8)]
        va = e[0:3] + [c[0]] + e[3:5] + [c[1]] + e[5:7] + [c[2]] + e[7:9] + [c[3]] + e[9:11] + [c[4]] + e[11:13] + [c[5]] + e[13:16] + [c[6], c[7]]
        o = []
        if "ldot" in EXP:
            mf = [mf[0], mf[1], mf[2], mf[4]]
            dots = [f"v_dot2c_f32_bf16 v{L[Y]+(j%4)}, s63, v{Pk[Y]+j}" for j in range(8)]
            for i in range(4):
                o += [mf[i]]
                if i < 2: o += rd[2*i:2*i+2]
                o += va[6*i:6*i+3] + dots[2*i:2*i+1] + va[6*i+3:6*i+6] + dots[2*i+1:2*i+2]
            return o
        if "ladd" in EXP:
            mf = [mf[0], mf[1], mf[2], mf[4]]
            adds = [f"v_add_f32 v{L[X]+(i%4)}, v{L[X]+(i%4)}, v{S[X]+i}" for i in range(16)]
            va2 = []
            ai = 0
            for k_, ins in enumerate(va):
                va2.append(ins)
                if ins.startswith("v_cvt"):
                    va2 += adds[ai:ai+2]; ai += 2
            for i in range(4):
                o += [mf[i]]
                if i < 2: o += rd[2*i:2*i+2]
                o += va2[10*i:10*i+10]
            return o
        for i in range(6):
            if isinstance(mf[i], list):
                o += [mf[i][0]] + va[4*i:4*i+2]
                if len(mf[i]) > 1: o += [mf[i][1]]
                if i < 2: o += rd[2*i:2*i+2]
                o += va[4*i+2:4*i+4]
                continue
            o += [mf[i]]
            if i < 2: o += rd[2*i:2*i+2]
            o += va[4*i:4*i+4]
        return o
    def rds(kb_par, half):
        return [f"ds_read_b128 {vr(KF[1-kb_par],4)}, v{VRD} offset:{half*2048}",
                f"ds_read_b128 {vr(KF[1-kb_par]+4,4)}, v{VRD} offset:{half*2048+1024}",
                f"ds_read_b128 {vr(VF[kb_par],4)}, v{VRD} offset:{4096+half*2048}",
                f"ds_read_b128 {vr(VF[kb_par]+4,4)}, v{VRD} offset:{4096+half*2048+1024}"]
    B = [f"s_waitcnt vmcnt({2*(NST-2)})", "s_barrier"]
    d = dma()
    B += [d[0][0], "s_nop 0", d[0][1], d[1][0], "s_nop 0", d[1][1]] + dma_adv()
    B += slot("A", 0, 1, rds(0, 0))
    B += ["s_waitcnt lgkmcnt(0)"]
    B += slot("B", 1, 0, [])
    B += slot("A", 1, 0, rds(1, 1))
    B += ["s_waitcnt lgkmcnt(0)"]
    B += [f"s_add_u32 s53, s53, {STG}", f"s_and_b32 s53, s53, {NST*STG-1}", f"v_add_u32 v{VRD}, s53, v{VL16}"]
    B += slot("B", 0, 1, [])
    tail = ["s_add_u32 s52, s52, 1", "s_cmp_lt_u32 s52, 32", f"s_cbranch_scc1 {N}_loop"]
    E = stamp(2)
    if "ldot" in EXP:
        E += ["s_nop 1", mfma32(O["B"], VF[1], Pk["B"]), mfma32(O["B"], VF[1] + 4, Pk["B"] + 4)]
        E += [f"v_dot2c_f32_bf16 v{L['B']+(j%4)}, s63, v{Pk['B']+j}" for j in range(8)] + ["s_nop 3"]
        for X in "AB":
            E += [f"v_add_f32 v{L[X]}, v{L[X]}, v{L[X]+1}", f"v_add_f32 v{L[X]+2}, v{L[X]+2}, v{L[X]+3}", f"v_add_f32 v{L[X]}, v{L[X]}, v{L[X]+2}",
                  f"v_mov_b32 v{T1}, v{L[X]}", "s_nop 1", f"v_permlane32_swap_b32 v{L[X]}, v{T1}", f"v_add_f32 v{L[X]}, v{L[X]}, v{T1}"]
        E += ["s_nop 7"]
    else:
        E += ["s_nop 1", mfma32(O["B"], VF[1], Pk["B"]), mfma16(L["B"], ONES, Pk["B"]),
              mfma32(O["B"], VF[1] + 4, Pk["B"] + 4), mfma16(L["B"], ONES, Pk["B"] + 4), "s_nop 15"]
    E += [f"s_mov_b32 s54, {hex(f32bits(ATT_LMAX))}",
          f"v_cmp_gt_f32 vcc, s54, v{L['A']}", f"v_cmp_gt_f32 s[56:57], s54, v{L['B']}", "s_nop 1",
          "s_and_b64 vcc, vcc, s[56:57]", "s_cmp_eq_u64 vcc, exec", f"s_cbranch_scc0 {N}_fallback"]
    E2 = [f"{N}_final:"]
    E2 += ["s_lshl_b32 s45, s43, 16", "s_lshl_b32 s46, s42, 11", "s_add_u32 s45, s45, s46", f"s_add_u32 s45, s45, {WS_O}"]
    for X in "AB":
        E2 += [f"v_rcp_f32 v{T0}, v{L[X]}", "s_nop 0"]
        for i in range(16):
            E2 += [f"v_mul_f32 v{O[X]+i}, v{O[X]+i}, v{T0}"]
        for j in range(8):
            E2 += [f"v_cvt_pk_bf16_f32 v{S[X]+j}, v{O[X]+2*j}, v{O[X]+2*j+1}"]
        for t in range(2):
            E2 += [f"buffer_store_dwordx4 {vr(S[X]+4*t,4)}, v{VL16}, s[24:27], s45 offen offset:{1024*t}"]
        E2 += ["s_add_u32 s45, s45, 65536"]
    A0, A1 = 64, 65
    E2 += ["s_waitcnt vmcnt(4)", f"v_mov_b32 v{A0}, 0", f"v_mov_b32 v{A1}, 0"]
    for i in range(8):
        w = GX + 16 + i
        E2 += [f"v_lshlrev_b32 v66, 16, v{w}", f"v_and_b32 v67, 0xffff0000, v{w}"]
        for r, a in ((0, A0), (1, A1)):
            x = GX + 8 * r + i
            E2 += [f"v_lshlrev_b32 v68, 16, v{x}", f"v_and_b32 v69, 0xffff0000, v{x}",
                  "v_mul_f32 v68, v68, v66", "v_mul_f32 v69, v69, v67",
                  "v_cvt_pk_bf16_f32 v70, v68, v69",
                  "v_lshlrev_b32 v68, 16, v70", "v_and_b32 v69, 0xffff0000, v70",
                  f"v_add_f32 v{a}, v{a}, v68", f"v_add_f32 v{a}, v{a}, v69"]
    for off in (0x041F, 0x081F, 0x101F, 0x201F, 0x401F):
        E2 += [f"ds_swizzle_b32 v66, v{A0} offset:{off}", f"ds_swizzle_b32 v67, v{A1} offset:{off}",
              "s_waitcnt lgkmcnt(0)", f"v_add_f32 v{A0}, v{A0}, v66", f"v_add_f32 v{A1}, v{A1}, v67"]
    E2 += ["s_nop 0", f"v_readlane_b32 s55, v{A0}, 32", f"v_readlane_b32 s56, v{A1}, 32", "s_nop 1",
          f"v_add_f32 v{A0}, s55, v{A0}", f"v_add_f32 v{A1}, s56, v{A1}",
          "v_cmp_eq_u32 vcc, 1, v0", "s_nop 1", f"v_cndmask_b32 v{A0}, v{A0}, v{A1}, vcc",
          f"v_cvt_pk_bf16_f32 v{A0}, v{A0}, v{A0}", f"v_lshlrev_b32 v{A0}, 16, v{A0}",
          f"v_mul_f32 v{A0}, {hex(f32bits(-LOG2E))}, v{A0}", f"v_exp_f32 v{A0}, v{A0}", "s_nop 0",
          f"v_add_f32 v{A0}, 1.0, v{A0}", f"v_rcp_f32 v{A0}, v{A0}", "s_nop 0",
          f"v_cvt_pk_bf16_f32 v{A0}, v{A0}, v{A0}", f"v_lshlrev_b32 v{VG['A']}, 16, v{A0}"]
    E2 += [f"v_lshlrev_b32 v{T0}, 2, v0", "s_lshl_b32 s45, s62, 2", f"s_add_u32 s45, s45, {WS_G}",
           "v_cmp_gt_u32 vcc, 2, v0", "s_and_saveexec_b64 s[58:59], vcc",
           f"buffer_store_dword v{VG['A']}, v{T0}, s[24:27], s45 offen", "s_mov_b64 exec, s[58:59]"]
    E2 += stamp(3) + ["s_waitcnt vmcnt(0)"] + stamp(4) + stamp_dump(5, 9, 1)
    E2 += [f"{N}_done:", "s_endpgm"]
    F = [f"{N}_fallback:", "s_waitcnt vmcnt(0)"]
    M = {"A": 9, "B": 10}; AL = 11
    for X in "AB":
        F += [f"v_mov_b32 v{M[X]}, 0xff7fffff", f"v_mov_b32 v{L[X]}, 0"]
        for i in range(16): F += [f"v_mov_b32 v{O[X]+i}, 0"]
    F += [f"s_add_u32 s46, s44, {WS_K}", f"s_add_u32 s47, s44, {WS_V}", "s_mov_b32 s52, 0"]
    FB = []
    FB += [f"buffer_load_dwordx4 {vr(KF[0],4)}, v{VL16}, s[24:27], s46 offen",
           f"buffer_load_dwordx4 {vr(KF[0]+4,4)}, v{VL16}, s[24:27], s46 offen offset:1024",
           f"buffer_load_dwordx4 {vr(VF[0],4)}, v{VL16}, s[24:27], s47 offen",
           f"buffer_load_dwordx4 {vr(VF[0]+4,4)}, v{VL16}, s[24:27], s47 offen offset:1024",
           "s_waitcnt vmcnt(0)"]
    for X in "AB":
        FB += [mfma32(S[X], KF[0], Q[X], "0"), mfma32(S[X], KF[0] + 4, Q[X] + 4), "s_nop 15"]
        FB += [f"v_max3_f32 v{T0}, v{S[X]}, v{S[X]+1}, v{M[X]}"]
        for i in range(2, 16, 2): FB += [f"v_max3_f32 v{T0}, v{T0}, v{S[X]+i}, v{S[X]+i+1}"]
        FB += [f"v_mov_b32 v{T1}, v{T0}", "s_nop 1", f"v_permlane32_swap_b32 v{T0}, v{T1}", f"v_max_f32 v{T0}, v{T0}, v{T1}",
               f"v_sub_f32 v{AL}, v{M[X]}, v{T0}", f"v_exp_f32 v{AL}, v{AL}", f"v_mov_b32 v{M[X]}, v{T0}",
               f"v_mul_f32 v{L[X]}, v{L[X]}, v{AL}"]
        for i in range(16):
            FB += [f"v_sub_f32 v{S[X]+i}, v{S[X]+i}, v{T0}", f"v_exp_f32 v{S[X]+i}, v{S[X]+i}", f"v_mul_f32 v{O[X]+i}, v{O[X]+i}, v{AL}"]
        for j in range(8):
            FB += [f"v_cvt_pk_bf16_f32 v{Pk[X]+j}, v{S[X]+2*j}, v{S[X]+2*j+1}",
                   f"v_lshlrev_b32 v{T1}, 16, v{Pk[X]+j}", f"v_and_b32 v{T2}, 0xffff0000, v{Pk[X]+j}",
                   f"v_add_f32 v{L[X]}, v{L[X]}, v{T1}", f"v_add_f32 v{L[X]}, v{L[X]}, v{T2}"]
        FB += ["s_nop 1", mfma32(O[X], VF[0], Pk[X]), mfma32(O[X], VF[0] + 4, Pk[X] + 4)]
    FB += ["s_nop 15", "s_add_u32 s46, s46, 2048", "s_add_u32 s47, s47, 2048", "s_add_u32 s52, s52, 1", "s_cmp_lt_u32 s52, 64",
           f"s_cbranch_scc1 {N}_fbloop"]
    FE = []
    for X in "AB":
        FE += [f"v_mov_b32 v{T1}, v{L[X]}", "s_nop 1", f"v_permlane32_swap_b32 v{L[X]}, v{T1}", f"v_add_f32 v{L[X]}, v{L[X]}, v{T1}"]
    FE += [f"s_branch {N}_final"]
    text = (header(N) if not merged else []) + P + [f"{N}_loop:"] + B + tail + E + E2 + F + [f"{N}_fbloop:"] + FB + FE
    errs = check_trace(P + B + tail + B + tail + E + E2, N)
    errs += check_trace(P + B + tail + E + F + FB + FB + FE + E2, N + "_fb")
    return N, text, desc(N, 216), errs, (256, 256, NST * STG)


def mix(rd, dd):
    out = []
    for i, r in enumerate(rd):
        if i < len(dd): out += [dd[i][0], r, dd[i][1]] if dd[i][0] else [r, dd[i][1]]
        else: out += [r]
    for j in range(len(rd), len(dd)):
        out += ([dd[j][0], "s_nop 0"] if dd[j][0] else []) + [dd[j][1]]
    return out

def kloop(N, nkt, nst, ndma, dma, dma_adv, reads, mfmas, rd_adv, cnt_sreg, npre=1, late=0):
    pre = [f"s_waitcnt vmcnt({ndma*(nst-2-late)})", "s_barrier"] + reads(0, 0) + [f"s_mov_b32 s{cnt_sreg}, 0"]
    for i in range(late):
        pre += mix([], dma()) + dma_adv()
    def body(do_dma, last, inflight):
        o = []
        d = dma() if do_dma else []
        h = (len(d) + 1) // 2
        o += ["s_waitcnt lgkmcnt(0)"]
        o += spread(mfmas(0, 0), mix(reads(1, 1), d[:h]))
        o += ["s_waitcnt lgkmcnt(0)"]
        o += spread(mfmas(1, 1), mix(reads(0, 2), d[h:]) + (dma_adv() if do_dma else []))
        o += ["s_waitcnt lgkmcnt(0)"]
        o += spread(mfmas(0, 2), reads(1, 3) + ([] if last else rd_adv()))
        o += ["s_waitcnt lgkmcnt(0)"]
        m = mfmas(1, 3)
        if last:
            o += m
        else:
            o += m[:npre] + [f"s_waitcnt vmcnt({inflight*ndma})", "s_barrier"] + spread(m[npre:], reads(0, 0))
        return o
    nmain = nkt - (nst - 1)
    B = body(True, False, nst - 2)
    tail = [f"s_add_u32 s{cnt_sreg}, s{cnt_sreg}, 1", f"s_cmp_lt_u32 s{cnt_sreg}, {nmain}", f"s_cbranch_scc1 {N}_loop"]
    rest = []
    for i in range(nst - 1):
        last = (i == nst - 2)
        rest += body(False, last, nst - 3 - i if not last else 0)
    text = [f"{N}_loop:"] + B + tail + rest
    trace = B + tail + B + tail + rest
    return pre, text, trace

def gen_ygemm(merged=False):
    N = "ygemm_kernel" if not merged else "mix_kernel_y"
    NST = 4; STG = 32768; L_B = 16384
    LB0 = 32768 if merged else 0
    ACC = 64
    def acc(i, j): return ACC + (i * 2 + j) * 16
    def fr(s, i): return 32 + s * 16 + i * 4
    VL16 = 1; VB = [2, 3, 4, 5]; AA0 = 6; BA0 = [7, 8, 9, 10]; AA = 11; BA = [12, 13, 14, 15]
    T0, T1, T2, T3 = 16, 17, 18, 19
    P = []
    if not merged:
        P += ["s_cmp_ge_u32 s2, 256", f"s_cbranch_scc1 {N}_done"]
        P += ["v_lshrrev_b32 v1, 6, v0", "v_and_b32 v0, 63, v0", "v_readfirstlane_b32 s3, v1"]
    P += stamp(0)
    P += ["s_and_b32 s42, s2, 1",
          "s_load_dwordx4 s[4:7], s[0:1], 8", "s_load_dwordx2 s[40:41], s[0:1], 88"]
    P += ["s_bfe_u32 s44, s2, 0x10001", "s_lshl_b32 s44, s44, 2", "s_bfe_u32 s45, s2, 0x20003", "s_add_u32 s44, s44, s45",
          "s_bfe_u32 s45, s2, 0x10002", "s_lshl_b32 s45, s45, 3", "s_lshr_b32 s46, s2, 5", "s_add_u32 s45, s45, s46"]
    P += [f"v_lshlrev_b32 v{VL16}, 4, v0"]
    P += [f"v_lshrrev_b32 v{T0}, 3, v0", f"v_and_b32 v{T1}, 7, v0", f"v_lshrrev_b32 v{T2}, 4, v0",
          "s_lshl_b32 s46, s45, 7", "s_lshl_b32 s47, s3, 5", "s_add_u32 s46, s46, s47",
          f"v_add_u32 v{T3}, s46, v{T0}", f"v_lshlrev_b32 v{T3}, 12, v{T3}",
          f"v_xor_b32 v{VB[0]}, v{T1}, v{T2}", f"v_lshlrev_b32 v{VB[0]}, 4, v{VB[0]}", f"v_add_u32 v{VB[0]}, v{VB[0]}, v{T3}"]
    for q in range(1, 4):
        if q % 2: P += [f"v_xor_b32 v{VB[q]}, 64, v{VB[0]}", f"v_add_u32 v{VB[q]}, {q*8*4096}, v{VB[q]}"]
        else: P += [f"v_add_u32 v{VB[q]}, {q*8*4096}, v{VB[0]}"]
    P += ["s_and_b32 s46, s3, 1", "s_lshl_b32 s46, s46, 13", f"s_add_u32 s46, s46, {LB0}", f"v_add_u32 v{AA0}, s46, v{VL16}",
          "s_lshr_b32 s46, s3, 1", "s_lshl_b32 s46, s46, 13", f"s_add_u32 s46, s46, {L_B + LB0}"]
    P += [f"v_lshrrev_b32 v{T0}, 5, v0", f"v_lshrrev_b32 v{T1}, 1, v0", f"v_and_b32 v{T1}, 7, v{T1}",
          f"v_xor_b32 v{T0}, v{T0}, v{T1}", f"v_and_b32 v{T1}, 31, v0", f"v_lshlrev_b32 v{T1}, 7, v{T1}",
          f"v_add_u32 v{T1}, s46, v{T1}"]
    for ks in range(4):
        P += [f"v_xor_b32 v{T2}, {2*ks}, v{T0}", f"v_lshlrev_b32 v{T2}, 4, v{T2}", f"v_add_u32 v{BA0[ks]}, v{T2}, v{T1}",
              f"v_mov_b32 v{BA[ks]}, v{BA0[ks]}"]
    P += [f"v_mov_b32 v{AA}, v{AA0}"]
    P += ["s_waitcnt lgkmcnt(0)", "s_cmp_eq_u32 s42, 0", "s_cselect_b32 s4, s4, s6", "s_cselect_b32 s5, s5, s7"] + srd(8, 4, 5, 8 * MB) + srd(24, 40, 41, WS_SIZE)
    P += ["s_lshl_b32 s47, s44, 2", "s_add_u32 s47, s47, s3", "s_lshl_b32 s47, s47, 17",
          f"s_mul_i32 s46, s42, {4*MB}", "s_add_u32 s47, s47, s46",
          "s_mov_b32 s48, 0", "s_lshl_b32 s50, s3, 12", "s_mov_b32 s49, s50", "s_mov_b32 s51, 0", "s_mov_b32 s57, s47"]
    if "yrot1" in EXP or "yrot2" in EXP:
        P += ["s_lshr_b32 s48, s2, 5", f"s_lshl_b32 s48, s48, {8 if 'yrot2' in EXP else 7}", "s_lshl_b32 s56, s48, 5", "s_add_u32 s47, s57, s56"]
    if "rot" in EXP:
        P += ["s_lshr_b32 s48, s2, 5", "s_lshl_b32 s48, s48, 2", "s_bfe_u32 s56, s2, 0x20003", "s_lshl_b32 s56, s56, 3",
              "s_add_u32 s48, s48, s56", "s_and_b32 s48, s48, 31", "s_lshl_b32 s48, s48, 7",
              "s_lshl_b32 s56, s48, 5", "s_add_u32 s47, s57, s56"]
    def dma():
        o = [[f"s_add_u32 m0, s49, {LB0}", f"buffer_load_dwordx4 v{VL16}, s[24:27], s47 offen lds"]]
        for u in range(1, 4):
            o.append([None, f"buffer_load_dwordx4 v{VL16}, s[24:27], s47 offen offset:{1024*u} lds"])
        for q in range(4):
            o.append([f"s_add_u32 m0, s49, {LB0 + L_B + 1024*q}", f"buffer_load_dwordx4 v{VB[q]}, s[8:11], s48 offen lds"])
        if "noydma" in EXP: o = [[a_, "s_nop 0"] for a_, b_ in o]
        return o
    def dma_adv():
        return ["s_add_u32 s48, s48, 128", "s_and_b32 s48, s48, 0xfff", "s_lshl_b32 s56, s48, 5", "s_add_u32 s47, s57, s56",
                f"s_add_u32 s49, s49, {STG}", f"s_and_b32 s49, s49, {NST*STG-1}"]
    LATE = 1 if "late1" in EXP else (2 if "late2" in EXP else 0)
    for t in range(NST - 1 - LATE):
        P += mix([], dma()) + dma_adv()
    for r in range(ACC, ACC + 64): P += [f"v_mov_b32 v{r}, 0"]
    def reads(s_, ks):
        if "noyrd" in EXP: return ["s_nop 0"] * 4
        return [f"ds_read_b128 {vr(fr(s_,0),4)}, v{AA} offset:{ks*1024}",
                f"ds_read_b128 {vr(fr(s_,2),4)}, v{BA[ks]}",
                f"ds_read_b128 {vr(fr(s_,3),4)}, v{BA[ks]} offset:4096",
                f"ds_read_b128 {vr(fr(s_,1),4)}, v{AA} offset:{4096+ks*1024}"]
    def mfmas(s_, ks=0):
        if "noy" in EXP: return ["s_nop 0"] * 4
        if "y16" in EXP:
            o = []
            for (i, j) in ((0, 0), (0, 1), (1, 0), (1, 1)):
                o += [mfma16(acc(i, j) + 8 * s_, fr(s_, i), fr(s_, 2 + j)), mfma16(acc(i, j) + 8 * s_ + 4, fr(s_, i), fr(s_, 2 + j))]
            return o
        return [mfma32(acc(0, 0), fr(s_, 0), fr(s_, 2)), mfma32(acc(0, 1), fr(s_, 0), fr(s_, 3)),
                mfma32(acc(1, 0), fr(s_, 1), fr(s_, 2)), mfma32(acc(1, 1), fr(s_, 1), fr(s_, 3))]
    def rd_adv():
        o = [f"s_add_u32 s51, s51, {STG}", f"s_and_b32 s51, s51, {NST*STG-1}", f"v_add_u32 v{AA}, s51, v{AA0}"]
        for i in range(4): o += [f"v_add_u32 v{BA[i]}, s51, v{BA0[i]}"]
        return o
    P += stamp(1)
    pre, ktext, ktrace = kloop(N, 32, NST, 8, dma, dma_adv, reads, mfmas, rd_adv, 52, late=LATE)
    E = ["s_nop 15"] + stamp(2)
    E += ["s_lshl_b32 s46, s44, 2", "s_and_b32 s47, s3, 1", "s_lshl_b32 s47, s47, 1", "s_add_u32 s46, s46, s47", "s_lshl_b32 s46, s46, 17",
          "s_lshl_b32 s47, s45, 2", "s_lshr_b32 s48, s3, 1", "s_lshl_b32 s48, s48, 1", "s_add_u32 s47, s47, s48", "s_lshl_b32 s47, s47, 11",
          "s_add_u32 s46, s46, s47", f"s_mul_i32 s47, s42, {4*MB}", "s_add_u32 s46, s46, s47", f"s_add_u32 s46, s46, {WS_Y1}"]
    pk = 32
    for i in range(2):
        for j in range(2):
            a = acc(i, j)
            for r in range(8): E += [f"v_cvt_pk_bf16_f32 v{pk+r}, v{a+2*r}, v{a+2*r+1}"]
            for t in range(2):
                E += [f"buffer_store_dwordx4 {vr(pk+4*t,4)}, v{VL16}, s[24:27], s46 offen offset:{j*2048+t*1024}"]
            pk = 32 + (pk - 32 + 8) % 32
        E += ["s_add_u32 s46, s46, 131072"]
    E += stamp(3) + ["s_waitcnt vmcnt(0)"] * STAMPS + stamp(4) + stamp_dump(5, 9, 2, 128 if merged else 0)
    E += [f"{N}_done:", "s_endpgm"]
    text = (header(N) if not merged else []) + P + pre + ktext + E
    errs = check_trace(P + pre + ktrace + E, N)
    return N, text, desc(N, 128), errs, (256, 256, NST * STG)

def gen_ygemm16(merged=False):
    N = "ygemm_kernel" if not merged else "mix_kernel_y"
    NST = 4; STG = 32768; L_B = 16384
    LB0 = 32768 if merged else 0
    ACC = 72
    def acc(i, j): return ACC + (i * 4 + j) * 4
    def fa(s, i): return 24 + s * 8 + i * 4
    def fb(s, j): return 40 + s * 16 + j * 4
    VL16 = 1; VB = [2, 3, 4, 5]; AA0 = 6; BA0 = [7, 8]; AA = 11; BA = [12, 13]; VY = 14
    T0, T1, T2, T3 = 16, 17, 18, 19
    P = []
    if not merged:
        P += ["s_cmp_ge_u32 s2, 256", f"s_cbranch_scc1 {N}_done"]
        P += ["v_lshrrev_b32 v1, 6, v0", "v_and_b32 v0, 63, v0", "v_readfirstlane_b32 s3, v1"]
    P += stamp(0)
    P += ["s_and_b32 s42, s2, 1",
          "s_load_dwordx4 s[4:7], s[0:1], 8", "s_load_dwordx2 s[40:41], s[0:1], 88"]
    P += ["s_bfe_u32 s44, s2, 0x10001", "s_lshl_b32 s44, s44, 2", "s_bfe_u32 s45, s2, 0x20003", "s_add_u32 s44, s44, s45",
          "s_bfe_u32 s45, s2, 0x10002", "s_lshl_b32 s45, s45, 3", "s_lshr_b32 s46, s2, 5", "s_add_u32 s45, s45, s46"]
    P += [f"v_lshlrev_b32 v{VL16}, 4, v0"]
    P += [f"v_lshrrev_b32 v{T0}, 3, v0", f"v_and_b32 v{T1}, 7, v0", f"v_lshrrev_b32 v{T2}, 4, v0",
          "s_lshl_b32 s46, s45, 7", "s_lshl_b32 s47, s3, 5", "s_add_u32 s46, s46, s47",
          f"v_add_u32 v{T3}, s46, v{T0}", f"v_lshlrev_b32 v{T3}, 12, v{T3}",
          f"v_xor_b32 v{VB[0]}, v{T1}, v{T2}", f"v_lshlrev_b32 v{VB[0]}, 4, v{VB[0]}", f"v_add_u32 v{VB[0]}, v{VB[0]}, v{T3}"]
    for q in range(1, 4):
        if q % 2: P += [f"v_xor_b32 v{VB[q]}, 64, v{VB[0]}", f"v_add_u32 v{VB[q]}, {q*8*4096}, v{VB[q]}"]
        else: P += [f"v_add_u32 v{VB[q]}, {q*8*4096}, v{VB[0]}"]
    P += [f"v_and_b32 v{T0}, 15, v0", f"v_lshrrev_b32 v{T1}, 4, v0",
          f"v_and_b32 v{T2}, 1, v{T1}", f"v_lshlrev_b32 v{T2}, 5, v{T2}", f"v_add_u32 v{T2}, v{T2}, v{T0}", f"v_lshlrev_b32 v{T2}, 4, v{T2}",
          f"v_lshrrev_b32 v{T3}, 1, v{T1}",
          f"v_lshlrev_b32 v{VY}, 3, v{T3}", f"v_add_u32 v{VY}, v{VY}, v{T2}",
          f"v_lshlrev_b32 v{T3}, 10, v{T3}", f"v_add_u32 v{T2}, v{T2}, v{T3}",
          "s_and_b32 s46, s3, 1", "s_lshl_b32 s46, s46, 13", f"s_add_u32 s46, s46, {LB0}", f"v_add_u32 v{AA0}, s46, v{T2}",
          "s_lshr_b32 s46, s3, 1", "s_lshl_b32 s46, s46, 13", f"s_add_u32 s46, s46, {L_B + LB0}",
          f"v_lshrrev_b32 v{T2}, 1, v{T0}", f"v_xor_b32 v{T2}, v{T2}, v{T1}",
          f"v_lshlrev_b32 v{T3}, 7, v{T0}", f"v_add_u32 v{T3}, s46, v{T3}"]
    for kk in range(2):
        P += [f"v_xor_b32 v{T0}, {4*kk}, v{T2}", f"v_lshlrev_b32 v{T0}, 4, v{T0}", f"v_add_u32 v{BA0[kk]}, v{T0}, v{T3}",
              f"v_mov_b32 v{BA[kk]}, v{BA0[kk]}"]
    P += [f"v_mov_b32 v{AA}, v{AA0}"]
    P += ["s_waitcnt lgkmcnt(0)", "s_cmp_eq_u32 s42, 0", "s_cselect_b32 s4, s4, s6", "s_cselect_b32 s5, s5, s7"] + srd(8, 4, 5, 8 * MB) + srd(24, 40, 41, WS_SIZE)
    P += ["s_lshl_b32 s47, s44, 2", "s_add_u32 s47, s47, s3", "s_lshl_b32 s47, s47, 17",
          f"s_mul_i32 s46, s42, {4*MB}", "s_add_u32 s47, s47, s46",
          "s_mov_b32 s48, 0", "s_lshl_b32 s50, s3, 12", "s_mov_b32 s49, s50", "s_mov_b32 s51, 0", "s_mov_b32 s57, s47"]
    if "yrot1" in EXP or "yrot2" in EXP:
        P += ["s_lshr_b32 s48, s2, 5", f"s_lshl_b32 s48, s48, {8 if 'yrot2' in EXP else 7}", "s_lshl_b32 s56, s48, 5", "s_add_u32 s47, s57, s56"]
    if "rot" in EXP:
        P += ["s_lshr_b32 s48, s2, 5", "s_lshl_b32 s48, s48, 2", "s_bfe_u32 s56, s2, 0x20003", "s_lshl_b32 s56, s56, 3",
              "s_add_u32 s48, s48, s56", "s_and_b32 s48, s48, 31", "s_lshl_b32 s48, s48, 7",
              "s_lshl_b32 s56, s48, 5", "s_add_u32 s47, s57, s56"]
    def dma():
        o = [[f"s_add_u32 m0, s49, {LB0}", f"buffer_load_dwordx4 v{VL16}, s[24:27], s47 offen lds"]]
        for u in range(1, 4):
            o.append([None, f"buffer_load_dwordx4 v{VL16}, s[24:27], s47 offen offset:{1024*u} lds"])
        for q in range(4):
            o.append([f"s_add_u32 m0, s49, {LB0 + L_B + 1024*q}", f"buffer_load_dwordx4 v{VB[q]}, s[8:11], s48 offen lds"])
        if "noydma" in EXP: o = [[a_, "s_nop 0"] for a_, b_ in o]
        return o
    def dma_adv():
        return ["s_add_u32 s48, s48, 128", "s_and_b32 s48, s48, 0xfff", "s_lshl_b32 s56, s48, 5", "s_add_u32 s47, s57, s56",
                f"s_add_u32 s49, s49, {STG}", f"s_and_b32 s49, s49, {NST*STG-1}"]
    LATE = 1 if "late1" in EXP else (2 if "late2" in EXP else 0)
    for t in range(NST - 1 - LATE):
        P += mix([], dma()) + dma_adv()
    for r in range(ACC, ACC + 64): P += [f"v_mov_b32 v{r}, 0"]
    def reads(s_, ks):
        kk, eh = ks >> 1, ks & 1
        o = [f"ds_read_b128 {vr(fa(s_,0),4)}, v{AA} offset:{eh*4096+kk*2048}"]
        if eh == 0:
            o += [f"ds_read_b128 {vr(fb(kk,j),4)}, v{BA[kk]} offset:{j*2048}" for j in range(4)]
        o += [f"ds_read_b128 {vr(fa(s_,1),4)}, v{AA} offset:{eh*4096+kk*2048+256}"]
        return o
    def mfmas(s_, ks=0):
        kk, eh = ks >> 1, ks & 1
        return [mfma16(acc(2 * eh + i, j), fa(s_, i), fb(kk, j)) for i in range(2) for j in range(4)]
    def rd_adv():
        o = [f"s_add_u32 s51, s51, {STG}", f"s_and_b32 s51, s51, {NST*STG-1}", f"v_add_u32 v{AA}, s51, v{AA0}"]
        for i in range(2): o += [f"v_add_u32 v{BA[i]}, s51, v{BA0[i]}"]
        return o
    P += stamp(1)
    pre, ktext, ktrace = kloop(N, 32, NST, 8, dma, dma_adv, reads, mfmas, rd_adv, 52, npre=2, late=LATE)
    E = ["s_nop 15"] + stamp(2)
    E += ["s_lshl_b32 s46, s44, 2", "s_and_b32 s47, s3, 1", "s_lshl_b32 s47, s47, 1", "s_add_u32 s46, s46, s47", "s_lshl_b32 s46, s46, 17",
          "s_lshl_b32 s47, s45, 2", "s_lshr_b32 s48, s3, 1", "s_lshl_b32 s48, s48, 1", "s_add_u32 s47, s47, s48", "s_lshl_b32 s47, s47, 11",
          "s_add_u32 s46, s46, s47", f"s_mul_i32 s47, s42, {4*MB}", "s_add_u32 s46, s46, s47", f"s_add_u32 s46, s46, {WS_Y1}"]
    pk = 24
    for i in range(4):
        for j in range(4):
            a = acc(i, j)
            E += [f"v_cvt_pk_bf16_f32 v{pk}, v{a}, v{a+1}", f"v_cvt_pk_bf16_f32 v{pk+1}, v{a+2}, v{a+3}",
                  f"buffer_store_dwordx2 {vr(pk,2)}, v{VY}, s[24:27], s46 offen offset:{(i&1)*1024 + (j&1)*256 + (j>>1)*2048}"]
            pk = 24 + (pk - 24 + 2) % 32
        if i == 1: E += ["s_add_u32 s46, s46, 131072"]
    E += stamp(3) + ["s_waitcnt vmcnt(0)"] * STAMPS + stamp(4) + stamp_dump(5, 9, 2, 128 if merged else 0)
    E += [f"{N}_done:", "s_endpgm"]
    text = (header(N) if not merged else []) + P + pre + ktext + E
    errs = check_trace(P + pre + ktrace + E, N)
    return N, text, desc(N, 136), errs, (256, 256, NST * STG)

def gen_mix():
    N = "mix_kernel"
    _, ta, _, ea, _ = gen_attn(True)
    _, ty, _, ey, _ = gen_ygemm(True) if "y32" in EXP else gen_ygemm16(True)
    H = header(N) + ["s_cmp_ge_u32 s2, 256", "s_cbranch_scc1 mix_kernel_a_done",
         "v_lshrrev_b32 v1, 6, v0", "v_and_b32 v0, 63, v0", "v_readfirstlane_b32 s3, v1", "s_nop 3",
         "s_cmp_ge_u32 s3, 4", "s_cbranch_scc1 mix_kernel_ystart"]
    text = H + (["s_setprio 1"] if "prioa" in EXP else []) + ta + ["mix_kernel_ystart:", "s_sub_u32 s3, s3, 4"] + (["s_setprio 1"] if "prioy" in EXP else []) + ty
    return N, text, desc(N, 216), ea + ey, (256, 512, 163840)

def gen_out():
    N = "out_kernel"
    NST = 6 if "o6" in EXP else 4; STG = 24576; L_B = 8192
    ACC = 64
    def acc(i): return ACC + i * 16
    def fr(s, i): return 32 + s * 12 + i * 4
    VL16 = 1; VW = [2, 3]; WA0 = 4; BA0 = 5; WA = 6; BA = 7; VG = 8; VO = 9
    T0, T1, T2, T3 = 16, 17, 18, 19
    Y = 96
    P = ["s_cmp_ge_u32 s2, 256", f"s_cbranch_scc1 {N}_done"]
    P += stamp(0)
    P += ["s_load_dwordx2 s[4:5], s[0:1], 56", "s_load_dwordx2 s[6:7], s[0:1], 72", "s_load_dwordx2 s[40:41], s[0:1], 88"]
    P += ["v_lshrrev_b32 v1, 6, v0", "v_and_b32 v0, 63, v0", "v_readfirstlane_b32 s3, v1"]
    P += ["s_and_b32 s45, s2, 3", "s_lshl_b32 s45, s45, 2", "s_bfe_u32 s46, s2, 0x20003", "s_add_u32 s45, s45, s46",
          "s_bfe_u32 s44, s2, 0x10002", "s_lshl_b32 s44, s44, 3", "s_lshr_b32 s46, s2, 5", "s_add_u32 s44, s44, s46",
          "s_lshl_b32 s43, s45, 2", "s_add_u32 s43, s43, s3"]
    P += [f"v_lshlrev_b32 v{VL16}, 4, v0"]
    P += [f"v_lshrrev_b32 v{T3}, 2, v0", "s_lshl_b32 s46, s3, 4", f"v_add_u32 v{T3}, s46, v{T3}", f"v_lshlrev_b32 v{T3}, 11, v{T3}",
          f"v_and_b32 v{VW[0]}, 3, v0", f"v_lshlrev_b32 v{VW[0]}, 4, v{VW[0]}", f"v_add_u32 v{VW[0]}, v{VW[0]}, v{T3}",
          "s_lshl_b32 s46, s44, 7", f"v_add_u32 v{VW[0]}, s46, v{VW[0]}", f"v_add_u32 v{VW[1]}, 64, v{VW[0]}"]
    P += [f"v_lshrrev_b32 v{T0}, 5, v0", f"v_lshlrev_b32 v{T0}, 2, v{T0}", f"v_bfe_u32 v{T1}, v0, 2, 2",
          f"v_add_u32 v{T0}, v{T0}, v{T1}", f"v_lshlrev_b32 v{T0}, 6, v{T0}",
          f"v_bfe_u32 v{T1}, v0, 4, 1", f"v_lshlrev_b32 v{T1}, 5, v{T1}", f"v_add_u32 v{T0}, v{T0}, v{T1}",
          f"v_and_b32 v{T1}, 3, v0", f"v_lshlrev_b32 v{T1}, 3, v{T1}", f"v_add_u32 v{WA0}, v{T0}, v{T1}",
          "s_lshl_b32 s50, s3, 12", f"s_add_u32 s46, s50, {L_B}", f"v_add_u32 v{BA0}, s46, v{VL16}",
          f"v_mov_b32 v{WA}, v{WA0}", f"v_mov_b32 v{BA}, v{BA0}"]
    P += [f"v_and_b32 v{T0}, 31, v0", "s_lshl_b32 s46, s43, 5", f"v_add_u32 v{T1}, s46, v{T0}", f"v_lshlrev_b32 v{VO}, 11, v{T1}",
          f"v_lshrrev_b32 v{T2}, 5, v0", f"v_lshlrev_b32 v{T2}, 4, v{T2}", f"v_add_u32 v{VO}, v{VO}, v{T2}",
          "s_lshl_b32 s46, s44, 7", f"v_add_u32 v{VO}, s46, v{VO}", f"v_lshlrev_b32 v{T1}, 2, v{T1}"]
    P += ["s_waitcnt lgkmcnt(0)"] + stamp(5) + srd(8, 4, 5, 2 * MB) + srd(12, 6, 7, 4 * MB) + srd(24, 40, 41, WS_SIZE)
    P += ["s_lshl_b32 s47, s43, 16", f"s_add_u32 s47, s47, {WS_O}", "s_mov_b32 s48, 0", "s_mov_b32 s49, 0",
          "s_lshl_b32 s53, s3, 10", "s_mov_b32 s51, 0"]
    def dma():
        o = [["s_add_u32 m0, s49, s53", f"buffer_load_dwordx4 v{VW[0]}, s[8:11], s48 offen lds"],
             ["s_add_u32 m0, m0, 4096", f"buffer_load_dwordx4 v{VW[1]}, s[8:11], s48 offen lds"],
             ["s_add_u32 m0, s49, s54", f"buffer_load_dwordx4 v{VL16}, s[24:27], s47 offen lds"]]
        for u in range(1, 4):
            o.append([None, f"buffer_load_dwordx4 v{VL16}, s[24:27], s47 offen offset:{1024*u} lds"])
        if "nowo" in EXP:
            o[0][1] = f"buffer_load_dwordx4 v{VL16}, s[24:27], s47 offen lds"
            o[1][1] = f"buffer_load_dwordx4 v{VL16}, s[24:27], s47 offen lds"
        if "noo" in EXP:
            for u in range(2, 6): o[u][1] = f"buffer_load_dwordx4 v{VW[0]}, s[8:11], s48 offen lds"
        return o
    def dma_adv():
        if "norot3" not in EXP:
            return ["s_add_u32 s56, s56, 4096", "s_and_b32 s56, s56, 0xffff", "s_add_u32 s47, s57, s56", "s_lshl_b32 s48, s56, 5",
                    f"s_add_u32 s49, s49, {STG}", f"s_cmp_ge_u32 s49, {NST*STG}", "s_cselect_b32 s49, 0, s49"]
        return ["s_add_u32 s47, s47, 4096", f"s_add_u32 s48, s48, {64*2048}", f"s_add_u32 s49, s49, {STG}",
                f"s_cmp_ge_u32 s49, {NST*STG}", "s_cselect_b32 s49, 0, s49"]
    P += [f"s_add_u32 s54, s50, {L_B}"]
    if "norot3" not in EXP:
        P += ["s_lshr_b32 s56, s2, 5", "s_lshl_b32 s56, s56, 1", "s_bfe_u32 s57, s2, 0x20003", "s_lshl_b32 s57, s57, 2",
              "s_add_u32 s56, s56, s57", "s_and_b32 s56, s56, 15", "s_lshl_b32 s56, s56, 12",
              "s_mov_b32 s57, s47", "s_add_u32 s47, s57, s56", "s_lshl_b32 s48, s56, 5"]
    YL = []
    YL += ["s_lshl_b32 s46, s44, 18", "s_lshl_b32 s55, s43, 11", "s_add_u32 s46, s46, s55", f"s_add_u32 s46, s46, {WS_Y1}"]
    for i in range(2):
        for p in range(2):
            YL += [f"s_add_u32 s55, s46, {i*131072 + p*4*MB}"]
            for t in range(2):
                YL += [f"buffer_load_dwordx4 {vr(Y+(i*2+p)*8+4*t,4)}, v{VL16}, s[24:27], s55 offen offset:{1024*t}"]
    YL += [f"s_mov_b32 s55, {WS_G}", f"buffer_load_dword v{VG}, v{T1}, s[24:27], s55 offen"]
    if "ylate" not in EXP: P += YL
    P += stamp(6)
    for t in range(NST - 1):
        P += mix([], dma()) + dma_adv()
    P += stamp(7)
    if "ylate" in EXP: P += YL
    for r in range(ACC, ACC + 32): P += [f"v_mov_b32 v{r}, 0"]
    def reads(s_, ks):
        return [f"ds_read_b128 {vr(fr(s_,2),4)}, v{BA} offset:{ks*1024}",
                f"ds_read_b64_tr_b16 {vr(fr(s_,0),2)}, v{WA} offset:{ks*1024}",
                f"ds_read_b64_tr_b16 {vr(fr(s_,0)+2,2)}, v{WA} offset:{ks*1024+512}",
                f"ds_read_b64_tr_b16 {vr(fr(s_,1),2)}, v{WA} offset:{4096+ks*1024}",
                f"ds_read_b64_tr_b16 {vr(fr(s_,1)+2,2)}, v{WA} offset:{4096+ks*1024+512}"]
    def mfmas(s_, ks=0):
        if "nomf" in EXP: return ["s_nop 0", "s_nop 0"]
        return [mfma32(acc(0), fr(s_, 0), fr(s_, 2)), mfma32(acc(1), fr(s_, 1), fr(s_, 2))]
    def rd_adv():
        return [f"s_add_u32 s51, s51, {STG}", f"s_cmp_ge_u32 s51, {NST*STG}", "s_cselect_b32 s51, 0, s51",
                f"v_add_u32 v{WA}, s51, v{WA0}", f"v_add_u32 v{BA}, s51, v{BA0}"]
    P += stamp(1)
    pre, ktext, ktrace = kloop(N, 16, NST, 6, dma, dma_adv, reads, mfmas, rd_adv, 52)
    E = ["s_nop 15"] + stamp(2)
    E += [f"v_sub_f32 v20, 1.0, v{VG}", "v_cvt_pk_bf16_f32 v20, v20, v20", "v_lshlrev_b32 v20, 16, v20"]
    pk = 32
    for i in range(2):
        a = acc(i)
        for r in range(16): E += [f"v_mul_f32 v{a+r}, v20, v{a+r}"]
        for r in range(8):
            y1 = Y + (i * 2) * 8 + r; y2 = Y + (i * 2 + 1) * 8 + r
            E += [f"v_lshlrev_b32 v{T0}, 16, v{y1}", f"v_lshlrev_b32 v{T1}, 16, v{y2}", f"v_sub_f32 v{T0}, v{T0}, v{T1}",
                  f"v_and_b32 v{T2}, 0xffff0000, v{y1}", f"v_and_b32 v{T3}, 0xffff0000, v{y2}", f"v_sub_f32 v{T2}, v{T2}, v{T3}",
                  f"v_fmac_f32 v{a+2*r}, v{VG}, v{T0}", f"v_fmac_f32 v{a+2*r+1}, v{VG}, v{T2}",
                  f"v_cvt_pk_bf16_f32 v{pk+r}, v{a+2*r}, v{a+2*r+1}"]
        E += ["s_nop 1"]
        for t in range(2):
            E += [f"v_permlane32_swap_b32 v{pk+4*t}, v{pk+4*t+2}", f"v_permlane32_swap_b32 v{pk+4*t+1}, v{pk+4*t+3}"]
        for t in range(2):
            E += [f"buffer_store_dwordx4 {vr(pk+4*t,4)}, v{VO}, s[12:15], 0 offen offset:{i*64+t*32}"]
        pk += 8
    E += stamp(3) + ["s_waitcnt vmcnt(0)"] * STAMPS + stamp(4) + stamp_dump(8, 9, 3)
    E += [f"{N}_done:", "s_endpgm"]
    text = header(N) + P + pre + ktext + E
    errs = check_trace(P + pre + ktrace + E, N)
    return N, text, desc(N, 128), errs, (256, 256, NST * STG)

def build(kernels, path):
    hdr = open("gated_mix__spectral_fnet__softmax_full_mha__prompt.s.ref").read().split("; Override launch")[0]
    out = hdr
    for (N, text, d, errs, (g, b, lds)) in kernels:
        out += f"; @launch kernel={N} grid=({g},1,1) block=({b},1,1) lds={lds}\n"
    out += '.amdgcn_target "amdgcn-amd-amdhsa--gfx950"\n.text\n'
    seen = set()
    for (N, text, d, errs, _) in kernels:
        if N in seen: continue
        seen.add(N)
        for e in errs: print("HAZARD", e)
        for l in text:
            out += (l if (l.endswith(":") or l.startswith(".")) else "    " + l) + "\n"
    out += '.section .rodata,"a"\n'
    seen = set()
    for (N, text, d, errs, _) in kernels:
        if N in seen: continue
        seen.add(N)
        out += d
    open(path, "w").write(out)

if __name__ == "__main__":
    if len(sys.argv) > 2 and sys.argv[2] == "stamps": STAMPS = True
    for a in sys.argv[3:]: EXP.add(a)
    ks = [gen_proj(), gen_mix(), gen_out()]
    build(ks, sys.argv[1] if len(sys.argv) > 1 else "k.s")
```

```python
import sys, struct
from asmlib import *

MB = 1 << 20
WS_AT, WS_BT, WS_Q, WS_K, WS_V, WS_O, WS_Y1, WS_Y2, WS_G = [i * 4 * MB for i in range(9)]
WS_SIZE = 40 * MB
LOG2E = 1.4426950408889634
QSCALE = (32 ** -0.5) * LOG2E

def f32bits(x):
    return struct.unpack("<I", struct.pack("<f", x))[0]

def srd(base, lo, hi, size):
    return [f"s_mov_b32 s{base}, s{lo}", f"s_mov_b32 s{base+1}, s{hi}",
            f"s_mov_b32 s{base+2}, {size}", f"s_mov_b32 s{base+3}, 0x00020000"]

def desc(name, nv, ns=102):
    acc = (nv + 3) // 4 * 4
    return f"""
.p2align 6
.amdhsa_kernel {name}
  .amdhsa_next_free_vgpr {nv}
  .amdhsa_next_free_sgpr {ns}
  .amdhsa_accum_offset {acc}
  .amdhsa_group_segment_fixed_size 0
  .amdhsa_kernarg_size 96
  .amdhsa_user_sgpr_count 2
  .amdhsa_user_sgpr_kernarg_segment_ptr 1
  .amdhsa_system_sgpr_workgroup_id_x 1
.end_amdhsa_kernel
"""

def mfma32(d, a, b, c=None):
    cs = vr(d, 16) if c is None else (str(c) if isinstance(c, str) else vr(c, 16))
    return f"v_mfma_f32_32x32x16_bf16 {vr(d,16)}, {vr(a,4)}, {vr(b,4)}, {cs}"
def mfma16(d, a, b):
    return f"v_mfma_f32_16x16x32_bf16 {vr(d,4)}, {vr(a,4)}, {vr(b,4)}, {vr(d,4)}"

STAMPS = False
EXP = set()
def stamp(i):
    if not STAMPS: return []
    return ([f"s_memrealtime s[68:69]"] if i == 0 else [f"s_memrealtime s[100:101]"]) + [f"s_memtime s[{70+2*i}:{71+2*i}]", "s_waitcnt lgkmcnt(0)"] + ([] if i == 0 else [f"s_sub_u32 s{71+2*i}, s100, s68"])
def stamp_dump(n, wgsel=0, slot=0, dbgoff=0):
    if not STAMPS: return []
    o = ["s_load_dwordx2 s[90:91], s[0:1], 80", "s_waitcnt lgkmcnt(0)",
         "s_mov_b32 s92, s90", "s_mov_b32 s93, s91", "s_mov_b32 s94, 256", "s_mov_b32 s95, 0x00020000",
         "s_mov_b64 exec, 1", f"s_mov_b32 s96, {dbgoff}", "s_cmp_lg_u32 s3, 0", "s_cselect_b32 s96, 0x1000, s96"]
    o += [f"s_cmp_lg_u32 s2, {wgsel}", "s_cselect_b32 s96, 0x1000, s96"]
    o += ["s_memrealtime s[98:99]", "s_load_dwordx2 s[60:61], s[0:1], 88", "s_waitcnt lgkmcnt(0)",
          "s_mov_b32 s62, 0x10000000", "s_mov_b32 s63, 0x00020000",
          "s_lshl_b32 s97, s2, 4", f"s_add_u32 s97, s97, {64*MB + slot*65536}",
          "v_mov_b32 v4, s68", "v_mov_b32 v5, s69", "v_mov_b32 v6, s98", "v_mov_b32 v7, s99", "v_mov_b32 v2, 0",
          "buffer_store_dwordx4 v[4:7], v2, s[60:63], s97 offen"]
    for i in range(n):
        o += [f"s_sub_u32 s97, s{70+2*i}, s70", "v_mov_b32 v1, s97", f"v_mov_b32 v2, {4*i}",
              "buffer_store_dword v1, v2, s[92:95], s96 offen"]
    o += ["s_cmp_lg_u32 s3, 0", "s_cselect_b32 s96, 0x1000, s96"]
    for i in range(1, n):
        o += [f"v_mov_b32 v1, s{71+2*i}", f"v_mov_b32 v2, {4*i + 32}", "buffer_store_dword v1, v2, s[92:95], s96 offen"]
    return o

def header(name):
    return [f".globl {name}", ".p2align 8", f".type {name},@function", f"{name}:"]

def gen_proj():
    N = "proj_kernel"
    STG = 53248
    L_HR, L_HI, L_W = 32768, 36864, 40960
    ACC = 96
    def acc(b, c): return ACC + (b * 5 + c) * 16
    def fr(s, i): return 32 + s * 28 + i * 4
    VX = list(range(1, 9)); VH = 9; VW = [10, 88, 89]
    XA0 = [11, 12, 13, 14]; HA0 = [15, 16, 17, 18]; WA0 = 19
    XA = [20, 21, 22, 23]; HA = [24, 25, 26, 27]; WA = 28
    VL16 = 29
    VG = 90
    T0, T1, T2, T3 = 30, 31, 92, 93
    P = []
    P += [f"s_cmp_ge_u32 s2, 256", f"s_cbranch_scc1 {N}_done"]
    P += stamp(0)
    P += ["s_load_dwordx2 s[4:5], s[0:1], 0", "s_load_dwordx4 s[32:35], s[0:1], 24",
          "s_load_dwordx2 s[36:37], s[0:1], 48",
          "s_load_dwordx2 s[40:41], s[0:1], 88"]
    P += ["v_lshrrev_b32 v1, 6, v0", "v_and_b32 v0, 63, v0", "v_readfirstlane_b32 s3, v1"]
    P += ["s_and_b32 s42, s2, 7", "s_lshr_b32 s43, s2, 3",
          "s_and_b32 s44, s42, 1", "s_lshl_b32 s44, s44, 2", "s_and_b32 s45, s43, 3", "s_add_u32 s44, s44, s45",
          "s_lshr_b32 s42, s42, 1", "s_lshl_b32 s42, s42, 3", "s_lshr_b32 s43, s43, 2", "s_add_u32 s43, s43, s42"]
    P += ["s_mov_b32 s42, s44"]
    P += ["s_lshl_b32 s44, s42, 8", "s_lshl_b32 s45, s3, 6", "s_add_u32 s44, s44, s45",
          "s_lshl_b32 s50, s3, 13", "s_lshl_b32 s51, s3, 10"]
    P += [f"v_lshrrev_b32 v{T0}, 3, v0", f"v_and_b32 v{T1}, 7, v0", f"v_lshrrev_b32 v{T2}, 4, v0",
          f"v_lshlrev_b32 v{VL16}, 4, v0"]
    P += [f"v_add_u32 v{T3}, s44, v{T0}", f"v_lshlrev_b32 v{T3}, 11, v{T3}",
          f"v_xor_b32 v{VX[0]}, v{T1}, v{T2}", f"v_lshlrev_b32 v{VX[0]}, 4, v{VX[0]}",
          f"v_add_u32 v{VX[0]}, v{VX[0]}, v{T3}"]
    for q in range(1, 8):
        if q % 2 == 1:
            P += [f"v_xor_b32 v{VX[q]}, 64, v{VX[0]}", f"v_add_u32 v{VX[q]}, {q*8*2048}, v{VX[q]}"]
        else:
            P += [f"v_add_u32 v{VX[q]}, {q*8*2048}, v{VX[0]}"]
    P += ["s_lshl_b32 s45, s43, 5", "s_lshl_b32 s46, s3, 3", "s_add_u32 s45, s45, s46",
          f"v_add_u32 v{T3}, s45, v{T0}", f"v_lshlrev_b32 v{T3}, 11, v{T3}",
          "s_lshl_b32 s46, s3, 2", f"v_add_u32 v{VH}, s46, v{T2}", f"v_and_b32 v{VH}, 7, v{VH}",
          f"v_xor_b32 v{VH}, v{VH}, v{T1}", f"v_lshlrev_b32 v{VH}, 4, v{VH}", f"v_add_u32 v{VH}, v{VH}, v{T3}"]
    P += [f"v_lshrrev_b32 v{T3}, 2, v0", "s_lshl_b32 s46, s3, 4", f"v_add_u32 v{T3}, s46, v{T3}",
          "s_movk_i32 s46, 6144", f"v_mul_lo_u32 v{T3}, v{T3}, s46",
          f"v_and_b32 v{VW[0]}, 3, v0", f"v_lshlrev_b32 v{VW[0]}, 4, v{VW[0]}", f"v_add_u32 v{VW[0]}, v{VW[0]}, v{T3}",
          "s_lshl_b32 s46, s43, 6", f"v_add_u32 v{VW[0]}, s46, v{VW[0]}",
          f"v_add_u32 v{VW[1]}, 2048, v{VW[0]}", f"v_add_u32 v{VW[2]}, 4096, v{VW[0]}"]
    P += ["s_waitcnt lgkmcnt(0)"]
    P += srd(8, 4, 5, 4 * MB) + srd(12, 32, 33, 2 * MB) + srd(16, 34, 35, 2 * MB) + srd(20, 36, 37, 6 * MB)
    def dma():
        out = []
        for q in range(8):
            out.append([f"s_add_u32 m0, s53, {1024*q}", f"buffer_load_dwordx4 v{VX[q]}, s[8:11], s45 offen lds"])
        out.append([f"s_add_u32 m0, s54, {L_HR}", f"buffer_load_dwordx4 v{VH}, s[12:15], s45 offen lds"])
        out.append([f"s_add_u32 m0, s54, {L_HI}", f"buffer_load_dwordx4 v{VH}, s[16:19], s45 offen lds"])
        for c in range(3):
            out.append([f"s_add_u32 m0, s54, {L_W + 4096*c}", f"buffer_load_dwordx4 v{VW[c]}, s[20:23], s46 offen lds"])
        return out
    def dma_adv():
        return ["s_add_u32 s47, s47, %d" % STG, "s_cmp_ge_u32 s47, %d" % (3 * STG), "s_cselect_b32 s47, 0, s47",
                "s_add_u32 s53, s47, s50", "s_add_u32 s54, s47, s51",
                "s_add_u32 s45, s45, 128", "s_and_b32 s45, s45, 0x7ff", "s_mul_i32 s46, s45, 3072"]
    P += ["s_mov_b32 s47, 0", "s_mov_b32 s45, 0", "s_mov_b32 s46, 0", "s_mov_b32 s53, s50", "s_mov_b32 s54, s51"]
    for a_, b_ in dma():
        P += [a_, "s_nop 0", b_]
    P += dma_adv()
    P += stamp(1)
    F = []
    F += srd(24, 40, 41, WS_SIZE)
    F += [f"v_lshrrev_b32 v{T0}, 5, v0", f"v_lshrrev_b32 v{T1}, 1, v0", f"v_and_b32 v{T1}, 7, v{T1}",
          f"v_xor_b32 v{T0}, v{T0}, v{T1}",
          f"v_and_b32 v{T1}, 31, v0", f"v_lshlrev_b32 v{T1}, 7, v{T1}"]
    for ks in range(4):
        F += [f"v_xor_b32 v{T2}, {2*ks}, v{T0}", f"v_lshlrev_b32 v{T2}, 4, v{T2}", f"v_add_u32 v{T2}, v{T2}, v{T1}",
              f"v_add_u32 v{XA0[ks]}, s50, v{T2}", f"v_add_u32 v{HA0[ks]}, {L_HR}, v{T2}"]
    F += [f"v_lshrrev_b32 v{T0}, 5, v0", f"v_lshlrev_b32 v{T0}, 3, v{T0}", f"v_bfe_u32 v{T1}, v0, 2, 2",
          f"v_add_u32 v{T0}, v{T0}, v{T1}", f"v_lshlrev_b32 v{T0}, 6, v{T0}",
          f"v_bfe_u32 v{T1}, v0, 4, 1", f"v_lshlrev_b32 v{T1}, 5, v{T1}", f"v_add_u32 v{T0}, v{T0}, v{T1}",
          f"v_and_b32 v{T1}, 3, v0", f"v_lshlrev_b32 v{T1}, 3, v{T1}", f"v_add_u32 v{T0}, v{T0}, v{T1}",
          f"v_add_u32 v{WA0}, {L_W}, v{T0}"]
    for i in range(4):
        F += [f"v_mov_b32 v{XA[i]}, v{XA0[i]}", f"v_mov_b32 v{HA[i]}, v{HA0[i]}"]
    F += [f"v_mov_b32 v{WA}, v{WA0}", "s_mov_b32 s48, 0", "s_mov_b32 s49, 0"]
    for r in range(ACC, ACC + 160):
        F += [f"v_mov_b32 v{r}, 0"]
    d1 = dma()
    per = (len(F) + len(d1) - 1) // len(d1)
    for i, (a_, b_) in enumerate(d1):
        chunk = F[i * per:(i + 1) * per]
        P += [a_] + chunk[:1] + [b_] + chunk[1:]
    P += dma_adv()
    def reads(s, ks):
        return [f"ds_read_b128 {vr(fr(s,0),4)}, v{XA[ks]}",
                f"ds_read_b128 {vr(fr(s,2),4)}, v{HA[ks]}",
                f"ds_read_b128 {vr(fr(s,3),4)}, v{HA[ks]} offset:4096",
                f"ds_read_b64_tr_b16 {vr(fr(s,4),2)}, v{WA} offset:{ks*1024}",
                f"ds_read_b64_tr_b16 {vr(fr(s,4)+2,2)}, v{WA} offset:{ks*1024+256}",
                f"ds_read_b64_tr_b16 {vr(fr(s,5),2)}, v{WA} offset:{4096+ks*1024}",
                f"ds_read_b64_tr_b16 {vr(fr(s,5)+2,2)}, v{WA} offset:{4096+ks*1024+256}",
                f"ds_read_b64_tr_b16 {vr(fr(s,6),2)}, v{WA} offset:{8192+ks*1024}",
                f"ds_read_b64_tr_b16 {vr(fr(s,6)+2,2)}, v{WA} offset:{8192+ks*1024+256}",
                f"ds_read_b128 {vr(fr(s,1),4)}, v{XA[ks]} offset:4096"]
    def mfmas(s):
        out = []
        for b in range(2):
            X = fr(s, b)
            if "p16" in EXP:
                for c in range(5):
                    out += [mfma16(acc(b, c) + 8 * s, X, fr(s, 2 + c)), mfma16(acc(b, c) + 8 * s + 4, X, fr(s, 2 + c))]
                continue
            out += [mfma32(acc(b, 0), X, fr(s, 2)), mfma32(acc(b, 1), X, fr(s, 3)),
                    mfma32(acc(b, 2), fr(s, 4), X), mfma32(acc(b, 3), fr(s, 5), X),
                    mfma32(acc(b, 4), X, fr(s, 6))]
        return out
    def rd_adv():
        o = ["s_add_u32 s48, s48, %d" % STG, "s_cmp_ge_u32 s48, %d" % (3 * STG), "s_cselect_b32 s48, 0, s48"]
        for i in range(4):
            o += [f"v_add_u32 v{XA[i]}, s48, v{XA0[i]}", f"v_add_u32 v{HA[i]}, s48, v{HA0[i]}"]
        o += [f"v_add_u32 v{WA}, s48, v{WA0}"]
        return o
    P += stamp(2) + stamp(3)
    P += ["s_waitcnt vmcnt(13)", "s_barrier"] + stamp(4) + reads(0, 0)
    def body(do_dma, last):
        o = []
        d = dma() if do_dma else []
        def mix(rd, dd):
            out = []
            for i, r in enumerate(rd):
                if i < len(dd): out += [dd[i][0], r, dd[i][1]]
                else: out += [r]
            return out
        o += ["s_waitcnt lgkmcnt(0)"]
        o += spread(mfmas(0), mix(reads(1, 1), d[:7]))
        o += ["s_waitcnt lgkmcnt(0)"]
        o += spread(mfmas(1), mix(reads(0, 2), d[7:]) + (dma_adv() if do_dma else []))
        o += ["s_waitcnt lgkmcnt(0)"]
        o += spread(mfmas(0), reads(1, 3) + ([] if last else rd_adv()))
        o += ["s_waitcnt lgkmcnt(0)"]
        m = mfmas(1)
        if last:
            o += m
        else:
            o += m[:2] + [f"s_waitcnt vmcnt({13 if do_dma else 0})", "s_barrier"] + spread(m[2:], reads(0, 0))
        return o
    B = body(True, False)
    loop_tail = ["s_add_u32 s49, s49, 1", "s_cmp_lt_u32 s49, 14", f"s_cbranch_scc1 {N}_loop"]
    B14 = body(False, False)
    B15 = body(False, True)
    E = stamp(5)
    E += ["s_nop 7"]
    if "touch" in EXP:
        E += ["s_load_dwordx4 s[64:67], s[0:1], 8", "s_lshl_b32 s60, s2, 2", "s_add_u32 s60, s60, s3", "s_lshl_b32 s60, s60, 13",
              f"v_lshlrev_b32 v{T0}, 7, v0", "s_waitcnt lgkmcnt(0)"]
        E += srd(32, 64, 65, 8 * MB) + srd(36, 66, 67, 8 * MB)
        E += [f"buffer_load_dword v{T1}, v{T0}, s[32:35], s60 offen", f"buffer_load_dword v{T2}, v{T0}, s[36:39], s60 offen"]
    E += ["s_lshl_b32 s45, s43, 17", "s_lshl_b32 s46, s42, 14", "s_add_u32 s45, s45, s46",
          "s_lshl_b32 s46, s3, 12", "s_add_u32 s45, s45, s46", f"s_mov_b32 s57, {hex(f32bits(QSCALE))}"]
    pk = 32
    for c in range(5):
        for b in range(2):
            a = acc(b, c)
            if c == 2:
                for r in range(16):
                    E += [f"v_mul_f32 v{a+r}, s57, v{a+r}"]
            for r in range(8):
                src = r if (c != 4 or "a32" in EXP) else [0, 1, 4, 5, 2, 3, 6, 7][r]
                E += [f"v_cvt_pk_bf16_f32 v{pk+r}, v{a+2*src}, v{a+2*src+1}"]
            if c < 2:
                E += ["s_nop 1"]
                for t in range(2):
                    E += [f"v_permlane32_swap_b32 v{pk+4*t}, v{pk+4*t+2}", f"v_permlane32_swap_b32 v{pk+4*t+1}, v{pk+4*t+3}"]
            for t in range(2):
                E += [f"buffer_store_dwordx4 {vr(pk+4*t,4)}, v{VL16}, s[24:27], s45 offen offset:{(2*b+t)*1024}"]
            pk = 32 + (pk - 32 + 8) % 56
        E += [f"s_add_u32 s45, s45, {4*MB}"]
    E += stamp(6) + ["s_waitcnt vmcnt(0)"] * STAMPS + stamp(7) + stamp_dump(8, 9)
    E += [f"{N}_done:", "s_endpgm"]
    text = header(N) + P + [f"{N}_loop:"] + B + loop_tail + B14 + B15 + E
    trace = P + B + loop_tail + B + loop_tail + B14 + B15 + E
    errs = check_trace(trace, N)
    return N, text, desc(N, 256), errs, (256, 256, 3 * STG)


ATT_OFF = 40.0
ATT_LMAX = 2.0 ** 60
def gen_attn(merged=False):
    N = "attn_kernel" if not merged else "mix_kernel_a"
    NST = 4; STG = 8192
    Q = {"A": 16, "B": 24}
    S = {"A": 32, "B": 48}
    Pk = {"A": 64, "B": 72}
    O = {"A": 80, "B": 96}
    L = {"A": 112, "B": 116}
    CN = {"A": 120, "B": 136}
    KF = [152, 160]
    VF = [168, 176]
    ONES = 184
    VL16 = 1; VRD = 2; VG = {"A": 3, "B": 4}; T0, T1, T2, T3 = 5, 6, 7, 8
    P = []
    if not merged:
        P += ["s_cmp_ge_u32 s2, 256", f"s_cbranch_scc1 {N}_done"]
        P += ["v_lshrrev_b32 v1, 6, v0", "v_and_b32 v0, 63, v0", "v_readfirstlane_b32 s3, v1"]
    P += stamp(0)
    P += ["s_load_dwordx2 s[40:41], s[0:1], 88", "s_load_dwordx2 s[4:5], s[0:1], 0", "s_load_dwordx2 s[38:39], s[0:1], 64"]
    P += ["s_and_b32 s42, s2, 7", "s_lshr_b32 s43, s2, 3", "s_lshl_b32 s42, s42, 2", "s_lshr_b32 s44, s43, 3",
          "s_add_u32 s42, s42, s44",
          "s_and_b32 s43, s43, 7",
          "s_lshl_b32 s43, s43, 3", "s_lshl_b32 s44, s3, 1", "s_add_u32 s43, s43, s44",
          "s_lshl_b32 s44, s42, 17"]
    P += [f"v_lshlrev_b32 v{VL16}, 4, v0"]
    P += ["s_waitcnt lgkmcnt(0)"] + srd(24, 40, 41, WS_SIZE) + srd(8, 4, 5, 4 * MB) + srd(28, 38, 39, 2048)
    P += ["s_lshl_b32 s45, s43, 11", "s_add_u32 s45, s45, s44", f"s_add_u32 s45, s45, {WS_Q}",
          f"s_add_u32 s46, s44, {WS_K}", f"s_add_u32 s47, s44, {WS_V}"]
    if "rot" in EXP: P += ["s_bfe_u32 s58, s2, 0x30003", "s_lshl_b32 s58, s58, 14"]
    else: P += ["s_mov_b32 s58, 0"]
    P += ["s_add_u32 s59, s46, s58"]
    for i in range(4):
        P += [f"buffer_load_dwordx4 {vr(16+4*i,4)}, v{VL16}, s[24:27], s45 offen offset:{1024*i}"]
    for i in range(4):
        P += [f"buffer_load_dwordx4 {vr(KF[0]+4*i,4)}, v{VL16}, s[24:27], s59 offen offset:{1024*i}"]
    P += ["s_lshl_b32 s51, s3, 10", "s_add_u32 s61, s58, s51", "s_add_u32 s60, s61, 2048", "s_and_b32 s60, s60, 0x1ffff",
          "s_add_u32 s48, s46, s60", "s_add_u32 s49, s47, s61", "s_mov_b32 s50, s51"]
    def dma():
        return [["s_mov_b32 m0, s50", f"buffer_load_dwordx4 v{VL16}, s[24:27], s48 offen lds"],
                ["s_add_u32 m0, s50, 4096", f"buffer_load_dwordx4 v{VL16}, s[24:27], s49 offen lds"]]
    def dma_adv():
        return ["s_add_u32 s60, s60, 4096", "s_and_b32 s60, s60, 0x1ffff", "s_add_u32 s61, s61, 4096", "s_and_b32 s61, s61, 0x1ffff",
                "s_add_u32 s48, s46, s60", "s_add_u32 s49, s47, s61", f"s_add_u32 s50, s50, {STG}",
                f"s_and_b32 s50, s50, {NST*STG-1}"]
    for t in range(NST - 1):
        for a, b in dma(): P += [a, "s_nop 0", b]
        P += dma_adv()
    GX = 192
    P += ["s_lshl_b32 s62, s2, 3", "s_lshl_b32 s45, s3, 1", "s_add_u32 s62, s62, s45", "s_lshl_b32 s45, s62, 11",
          f"v_lshlrev_b32 v{T0}, 5, v0"]
    P += [f"buffer_load_dwordx4 v[{GX}:{GX+3}], v{T0}, s[8:11], s45 offen",
          f"buffer_load_dwordx4 v[{GX+4}:{GX+7}], v{T0}, s[8:11], s45 offen offset:16",
          f"buffer_load_dwordx4 v[{GX+8}:{GX+11}], v{T0}, s[8:11], s45 offen offset:2048",
          f"buffer_load_dwordx4 v[{GX+12}:{GX+15}], v{T0}, s[8:11], s45 offen offset:2064",
          f"buffer_load_dwordx4 v[{GX+16}:{GX+19}], v{T0}, s[28:31], 0 offen",
          f"buffer_load_dwordx4 v[{GX+20}:{GX+23}], v{T0}, s[28:31], 0 offen offset:16"]
    for r in list(range(80, 120)) + list(range(Pk["B"], Pk["B"] + 8)) + list(range(VF[0], VF[0] + 16)):
        P += [f"v_mov_b32 v{r}, 0"]
    P += [f"v_bfe_u32 v{T0}, v0, 2, 1", f"v_bfe_u32 v{T1}, v0, 4, 1", f"v_cmp_eq_u32 vcc, v{T0}, v{T1}",
          f"v_mov_b32 v{T2}, 0x3f803f80", "s_nop 0", f"v_cndmask_b32 v{ONES}, 0, v{T2}, vcc"]
    for i in range(1, 4): P += [f"v_mov_b32 v{ONES+i}, v{ONES}"]
    P += [f"v_mov_b32 v{VRD}, v{VL16}", "s_mov_b32 s52, 0", "s_mov_b32 s53, 0", "s_mov_b32 s63, 0x3f803f80"]
    P += [f"s_waitcnt vmcnt({2*(NST-1)+6})"]
    for X in "AB":
        P += [mfma32(S[X], KF[0], Q[X], "0"), mfma32(S[X], KF[0] + 4, Q[X] + 4),
              mfma32(CN[X], KF[1], Q[X], "0"), mfma32(CN[X], KF[1] + 4, Q[X] + 4)]
    P += ["s_nop 15"]
    for X in "AB":
        m = T0 if X == "A" else T1
        P += [f"v_max3_f32 v{m}, v{S[X]}, v{S[X]+1}, v{S[X]+2}"]
        vals = [S[X] + i for i in range(3, 16)] + [CN[X] + i for i in range(16)]
        for i in range(0, 28, 2):
            P += [f"v_max3_f32 v{m}, v{m}, v{vals[i]}, v{vals[i+1]}"]
        P += [f"v_max_f32 v{m}, v{m}, v{vals[28]}"]
    P += [f"v_mov_b32 v{T2}, v{T0}", f"v_mov_b32 v{T3}, v{T1}", "s_nop 1",
          f"v_permlane32_swap_b32 v{T0}, v{T2}", f"v_permlane32_swap_b32 v{T1}, v{T3}",
          f"v_max_f32 v{T0}, v{T0}, v{T2}", f"v_max_f32 v{T1}, v{T1}, v{T3}",
          f"s_mov_b32 s54, {hex(f32bits(-ATT_OFF))}",
          f"v_sub_f32 v{T0}, s54, v{T0}", f"v_sub_f32 v{T1}, s54, v{T1}"]
    for i in range(16):
        P += [f"v_mov_b32 v{CN['A']+i}, v{T0}", f"v_mov_b32 v{CN['B']+i}, v{T1}"]
    P += ["s_nop 1", mfma32(S["A"], KF[0], Q["A"], CN["A"]), mfma32(S["A"], KF[0] + 4, Q["A"] + 4)]
    P += stamp(1)
    def slot(X, kset_qk, vset_pv, rd):
        Y = "B" if X == "A" else "A"
        mf = [mfma32(S[Y], KF[kset_qk], Q[Y], CN[Y]), mfma32(S[Y], KF[kset_qk] + 4, Q[Y] + 4),
              mfma32(O[Y], VF[vset_pv], Pk[Y]), mfma16(L[Y], ONES, Pk[Y]),
              mfma32(O[Y], VF[vset_pv] + 4, Pk[Y] + 4), mfma16(L[Y], ONES, Pk[Y] + 4)]
        if "a16" in EXP:
            def two(d, a, b): return [mfma16(d, a, b), mfma16(d + 4, a, b)]
            def twoc(d, a, b, c): return [f"v_mfma_f32_16x16x32_bf16 {vr(d,4)}, {vr(a,4)}, {vr(b,4)}, {vr(c,4)}", f"v_mfma_f32_16x16x32_bf16 {vr(d+4,4)}, {vr(a,4)}, {vr(b+4,4)}, {vr(c,4)}"]
            mf = [twoc(S[Y], KF[kset_qk], Q[Y], CN[Y]), twoc(S[Y] + 8, KF[kset_qk] + 4, Q[Y], CN[Y]),
                  two(O[Y], VF[vset_pv], Pk[Y]), [mfma16(L[Y], ONES, Pk[Y])],
                  two(O[Y] + 8, VF[vset_pv] + 4, Pk[Y] + 4), [mfma16(L[Y], ONES, Pk[Y] + 4)]]
        e = [f"v_exp_f32 v{S[X]+i}, v{S[X]+i}" for i in range(16)]
        if "noexp" in EXP: e = [f"v_mov_b32 v{S[X]+i}, v{S[X]+i}" for i in range(16)]
        c = [f"v_cvt_pk_bf16_f32 v{Pk[X]+j}, v{S[X]+2*j}, v{S[X]+2*j+1}" for j in range(8)]
        va = e[0:3] + [c[0]] + e[3:5] + [c[1]] + e[5:7] + [c[2]] + e[7:9] + [c[3]] + e[9:11] + [c[4]] + e[11:13] + [c[5]] + e[13:16] + [c[6], c[7]]
        o = []
        if "ldot" in EXP:
            mf = [mf[0], mf[1], mf[2], mf[4]]
            dots = [f"v_dot2c_f32_bf16 v{L[Y]+(j%4)}, s63, v{Pk[Y]+j}" for j in range(8)]
            for i in range(4):
                o += [mf[i]]
                if i < 2: o += rd[2*i:2*i+2]
                o += va[6*i:6*i+3] + dots[2*i:2*i+1] + va[6*i+3:6*i+6] + dots[2*i+1:2*i+2]
            return o
        if "ladd" in EXP:
            mf = [mf[0], mf[1], mf[2], mf[4]]
            adds = [f"v_add_f32 v{L[X]+(i%4)}, v{L[X]+(i%4)}, v{S[X]+i}" for i in range(16)]
            va2 = []
            ai = 0
            for k_, ins in enumerate(va):
                va2.append(ins)
                if ins.startswith("v_cvt"):
                    va2 += adds[ai:ai+2]; ai += 2
            for i in range(4):
                o += [mf[i]]
                if i < 2: o += rd[2*i:2*i+2]
                o += va2[10*i:10*i+10]
            return o
        for i in range(6):
            if isinstance(mf[i], list):
                o += [mf[i][0]] + va[4*i:4*i+2]
                if len(mf[i]) > 1: o += [mf[i][1]]
                if i < 2: o += rd[2*i:2*i+2]
                o += va[4*i+2:4*i+4]
                continue
            o += [mf[i]]
            if i < 2: o += rd[2*i:2*i+2]
            o += va[4*i:4*i+4]
        return o
    def rds(kb_par, half):
        return [f"ds_read_b128 {vr(KF[1-kb_par],4)}, v{VRD} offset:{half*2048}",
                f"ds_read_b128 {vr(KF[1-kb_par]+4,4)}, v{VRD} offset:{half*2048+1024}",
                f"ds_read_b128 {vr(VF[kb_par],4)}, v{VRD} offset:{4096+half*2048}",
                f"ds_read_b128 {vr(VF[kb_par]+4,4)}, v{VRD} offset:{4096+half*2048+1024}"]
    B = [f"s_waitcnt vmcnt({2*(NST-2)})", "s_barrier"]
    d = dma()
    B += [d[0][0], "s_nop 0", d[0][1], d[1][0], "s_nop 0", d[1][1]] + dma_adv()
    B += slot("A", 0, 1, rds(0, 0))
    B += ["s_waitcnt lgkmcnt(0)"]
    B += slot("B", 1, 0, [])
    B += slot("A", 1, 0, rds(1, 1))
    B += ["s_waitcnt lgkmcnt(0)"]
    B += [f"s_add_u32 s53, s53, {STG}", f"s_and_b32 s53, s53, {NST*STG-1}", f"v_add_u32 v{VRD}, s53, v{VL16}"]
    B += slot("B", 0, 1, [])
    tail = ["s_add_u32 s52, s52, 1", "s_cmp_lt_u32 s52, 32", f"s_cbranch_scc1 {N}_loop"]
    E = stamp(2)
    if "ldot" in EXP:
        E += ["s_nop 1", mfma32(O["B"], VF[1], Pk["B"]), mfma32(O["B"], VF[1] + 4, Pk["B"] + 4)]
        E += [f"v_dot2c_f32_bf16 v{L['B']+(j%4)}, s63, v{Pk['B']+j}" for j in range(8)] + ["s_nop 3"]
        for X in "AB":
            E += [f"v_add_f32 v{L[X]}, v{L[X]}, v{L[X]+1}", f"v_add_f32 v{L[X]+2}, v{L[X]+2}, v{L[X]+3}", f"v_add_f32 v{L[X]}, v{L[X]}, v{L[X]+2}",
                  f"v_mov_b32 v{T1}, v{L[X]}", "s_nop 1", f"v_permlane32_swap_b32 v{L[X]}, v{T1}", f"v_add_f32 v{L[X]}, v{L[X]}, v{T1}"]
        E += ["s_nop 7"]
    else:
        E += ["s_nop 1", mfma32(O["B"], VF[1], Pk["B"]), mfma16(L["B"], ONES, Pk["B"]),
              mfma32(O["B"], VF[1] + 4, Pk["B"] + 4), mfma16(L["B"], ONES, Pk["B"] + 4), "s_nop 15"]
    E += [f"s_mov_b32 s54, {hex(f32bits(ATT_LMAX))}",
          f"v_cmp_gt_f32 vcc, s54, v{L['A']}", f"v_cmp_gt_f32 s[56:57], s54, v{L['B']}", "s_nop 1",
          "s_and_b64 vcc, vcc, s[56:57]", "s_cmp_eq_u64 vcc, exec", f"s_cbranch_scc0 {N}_fallback"]
    E2 = [f"{N}_final:"]
    E2 += ["s_lshl_b32 s45, s43, 16", "s_lshl_b32 s46, s42, 11", "s_add_u32 s45, s45, s46", f"s_add_u32 s45, s45, {WS_O}"]
    for X in "AB":
        E2 += [f"v_rcp_f32 v{T0}, v{L[X]}", "s_nop 0"]
        for i in range(16):
            E2 += [f"v_mul_f32 v{O[X]+i}, v{O[X]+i}, v{T0}"]
        for j in range(8):
            E2 += [f"v_cvt_pk_bf16_f32 v{S[X]+j}, v{O[X]+2*j}, v{O[X]+2*j+1}"]
        for t in range(2):
            E2 += [f"buffer_store_dwordx4 {vr(S[X]+4*t,4)}, v{VL16}, s[24:27], s45 offen offset:{1024*t}"]
        E2 += ["s_add_u32 s45, s45, 65536"]
    A0, A1 = 64, 65
    E2 += ["s_waitcnt vmcnt(4)", f"v_mov_b32 v{A0}, 0", f"v_mov_b32 v{A1}, 0"]
    for i in range(8):
        w = GX + 16 + i
        E2 += [f"v_lshlrev_b32 v66, 16, v{w}", f"v_and_b32 v67, 0xffff0000, v{w}"]
        for r, a in ((0, A0), (1, A1)):
            x = GX + 8 * r + i
            E2 += [f"v_lshlrev_b32 v68, 16, v{x}", f"v_and_b32 v69, 0xffff0000, v{x}",
                  "v_mul_f32 v68, v68, v66", "v_mul_f32 v69, v69, v67",
                  "v_cvt_pk_bf16_f32 v70, v68, v69",
                  "v_lshlrev_b32 v68, 16, v70", "v_and_b32 v69, 0xffff0000, v70",
                  f"v_add_f32 v{a}, v{a}, v68", f"v_add_f32 v{a}, v{a}, v69"]
    for off in (0x041F, 0x081F, 0x101F, 0x201F, 0x401F):
        E2 += [f"ds_swizzle_b32 v66, v{A0} offset:{off}", f"ds_swizzle_b32 v67, v{A1} offset:{off}",
              "s_waitcnt lgkmcnt(0)", f"v_add_f32 v{A0}, v{A0}, v66", f"v_add_f32 v{A1}, v{A1}, v67"]
    E2 += ["s_nop 0", f"v_readlane_b32 s55, v{A0}, 32", f"v_readlane_b32 s56, v{A1}, 32", "s_nop 1",
          f"v_add_f32 v{A0}, s55, v{A0}", f"v_add_f32 v{A1}, s56, v{A1}",
          "v_cmp_eq_u32 vcc, 1, v0", "s_nop 1", f"v_cndmask_b32 v{A0}, v{A0}, v{A1}, vcc",
          f"v_cvt_pk_bf16_f32 v{A0}, v{A0}, v{A0}", f"v_lshlrev_b32 v{A0}, 16, v{A0}",
          f"v_mul_f32 v{A0}, {hex(f32bits(-LOG2E))}, v{A0}", f"v_exp_f32 v{A0}, v{A0}", "s_nop 0",
          f"v_add_f32 v{A0}, 1.0, v{A0}", f"v_rcp_f32 v{A0}, v{A0}", "s_nop 0",
          f"v_cvt_pk_bf16_f32 v{A0}, v{A0}, v{A0}", f"v_lshlrev_b32 v{VG['A']}, 16, v{A0}"]
    E2 += [f"v_lshlrev_b32 v{T0}, 2, v0", "s_lshl_b32 s45, s62, 2", f"s_add_u32 s45, s45, {WS_G}",
           "v_cmp_gt_u32 vcc, 2, v0", "s_and_saveexec_b64 s[58:59], vcc",
           f"buffer_store_dword v{VG['A']}, v{T0}, s[24:27], s45 offen", "s_mov_b64 exec, s[58:59]"]
    E2 += stamp(3) + ["s_waitcnt vmcnt(0)"] + stamp(4) + stamp_dump(5, 9, 1)
    E2 += [f"{N}_done:", "s_endpgm"]
    F = [f"{N}_fallback:", "s_waitcnt vmcnt(0)"]
    M = {"A": 9, "B": 10}; AL = 11
    for X in "AB":
        F += [f"v_mov_b32 v{M[X]}, 0xff7fffff", f"v_mov_b32 v{L[X]}, 0"]
        for i in range(16): F += [f"v_mov_b32 v{O[X]+i}, 0"]
    F += [f"s_add_u32 s46, s44, {WS_K}", f"s_add_u32 s47, s44, {WS_V}", "s_mov_b32 s52, 0"]
    FB = []
    FB += [f"buffer_load_dwordx4 {vr(KF[0],4)}, v{VL16}, s[24:27], s46 offen",
           f"buffer_load_dwordx4 {vr(KF[0]+4,4)}, v{VL16}, s[24:27], s46 offen offset:1024",
           f"buffer_load_dwordx4 {vr(VF[0],4)}, v{VL16}, s[24:27], s47 offen",
           f"buffer_load_dwordx4 {vr(VF[0]+4,4)}, v{VL16}, s[24:27], s47 offen offset:1024",
           "s_waitcnt vmcnt(0)"]
    for X in "AB":
        FB += [mfma32(S[X], KF[0], Q[X], "0"), mfma32(S[X], KF[0] + 4, Q[X] + 4), "s_nop 15"]
        FB += [f"v_max3_f32 v{T0}, v{S[X]}, v{S[X]+1}, v{M[X]}"]
        for i in range(2, 16, 2): FB += [f"v_max3_f32 v{T0}, v{T0}, v{S[X]+i}, v{S[X]+i+1}"]
        FB += [f"v_mov_b32 v{T1}, v{T0}", "s_nop 1", f"v_permlane32_swap_b32 v{T0}, v{T1}", f"v_max_f32 v{T0}, v{T0}, v{T1}",
               f"v_sub_f32 v{AL}, v{M[X]}, v{T0}", f"v_exp_f32 v{AL}, v{AL}", f"v_mov_b32 v{M[X]}, v{T0}",
               f"v_mul_f32 v{L[X]}, v{L[X]}, v{AL}"]
        for i in range(16):
            FB += [f"v_sub_f32 v{S[X]+i}, v{S[X]+i}, v{T0}", f"v_exp_f32 v{S[X]+i}, v{S[X]+i}", f"v_mul_f32 v{O[X]+i}, v{O[X]+i}, v{AL}"]
        for j in range(8):
            FB += [f"v_cvt_pk_bf16_f32 v{Pk[X]+j}, v{S[X]+2*j}, v{S[X]+2*j+1}",
                   f"v_lshlrev_b32 v{T1}, 16, v{Pk[X]+j}", f"v_and_b32 v{T2}, 0xffff0000, v{Pk[X]+j}",
                   f"v_add_f32 v{L[X]}, v{L[X]}, v{T1}", f"v_add_f32 v{L[X]}, v{L[X]}, v{T2}"]
        FB += ["s_nop 1", mfma32(O[X], VF[0], Pk[X]), mfma32(O[X], VF[0] + 4, Pk[X] + 4)]
    FB += ["s_nop 15", "s_add_u32 s46, s46, 2048", "s_add_u32 s47, s47, 2048", "s_add_u32 s52, s52, 1", "s_cmp_lt_u32 s52, 64",
           f"s_cbranch_scc1 {N}_fbloop"]
    FE = []
    for X in "AB":
        FE += [f"v_mov_b32 v{T1}, v{L[X]}", "s_nop 1", f"v_permlane32_swap_b32 v{L[X]}, v{T1}", f"v_add_f32 v{L[X]}, v{L[X]}, v{T1}"]
    FE += [f"s_branch {N}_final"]
    text = (header(N) if not merged else []) + P + [f"{N}_loop:"] + B + tail + E + E2 + F + [f"{N}_fbloop:"] + FB + FE
    errs = check_trace(P + B + tail + B + tail + E + E2, N)
    errs += check_trace(P + B + tail + E + F + FB + FB + FE + E2, N + "_fb")
    return N, text, desc(N, 216), errs, (256, 256, NST * STG)


def mix(rd, dd):
    out = []
    for i, r in enumerate(rd):
        if i < len(dd): out += [dd[i][0], r, dd[i][1]] if dd[i][0] else [r, dd[i][1]]
        else: out += [r]
    for j in range(len(rd), len(dd)):
        out += ([dd[j][0], "s_nop 0"] if dd[j][0] else []) + [dd[j][1]]
    return out

def kloop(N, nkt, nst, ndma, dma, dma_adv, reads, mfmas, rd_adv, cnt_sreg, npre=1, late=0):
    pre = [f"s_waitcnt vmcnt({ndma*(nst-2-late)})", "s_barrier"] + reads(0, 0) + [f"s_mov_b32 s{cnt_sreg}, 0"]
    for i in range(late):
        pre += mix([], dma()) + dma_adv()
    def body(do_dma, last, inflight):
        o = []
        d = dma() if do_dma else []
        h = (len(d) + 1) // 2
        o += ["s_waitcnt lgkmcnt(0)"]
        o += spread(mfmas(0, 0), mix(reads(1, 1), d[:h]))
        o += ["s_waitcnt lgkmcnt(0)"]
        o += spread(mfmas(1, 1), mix(reads(0, 2), d[h:]) + (dma_adv() if do_dma else []))
        o += ["s_waitcnt lgkmcnt(0)"]
        o += spread(mfmas(0, 2), reads(1, 3) + ([] if last else rd_adv()))
        o += ["s_waitcnt lgkmcnt(0)"]
        m = mfmas(1, 3)
        if last:
            o += m
        else:
            o += m[:npre] + [f"s_waitcnt vmcnt({inflight*ndma})", "s_barrier"] + spread(m[npre:], reads(0, 0))
        return o
    nmain = nkt - (nst - 1)
    B = body(True, False, nst - 2)
    tail = [f"s_add_u32 s{cnt_sreg}, s{cnt_sreg}, 1", f"s_cmp_lt_u32 s{cnt_sreg}, {nmain}", f"s_cbranch_scc1 {N}_loop"]
    rest = []
    for i in range(nst - 1):
        last = (i == nst - 2)
        rest += body(False, last, nst - 3 - i if not last else 0)
    text = [f"{N}_loop:"] + B + tail + rest
    trace = B + tail + B + tail + rest
    return pre, text, trace

def gen_ygemm(merged=False):
    N = "ygemm_kernel" if not merged else "mix_kernel_y"
    NST = 4; STG = 32768; L_B = 16384
    LB0 = 32768 if merged else 0
    ACC = 64
    def acc(i, j): return ACC + (i * 2 + j) * 16
    def fr(s, i): return 32 + s * 16 + i * 4
    VL16 = 1; VB = [2, 3, 4, 5]; AA0 = 6; BA0 = [7, 8, 9, 10]; AA = 11; BA = [12, 13, 14, 15]
    T0, T1, T2, T3 = 16, 17, 18, 19
    P = []
    if not merged:
        P += ["s_cmp_ge_u32 s2, 256", f"s_cbranch_scc1 {N}_done"]
        P += ["v_lshrrev_b32 v1, 6, v0", "v_and_b32 v0, 63, v0", "v_readfirstlane_b32 s3, v1"]
    P += stamp(0)
    P += ["s_and_b32 s42, s2, 1",
          "s_load_dwordx4 s[4:7], s[0:1], 8", "s_load_dwordx2 s[40:41], s[0:1], 88"]
    P += ["s_bfe_u32 s44, s2, 0x10001", "s_lshl_b32 s44, s44, 2", "s_bfe_u32 s45, s2, 0x20003", "s_add_u32 s44, s44, s45",
          "s_bfe_u32 s45, s2, 0x10002", "s_lshl_b32 s45, s45, 3", "s_lshr_b32 s46, s2, 5", "s_add_u32 s45, s45, s46"]
    P += [f"v_lshlrev_b32 v{VL16}, 4, v0"]
    P += [f"v_lshrrev_b32 v{T0}, 3, v0", f"v_and_b32 v{T1}, 7, v0", f"v_lshrrev_b32 v{T2}, 4, v0",
          "s_lshl_b32 s46, s45, 7", "s_lshl_b32 s47, s3, 5", "s_add_u32 s46, s46, s47",
          f"v_add_u32 v{T3}, s46, v{T0}", f"v_lshlrev_b32 v{T3}, 12, v{T3}",
          f"v_xor_b32 v{VB[0]}, v{T1}, v{T2}", f"v_lshlrev_b32 v{VB[0]}, 4, v{VB[0]}", f"v_add_u32 v{VB[0]}, v{VB[0]}, v{T3}"]
    for q in range(1, 4):
        if q % 2: P += [f"v_xor_b32 v{VB[q]}, 64, v{VB[0]}", f"v_add_u32 v{VB[q]}, {q*8*4096}, v{VB[q]}"]
        else: P += [f"v_add_u32 v{VB[q]}, {q*8*4096}, v{VB[0]}"]
    P += ["s_and_b32 s46, s3, 1", "s_lshl_b32 s46, s46, 13", f"s_add_u32 s46, s46, {LB0}", f"v_add_u32 v{AA0}, s46, v{VL16}",
          "s_lshr_b32 s46, s3, 1", "s_lshl_b32 s46, s46, 13", f"s_add_u32 s46, s46, {L_B + LB0}"]
    P += [f"v_lshrrev_b32 v{T0}, 5, v0", f"v_lshrrev_b32 v{T1}, 1, v0", f"v_and_b32 v{T1}, 7, v{T1}",
          f"v_xor_b32 v{T0}, v{T0}, v{T1}", f"v_and_b32 v{T1}, 31, v0", f"v_lshlrev_b32 v{T1}, 7, v{T1}",
          f"v_add_u32 v{T1}, s46, v{T1}"]
    for ks in range(4):
        P += [f"v_xor_b32 v{T2}, {2*ks}, v{T0}", f"v_lshlrev_b32 v{T2}, 4, v{T2}", f"v_add_u32 v{BA0[ks]}, v{T2}, v{T1}",
              f"v_mov_b32 v{BA[ks]}, v{BA0[ks]}"]
    P += [f"v_mov_b32 v{AA}, v{AA0}"]
    P += ["s_waitcnt lgkmcnt(0)", "s_cmp_eq_u32 s42, 0", "s_cselect_b32 s4, s4, s6", "s_cselect_b32 s5, s5, s7"] + srd(8, 4, 5, 8 * MB) + srd(24, 40, 41, WS_SIZE)
    P += ["s_lshl_b32 s47, s44, 2", "s_add_u32 s47, s47, s3", "s_lshl_b32 s47, s47, 17",
          f"s_mul_i32 s46, s42, {4*MB}", "s_add_u32 s47, s47, s46",
          "s_mov_b32 s48, 0", "s_lshl_b32 s50, s3, 12", "s_mov_b32 s49, s50", "s_mov_b32 s51, 0", "s_mov_b32 s57, s47"]
    if "yrot1" in EXP or "yrot2" in EXP:
        P += ["s_lshr_b32 s48, s2, 5", f"s_lshl_b32 s48, s48, {8 if 'yrot2' in EXP else 7}", "s_lshl_b32 s56, s48, 5", "s_add_u32 s47, s57, s56"]
    if "rot" in EXP:
        P += ["s_lshr_b32 s48, s2, 5", "s_lshl_b32 s48, s48, 2", "s_bfe_u32 s56, s2, 0x20003", "s_lshl_b32 s56, s56, 3",
              "s_add_u32 s48, s48, s56", "s_and_b32 s48, s48, 31", "s_lshl_b32 s48, s48, 7",
              "s_lshl_b32 s56, s48, 5", "s_add_u32 s47, s57, s56"]
    def dma():
        o = [[f"s_add_u32 m0, s49, {LB0}", f"buffer_load_dwordx4 v{VL16}, s[24:27], s47 offen lds"]]
        for u in range(1, 4):
            o.append([None, f"buffer_load_dwordx4 v{VL16}, s[24:27], s47 offen offset:{1024*u} lds"])
        for q in range(4):
            o.append([f"s_add_u32 m0, s49, {LB0 + L_B + 1024*q}", f"buffer_load_dwordx4 v{VB[q]}, s[8:11], s48 offen lds"])
        if "noydma" in EXP: o = [[a_, "s_nop 0"] for a_, b_ in o]
        return o
    def dma_adv():
        return ["s_add_u32 s48, s48, 128", "s_and_b32 s48, s48, 0xfff", "s_lshl_b32 s56, s48, 5", "s_add_u32 s47, s57, s56",
                f"s_add_u32 s49, s49, {STG}", f"s_and_b32 s49, s49, {NST*STG-1}"]
    LATE = 1 if "late1" in EXP else (2 if "late2" in EXP else 0)
    for t in range(NST - 1 - LATE):
        P += mix([], dma()) + dma_adv()
    for r in range(ACC, ACC + 64): P += [f"v_mov_b32 v{r}, 0"]
    def reads(s_, ks):
        if "noyrd" in EXP: return ["s_nop 0"] * 4
        return [f"ds_read_b128 {vr(fr(s_,0),4)}, v{AA} offset:{ks*1024}",
                f"ds_read_b128 {vr(fr(s_,2),4)}, v{BA[ks]}",
                f"ds_read_b128 {vr(fr(s_,3),4)}, v{BA[ks]} offset:4096",
                f"ds_read_b128 {vr(fr(s_,1),4)}, v{AA} offset:{4096+ks*1024}"]
    def mfmas(s_, ks=0):
        if "noy" in EXP: return ["s_nop 0"] * 4
        if "y16" in EXP:
            o = []
            for (i, j) in ((0, 0), (0, 1), (1, 0), (1, 1)):
                o += [mfma16(acc(i, j) + 8 * s_, fr(s_, i), fr(s_, 2 + j)), mfma16(acc(i, j) + 8 * s_ + 4, fr(s_, i), fr(s_, 2 + j))]
            return o
        return [mfma32(acc(0, 0), fr(s_, 0), fr(s_, 2)), mfma32(acc(0, 1), fr(s_, 0), fr(s_, 3)),
                mfma32(acc(1, 0), fr(s_, 1), fr(s_, 2)), mfma32(acc(1, 1), fr(s_, 1), fr(s_, 3))]
    def rd_adv():
        o = [f"s_add_u32 s51, s51, {STG}", f"s_and_b32 s51, s51, {NST*STG-1}", f"v_add_u32 v{AA}, s51, v{AA0}"]
        for i in range(4): o += [f"v_add_u32 v{BA[i]}, s51, v{BA0[i]}"]
        return o
    P += stamp(1)
    pre, ktext, ktrace = kloop(N, 32, NST, 8, dma, dma_adv, reads, mfmas, rd_adv, 52, late=LATE)
    E = ["s_nop 15"] + stamp(2)
    E += ["s_lshl_b32 s46, s44, 2", "s_and_b32 s47, s3, 1", "s_lshl_b32 s47, s47, 1", "s_add_u32 s46, s46, s47", "s_lshl_b32 s46, s46, 17",
          "s_lshl_b32 s47, s45, 2", "s_lshr_b32 s48, s3, 1", "s_lshl_b32 s48, s48, 1", "s_add_u32 s47, s47, s48", "s_lshl_b32 s47, s47, 11",
          "s_add_u32 s46, s46, s47", f"s_mul_i32 s47, s42, {4*MB}", "s_add_u32 s46, s46, s47", f"s_add_u32 s46, s46, {WS_Y1}"]
    pk = 32
    for i in range(2):
        for j in range(2):
            a = acc(i, j)
            for r in range(8): E += [f"v_cvt_pk_bf16_f32 v{pk+r}, v{a+2*r}, v{a+2*r+1}"]
            for t in range(2):
                E += [f"buffer_store_dwordx4 {vr(pk+4*t,4)}, v{VL16}, s[24:27], s46 offen offset:{j*2048+t*1024}"]
            pk = 32 + (pk - 32 + 8) % 32
        E += ["s_add_u32 s46, s46, 131072"]
    E += stamp(3) + ["s_waitcnt vmcnt(0)"] * STAMPS + stamp(4) + stamp_dump(5, 9, 2, 128 if merged else 0)
    E += [f"{N}_done:", "s_endpgm"]
    text = (header(N) if not merged else []) + P + pre + ktext + E
    errs = check_trace(P + pre + ktrace + E, N)
    return N, text, desc(N, 128), errs, (256, 256, NST * STG)

def gen_ygemm16(merged=False):
    N = "ygemm_kernel" if not merged else "mix_kernel_y"
    NST = 4; STG = 32768; L_B = 16384
    LB0 = 32768 if merged else 0
    ACC = 72
    def acc(i, j): return ACC + (i * 4 + j) * 4
    def fa(s, i): return 24 + s * 8 + i * 4
    def fb(s, j): return 40 + s * 16 + j * 4
    VL16 = 1; VB = [2, 3, 4, 5]; AA0 = 6; BA0 = [7, 8]; AA = 11; BA = [12, 13]; VY = 14
    T0, T1, T2, T3 = 16, 17, 18, 19
    P = []
    if not merged:
        P += ["s_cmp_ge_u32 s2, 256", f"s_cbranch_scc1 {N}_done"]
        P += ["v_lshrrev_b32 v1, 6, v0", "v_and_b32 v0, 63, v0", "v_readfirstlane_b32 s3, v1"]
    P += stamp(0)
    P += ["s_and_b32 s42, s2, 1",
          "s_load_dwordx4 s[4:7], s[0:1], 8", "s_load_dwordx2 s[40:41], s[0:1], 88"]
    P += ["s_bfe_u32 s44, s2, 0x10001", "s_lshl_b32 s44, s44, 2", "s_bfe_u32 s45, s2, 0x20003", "s_add_u32 s44, s44, s45",
          "s_bfe_u32 s45, s2, 0x10002", "s_lshl_b32 s45, s45, 3", "s_lshr_b32 s46, s2, 5", "s_add_u32 s45, s45, s46"]
    P += [f"v_lshlrev_b32 v{VL16}, 4, v0"]
    P += [f"v_lshrrev_b32 v{T0}, 3, v0", f"v_and_b32 v{T1}, 7, v0", f"v_lshrrev_b32 v{T2}, 4, v0",
          "s_lshl_b32 s46, s45, 7", "s_lshl_b32 s47, s3, 5", "s_add_u32 s46, s46, s47",
          f"v_add_u32 v{T3}, s46, v{T0}", f"v_lshlrev_b32 v{T3}, 12, v{T3}",
          f"v_xor_b32 v{VB[0]}, v{T1}, v{T2}", f"v_lshlrev_b32 v{VB[0]}, 4, v{VB[0]}", f"v_add_u32 v{VB[0]}, v{VB[0]}, v{T3}"]
    for q in range(1, 4):
        if q % 2: P += [f"v_xor_b32 v{VB[q]}, 64, v{VB[0]}", f"v_add_u32 v{VB[q]}, {q*8*4096}, v{VB[q]}"]
        else: P += [f"v_add_u32 v{VB[q]}, {q*8*4096}, v{VB[0]}"]
    P += [f"v_and_b32 v{T0}, 15, v0", f"v_lshrrev_b32 v{T1}, 4, v0",
          f"v_and_b32 v{T2}, 1, v{T1}", f"v_lshlrev_b32 v{T2}, 5, v{T2}", f"v_add_u32 v{T2}, v{T2}, v{T0}", f"v_lshlrev_b32 v{T2}, 4, v{T2}",
          f"v_lshrrev_b32 v{T3}, 1, v{T1}",
          f"v_lshlrev_b32 v{VY}, 3, v{T3}", f"v_add_u32 v{VY}, v{VY}, v{T2}",
          f"v_lshlrev_b32 v{T3}, 10, v{T3}", f"v_add_u32 v{T2}, v{T2}, v{T3}",
          "s_and_b32 s46, s3, 1", "s_lshl_b32 s46, s46, 13", f"s_add_u32 s46, s46, {LB0}", f"v_add_u32 v{AA0}, s46, v{T2}",
          "s_lshr_b32 s46, s3, 1", "s_lshl_b32 s46, s46, 13", f"s_add_u32 s46, s46, {L_B + LB0}",
          f"v_lshrrev_b32 v{T2}, 1, v{T0}", f"v_xor_b32 v{T2}, v{T2}, v{T1}",
          f"v_lshlrev_b32 v{T3}, 7, v{T0}", f"v_add_u32 v{T3}, s46, v{T3}"]
    for kk in range(2):
        P += [f"v_xor_b32 v{T0}, {4*kk}, v{T2}", f"v_lshlrev_b32 v{T0}, 4, v{T0}", f"v_add_u32 v{BA0[kk]}, v{T0}, v{T3}",
              f"v_mov_b32 v{BA[kk]}, v{BA0[kk]}"]
    P += [f"v_mov_b32 v{AA}, v{AA0}"]
    P += ["s_waitcnt lgkmcnt(0)", "s_cmp_eq_u32 s42, 0", "s_cselect_b32 s4, s4, s6", "s_cselect_b32 s5, s5, s7"] + srd(8, 4, 5, 8 * MB) + srd(24, 40, 41, WS_SIZE)
    P += ["s_lshl_b32 s47, s44, 2", "s_add_u32 s47, s47, s3", "s_lshl_b32 s47, s47, 17",
          f"s_mul_i32 s46, s42, {4*MB}", "s_add_u32 s47, s47, s46",
          "s_mov_b32 s48, 0", "s_lshl_b32 s50, s3, 12", "s_mov_b32 s49, s50", "s_mov_b32 s51, 0", "s_mov_b32 s57, s47"]
    if "yrot1" in EXP or "yrot2" in EXP:
        P += ["s_lshr_b32 s48, s2, 5", f"s_lshl_b32 s48, s48, {8 if 'yrot2' in EXP else 7}", "s_lshl_b32 s56, s48, 5", "s_add_u32 s47, s57, s56"]
    if "rot" in EXP:
        P += ["s_lshr_b32 s48, s2, 5", "s_lshl_b32 s48, s48, 2", "s_bfe_u32 s56, s2, 0x20003", "s_lshl_b32 s56, s56, 3",
              "s_add_u32 s48, s48, s56", "s_and_b32 s48, s48, 31", "s_lshl_b32 s48, s48, 7",
              "s_lshl_b32 s56, s48, 5", "s_add_u32 s47, s57, s56"]
    def dma():
        o = [[f"s_add_u32 m0, s49, {LB0}", f"buffer_load_dwordx4 v{VL16}, s[24:27], s47 offen lds"]]
        for u in range(1, 4):
            o.append([None, f"buffer_load_dwordx4 v{VL16}, s[24:27], s47 offen offset:{1024*u} lds"])
        for q in range(4):
            o.append([f"s_add_u32 m0, s49, {LB0 + L_B + 1024*q}", f"buffer_load_dwordx4 v{VB[q]}, s[8:11], s48 offen lds"])
        if "noydma" in EXP: o = [[a_, "s_nop 0"] for a_, b_ in o]
        return o
    def dma_adv():
        return ["s_add_u32 s48, s48, 128", "s_and_b32 s48, s48, 0xfff", "s_lshl_b32 s56, s48, 5", "s_add_u32 s47, s57, s56",
                f"s_add_u32 s49, s49, {STG}", f"s_and_b32 s49, s49, {NST*STG-1}"]
    LATE = 1 if "late1" in EXP else (2 if "late2" in EXP else 0)
    for t in range(NST - 1 - LATE):
        P += mix([], dma()) + dma_adv()
    for r in range(ACC, ACC + 64): P += [f"v_mov_b32 v{r}, 0"]
    def reads(s_, ks):
        kk, eh = ks >> 1, ks & 1
        o = [f"ds_read_b128 {vr(fa(s_,0),4)}, v{AA} offset:{eh*4096+kk*2048}"]
        if eh == 0:
            o += [f"ds_read_b128 {vr(fb(kk,j),4)}, v{BA[kk]} offset:{j*2048}" for j in range(4)]
        o += [f"ds_read_b128 {vr(fa(s_,1),4)}, v{AA} offset:{eh*4096+kk*2048+256}"]
        return o
    def mfmas(s_, ks=0):
        kk, eh = ks >> 1, ks & 1
        return [mfma16(acc(2 * eh + i, j), fa(s_, i), fb(kk, j)) for i in range(2) for j in range(4)]
    def rd_adv():
        o = [f"s_add_u32 s51, s51, {STG}", f"s_and_b32 s51, s51, {NST*STG-1}", f"v_add_u32 v{AA}, s51, v{AA0}"]
        for i in range(2): o += [f"v_add_u32 v{BA[i]}, s51, v{BA0[i]}"]
        return o
    P += stamp(1)
    pre, ktext, ktrace = kloop(N, 32, NST, 8, dma, dma_adv, reads, mfmas, rd_adv, 52, npre=2, late=LATE)
    E = ["s_nop 15"] + stamp(2)
    E += ["s_lshl_b32 s46, s44, 2", "s_and_b32 s47, s3, 1", "s_lshl_b32 s47, s47, 1", "s_add_u32 s46, s46, s47", "s_lshl_b32 s46, s46, 17",
          "s_lshl_b32 s47, s45, 2", "s_lshr_b32 s48, s3, 1", "s_lshl_b32 s48, s48, 1", "s_add_u32 s47, s47, s48", "s_lshl_b32 s47, s47, 11",
          "s_add_u32 s46, s46, s47", f"s_mul_i32 s47, s42, {4*MB}", "s_add_u32 s46, s46, s47", f"s_add_u32 s46, s46, {WS_Y1}"]
    pk = 24
    for i in range(4):
        for j in range(4):
            a = acc(i, j)
            E += [f"v_cvt_pk_bf16_f32 v{pk}, v{a}, v{a+1}", f"v_cvt_pk_bf16_f32 v{pk+1}, v{a+2}, v{a+3}",
                  f"buffer_store_dwordx2 {vr(pk,2)}, v{VY}, s[24:27], s46 offen offset:{(i&1)*1024 + (j&1)*256 + (j>>1)*2048}"]
            pk = 24 + (pk - 24 + 2) % 32
        if i == 1: E += ["s_add_u32 s46, s46, 131072"]
    E += stamp(3) + ["s_waitcnt vmcnt(0)"] * STAMPS + stamp(4) + stamp_dump(5, 9, 2, 128 if merged else 0)
    E += [f"{N}_done:", "s_endpgm"]
    text = (header(N) if not merged else []) + P + pre + ktext + E
    errs = check_trace(P + pre + ktrace + E, N)
    return N, text, desc(N, 136), errs, (256, 256, NST * STG)


def mfma16c(d, a, b, c):
    cs = c if isinstance(c, str) else vr(c, 4)
    return f"v_mfma_f32_16x16x32_bf16 {vr(d,4)}, {vr(a,4)}, {vr(b,4)}, {cs}"

def gen_attn16():
    N = "mix_kernel_a"
    NST = 4; STG = 8192
    def Q(qb): return 16 + 4 * qb
    S = {"A": 32, "B": 48}
    Pk = {"A": 64, "B": 72}
    def O(qb, db=0): return 80 + 8 * qb + 4 * db
    def L(qb): return 112 + 4 * qb
    def CN(qb): return 128 + 4 * qb
    KF = [144, 152]; VF = [160, 168]; ONES = 176
    QB0 = {"A": 0, "B": 2}
    VL16 = 1; VRD = 2; VG = 3; VPAT = 4; T0, T1, T2, T3 = 5, 6, 7, 8; VO = 9
    P = []
    P += stamp(0)
    P += ["s_load_dwordx2 s[40:41], s[0:1], 88", "s_load_dwordx2 s[4:5], s[0:1], 0", "s_load_dwordx2 s[38:39], s[0:1], 64"]
    P += ["s_and_b32 s42, s2, 7", "s_lshr_b32 s43, s2, 3", "s_lshl_b32 s42, s42, 2", "s_lshr_b32 s44, s43, 3",
          "s_add_u32 s42, s42, s44", "s_and_b32 s43, s43, 7",
          "s_lshl_b32 s43, s43, 3", "s_lshl_b32 s44, s3, 1", "s_add_u32 s43, s43, s44",
          "s_lshl_b32 s44, s42, 17"]
    P += [f"v_lshlrev_b32 v{VL16}, 4, v0", f"v_and_b32 v{T0}, 15, v0", f"v_bfe_u32 v{T1}, v0, 4, 1", f"v_lshlrev_b32 v{T1}, 5, v{T1}",
          f"v_add_u32 v{T0}, v{T0}, v{T1}", f"v_lshlrev_b32 v{T0}, 4, v{T0}", f"v_lshrrev_b32 v{T1}, 5, v0",
          f"v_lshlrev_b32 v{T2}, 10, v{T1}", f"v_add_u32 v{VPAT}, v{T0}, v{T2}", f"v_lshlrev_b32 v{T2}, 3, v{T1}", f"v_add_u32 v{VO}, v{T0}, v{T2}"]
    P += ["s_waitcnt lgkmcnt(0)"] + srd(24, 40, 41, WS_SIZE) + srd(8, 4, 5, 4 * MB) + srd(28, 38, 39, 2048)
    P += ["s_lshl_b32 s45, s43, 11", "s_add_u32 s45, s45, s44", f"s_add_u32 s45, s45, {WS_Q}",
          f"s_add_u32 s46, s44, {WS_K}", f"s_add_u32 s47, s44, {WS_V}"]
    for qb in range(4):
        P += [f"buffer_load_dwordx4 {vr(Q(qb),4)}, v{VPAT}, s[24:27], s45 offen offset:{(qb&1)*256 + (qb>>1)*2048}"]
    for i in range(4):
        P += [f"buffer_load_dwordx4 {vr(KF[0]+4*i,4)}, v{VPAT}, s[24:27], s46 offen offset:{(i&1)*256 + (i>>1)*2048}"]
    P += ["s_lshl_b32 s51, s3, 10", "s_mov_b32 s61, s51", "s_add_u32 s60, s61, 2048",
          "s_add_u32 s48, s46, s60", "s_add_u32 s49, s47, s61", "s_mov_b32 s50, s51"]
    def dma():
        return [["s_mov_b32 m0, s50", f"buffer_load_dwordx4 v{VL16}, s[24:27], s48 offen lds"],
                ["s_add_u32 m0, s50, 4096", f"buffer_load_dwordx4 v{VL16}, s[24:27], s49 offen lds"]]
    def dma_adv():
        return ["s_add_u32 s60, s60, 4096", "s_and_b32 s60, s60, 0x1ffff", "s_add_u32 s61, s61, 4096", "s_and_b32 s61, s61, 0x1ffff",
                "s_add_u32 s48, s46, s60", "s_add_u32 s49, s47, s61", f"s_add_u32 s50, s50, {STG}",
                f"s_and_b32 s50, s50, {NST*STG-1}"]
    for t in range(NST - 1):
        for a, b in dma(): P += [a, "s_nop 0", b]
        P += dma_adv()
    GX = 192
    P += ["s_lshl_b32 s62, s2, 3", "s_lshl_b32 s45, s3, 1", "s_add_u32 s62, s62, s45", "s_lshl_b32 s45, s62, 11",
          f"v_lshlrev_b32 v{T0}, 5, v0"]
    P += [f"buffer_load_dwordx4 v[{GX}:{GX+3}], v{T0}, s[8:11], s45 offen",
          f"buffer_load_dwordx4 v[{GX+4}:{GX+7}], v{T0}, s[8:11], s45 offen offset:16",
          f"buffer_load_dwordx4 v[{GX+8}:{GX+11}], v{T0}, s[8:11], s45 offen offset:2048",
          f"buffer_load_dwordx4 v[{GX+12}:{GX+15}], v{T0}, s[8:11], s45 offen offset:2064",
          f"buffer_load_dwordx4 v[{GX+16}:{GX+19}], v{T0}, s[28:31], 0 offen",
          f"buffer_load_dwordx4 v[{GX+20}:{GX+23}], v{T0}, s[28:31], 0 offen offset:16"]
    for r in list(range(112, 128)) + list(range(Pk["B"], Pk["B"] + 8)) + list(range(VF[0], VF[0] + 16)):
        P += [f"v_mov_b32 v{r}, 0"]
    for i in range(4): P += [f"v_mov_b32 v{ONES+i}, 0x3f803f80"]
    P += [f"v_mov_b32 v{VRD}, v{VPAT}", "s_mov_b32 s52, 0", "s_mov_b32 s53, 0"]
    P += [f"s_waitcnt vmcnt({2*(NST-1)+6})"]
    def TM(qb): return (32 + 16 * qb) if qb < 2 else (80 + 16 * (qb - 2))
    for qb in range(4):
        for i in range(4):
            P += [mfma16c(TM(qb) + 4 * i, KF[0] + 4 * i, Q(qb), "0")]
    P += ["s_nop 7"]
    MX = [10, 11, 12, 13]
    for qb in range(4):
        t = TM(qb); m = MX[qb]
        P += [f"v_max3_f32 v{m}, v{t}, v{t+1}, v{t+2}"]
        for i in range(3, 15, 2): P += [f"v_max3_f32 v{m}, v{m}, v{t+i}, v{t+i+1}"]
        P += [f"v_max_f32 v{m}, v{m}, v{t+15}"]
    for qb in range(4): P += [f"ds_swizzle_b32 v{T0+qb}, v{MX[qb]} offset:0x401F"]
    P += ["s_waitcnt lgkmcnt(0)"]
    for qb in range(4): P += [f"v_max_f32 v{MX[qb]}, v{MX[qb]}, v{T0+qb}"]
    for qb in range(4): P += [f"v_mov_b32 v{T0+qb}, v{MX[qb]}"]
    P += ["s_nop 1"]
    for qb in range(4): P += [f"v_permlane32_swap_b32 v{MX[qb]}, v{T0+qb}"]
    P += [f"s_mov_b32 s54, {hex(f32bits(-ATT_OFF))}"]
    for qb in range(4):
        P += [f"v_max_f32 v{MX[qb]}, v{MX[qb]}, v{T0+qb}", f"v_sub_f32 v{MX[qb]}, s54, v{MX[qb]}"]
        for i in range(4): P += [f"v_mov_b32 v{CN(qb)+i}, v{MX[qb]}"]
    for r in range(80, 112): P += [f"v_mov_b32 v{r}, 0"]
    def qk(Y, kset):
        return [mfma16c(S[Y] + (qi * 2 + kb) * 4, KF[kset] + 4 * kb, Q(QB0[Y] + qi), CN(QB0[Y] + qi)) for qi in range(2) for kb in range(2)]
    def pv(Y, vset):
        o = []
        for qi in range(2):
            qb = QB0[Y] + qi
            o += [mfma16(O(qb, 0), VF[vset], Pk[Y] + 4 * qi), mfma16(O(qb, 1), VF[vset] + 4, Pk[Y] + 4 * qi), mfma16(L(qb), ONES, Pk[Y] + 4 * qi)]
        return o
    P += qk("A", 0) + ["s_nop 7"]
    P += stamp(1)
    def slot(X, kset_qk, vset_pv, rd, extra=[]):
        Y = "B" if X == "A" else "A"
        mf = qk(Y, kset_qk) + pv(Y, vset_pv)
        e = [f"v_exp_f32 v{S[X]+i}, v{S[X]+i}" for i in range(16)]
        c = [f"v_cvt_pk_bf16_f32 v{Pk[X]+j}, v{S[X]+2*j}, v{S[X]+2*j+1}" for j in range(8)]
        va = e[0:3] + [c[0]] + e[3:5] + [c[1]] + e[5:7] + [c[2]] + e[7:9] + [c[3]] + e[9:11] + [c[4]] + e[11:13] + [c[5]] + e[13:16] + [c[6], c[7]]
        cnt = [2, 2, 3, 2, 3, 2, 3, 2, 3, 2]
        o = []; vi = 0
        for i in range(10):
            o += [mf[i]]
            if i < 4 and rd: o += [rd[i]]
            if i < len(extra): o += extra[i][:1]
            o += va[vi:vi + cnt[i]]; vi += cnt[i]
            if i < len(extra): o += extra[i][1:]
        assert vi == 24
        return o
    def rds(kb_par, half):
        return [f"ds_read_b128 {vr(KF[1-kb_par],4)}, v{VRD} offset:{half*2048}",
                f"ds_read_b128 {vr(KF[1-kb_par]+4,4)}, v{VRD} offset:{half*2048+256}",
                f"ds_read_b128 {vr(VF[kb_par],4)}, v{VRD} offset:{4096+half*2048}",
                f"ds_read_b128 {vr(VF[kb_par]+4,4)}, v{VRD} offset:{4096+half*2048+256}"]
    B = [f"s_waitcnt vmcnt({2*(NST-2)})", "s_barrier"]
    d = dma()
    if "newtop" not in EXP:
        B += [d[0][0], "s_nop 0", d[0][1], d[1][0], "s_nop 0", d[1][1]] + dma_adv()
        B += slot("A", 0, 1, rds(0, 0))
        B += ["s_waitcnt lgkmcnt(0)"]
        B += slot("B", 1, 0, [])
    else:
        adv = dma_adv()
        B += slot("A", 0, 1, rds(0, 0), [[], [], [], [], d[0], d[1]])
        B += ["s_waitcnt lgkmcnt(0)"]
        B += slot("B", 1, 0, [], [adv[0:2], adv[2:4], adv[4:6], adv[6:8]])
    B += slot("A", 1, 0, rds(1, 1))
    B += ["s_waitcnt lgkmcnt(0)"]
    B += slot("B", 0, 1, [], [[f"s_add_u32 s53, s53, {STG}", f"s_and_b32 s53, s53, {NST*STG-1}"], [f"v_add_u32 v{VRD}, s53, v{VPAT}"]])
    tail = ["s_add_u32 s52, s52, 1", "s_cmp_lt_u32 s52, 32", f"s_cbranch_scc1 {N}_loop"]
    E = stamp(2)
    E += ["s_nop 1"] + pv("B", 1) + ["s_nop 7"]
    E += [f"s_mov_b32 s54, {hex(f32bits(ATT_LMAX))}",
          f"v_max3_f32 v{T0}, v{L(0)}, v{L(1)}, v{L(2)}", f"v_cmp_gt_f32 vcc, s54, v{T0}", f"v_cmp_gt_f32 s[56:57], s54, v{L(3)}",
          f"v_cmp_o_f32 s[58:59], v{L(0)}, v{L(1)}", f"v_cmp_o_f32 s[64:65], v{L(2)}, v{L(3)}", "s_nop 1",
          "s_and_b64 vcc, vcc, s[56:57]", "s_and_b64 vcc, vcc, s[58:59]", "s_and_b64 vcc, vcc, s[64:65]",
          "s_cmp_eq_u64 vcc, exec", f"s_cbranch_scc0 {N}_fallback"]
    E2 = [f"{N}_final:"]
    E2 += ["s_lshl_b32 s45, s43, 16", "s_lshl_b32 s46, s42, 11", "s_add_u32 s45, s45, s46", f"s_add_u32 s45, s45, {WS_O}"]
    for qb in range(4):
        E2 += [f"v_rcp_f32 v{T0}, v{L(qb)}", "s_nop 0"]
        for i in range(8): E2 += [f"v_mul_f32 v{O(qb)+i}, v{O(qb)+i}, v{T0}"]
        for db in range(2):
            pk = 32 + qb * 4 + db * 2
            E2 += [f"v_cvt_pk_bf16_f32 v{pk}, v{O(qb,db)}, v{O(qb,db)+1}", f"v_cvt_pk_bf16_f32 v{pk+1}, v{O(qb,db)+2}, v{O(qb,db)+3}",
                   f"buffer_store_dwordx2 {vr(pk,2)}, v{VO}, s[24:27], s45 offen offset:{(qb&1)*256 + db*1024}"]
        if qb == 1: E2 += ["s_add_u32 s45, s45, 65536"]
    A0, A1 = 64, 65
    E2 += ["s_waitcnt vmcnt(8)", f"v_mov_b32 v{A0}, 0", f"v_mov_b32 v{A1}, 0"]
    for i in range(8):
        w = GX + 16 + i
        E2 += [f"v_lshlrev_b32 v66, 16, v{w}", f"v_and_b32 v67, 0xffff0000, v{w}"]
        for r, a in ((0, A0), (1, A1)):
            x = GX + 8 * r + i
            E2 += [f"v_lshlrev_b32 v68, 16, v{x}", f"v_and_b32 v69, 0xffff0000, v{x}",
                  "v_mul_f32 v68, v68, v66", "v_mul_f32 v69, v69, v67",
                  "v_cvt_pk_bf16_f32 v70, v68, v69",
                  "v_lshlrev_b32 v68, 16, v70", "v_and_b32 v69, 0xffff0000, v70",
                  f"v_add_f32 v{a}, v{a}, v68", f"v_add_f32 v{a}, v{a}, v69"]
    for off in (0x041F, 0x081F, 0x101F, 0x201F, 0x401F):
        E2 += [f"ds_swizzle_b32 v66, v{A0} offset:{off}", f"ds_swizzle_b32 v67, v{A1} offset:{off}",
              "s_waitcnt lgkmcnt(0)", f"v_add_f32 v{A0}, v{A0}, v66", f"v_add_f32 v{A1}, v{A1}, v67"]
    E2 += ["s_nop 0", f"v_readlane_b32 s55, v{A0}, 32", f"v_readlane_b32 s56, v{A1}, 32", "s_nop 1",
          f"v_add_f32 v{A0}, s55, v{A0}", f"v_add_f32 v{A1}, s56, v{A1}",
          "v_cmp_eq_u32 vcc, 1, v0", "s_nop 1", f"v_cndmask_b32 v{A0}, v{A0}, v{A1}, vcc",
          f"v_cvt_pk_bf16_f32 v{A0}, v{A0}, v{A0}", f"v_lshlrev_b32 v{A0}, 16, v{A0}",
          f"v_mul_f32 v{A0}, {hex(f32bits(-LOG2E))}, v{A0}", f"v_exp_f32 v{A0}, v{A0}", "s_nop 0",
          f"v_add_f32 v{A0}, 1.0, v{A0}", f"v_rcp_f32 v{A0}, v{A0}", "s_nop 0",
          f"v_cvt_pk_bf16_f32 v{A0}, v{A0}, v{A0}", f"v_lshlrev_b32 v{VG}, 16, v{A0}"]
    E2 += [f"v_lshlrev_b32 v{T0}, 2, v0", "s_lshl_b32 s45, s62, 2", f"s_add_u32 s45, s45, {WS_G}",
           "v_cmp_gt_u32 vcc, 2, v0", "s_and_saveexec_b64 s[58:59], vcc",
           f"buffer_store_dword v{VG}, v{T0}, s[24:27], s45 offen", "s_mov_b64 exec, s[58:59]"]
    E2 += stamp(3) + ["s_waitcnt vmcnt(0)"] + stamp(4) + stamp_dump(5, 9, 1)
    E2 += [f"{N}_done:", "s_endpgm"]
    F = [f"{N}_fallback:", "s_waitcnt vmcnt(0)"]
    AL = 14
    for qb in range(4):
        F += [f"v_mov_b32 v{MX[qb]}, 0xff7fffff", f"v_mov_b32 v{L(qb)}, 0"]
        for i in range(8): F += [f"v_mov_b32 v{O(qb)+i}, 0"]
    F += [f"s_add_u32 s46, s44, {WS_K}", f"s_add_u32 s47, s44, {WS_V}", "s_mov_b32 s52, 0"]
    FB = [f"buffer_load_dwordx4 {vr(KF[0],4)}, v{VPAT}, s[24:27], s46 offen",
          f"buffer_load_dwordx4 {vr(KF[0]+4,4)}, v{VPAT}, s[24:27], s46 offen offset:256",
          f"buffer_load_dwordx4 {vr(VF[0],4)}, v{VPAT}, s[24:27], s47 offen",
          f"buffer_load_dwordx4 {vr(VF[0]+4,4)}, v{VPAT}, s[24:27], s47 offen offset:256",
          "s_waitcnt vmcnt(0)"]
    for qb in range(4):
        s0 = 32; p0 = 64
        FB += [mfma16c(s0, KF[0], Q(qb), "0"), mfma16c(s0 + 4, KF[0] + 4, Q(qb), "0"), "s_nop 7"]
        FB += [f"v_max3_f32 v{T0}, v{s0}, v{s0+1}, v{MX[qb]}", f"v_max3_f32 v{T0}, v{T0}, v{s0+2}, v{s0+3}",
               f"v_max3_f32 v{T0}, v{T0}, v{s0+4}, v{s0+5}", f"v_max3_f32 v{T0}, v{T0}, v{s0+6}, v{s0+7}",
               f"ds_swizzle_b32 v{T1}, v{T0} offset:0x401F", "s_waitcnt lgkmcnt(0)", f"v_max_f32 v{T0}, v{T0}, v{T1}",
               f"v_mov_b32 v{T1}, v{T0}", "s_nop 1", f"v_permlane32_swap_b32 v{T0}, v{T1}", f"v_max_f32 v{T0}, v{T0}, v{T1}",
               f"v_sub_f32 v{AL}, v{MX[qb]}, v{T0}", f"v_exp_f32 v{AL}, v{AL}", f"v_mov_b32 v{MX[qb]}, v{T0}",
               f"v_mul_f32 v{L(qb)}, v{L(qb)}, v{AL}"]
        for i in range(8):
            FB += [f"v_sub_f32 v{s0+i}, v{s0+i}, v{T0}", f"v_exp_f32 v{s0+i}, v{s0+i}", f"v_mul_f32 v{O(qb)+i}, v{O(qb)+i}, v{AL}"]
        for j in range(4):
            FB += [f"v_cvt_pk_bf16_f32 v{p0+j}, v{s0+2*j}, v{s0+2*j+1}",
                   f"v_lshlrev_b32 v{T1}, 16, v{p0+j}", f"v_and_b32 v{T2}, 0xffff0000, v{p0+j}",
                   f"v_add_f32 v{L(qb)}, v{L(qb)}, v{T1}", f"v_add_f32 v{L(qb)}, v{L(qb)}, v{T2}"]
        FB += ["s_nop 1", mfma16(O(qb, 0), VF[0], p0), mfma16(O(qb, 1), VF[0] + 4, p0), "s_nop 7"]
    FB += ["s_add_u32 s46, s46, 2048", "s_add_u32 s47, s47, 2048", "s_add_u32 s52, s52, 1", "s_cmp_lt_u32 s52, 64",
           f"s_cbranch_scc1 {N}_fbloop"]
    FE = []
    for qb in range(4):
        FE += [f"ds_swizzle_b32 v{T1}, v{L(qb)} offset:0x401F", "s_waitcnt lgkmcnt(0)", f"v_add_f32 v{L(qb)}, v{L(qb)}, v{T1}",
               f"v_mov_b32 v{T1}, v{L(qb)}", "s_nop 1", f"v_permlane32_swap_b32 v{L(qb)}, v{T1}", f"v_add_f32 v{L(qb)}, v{L(qb)}, v{T1}"]
    FE += [f"s_branch {N}_final"]
    text = P + [f"{N}_loop:"] + B + tail + E + E2 + F + [f"{N}_fbloop:"] + FB + FE
    errs = check_trace(P + B + tail + B + tail + E + E2, N)
    errs += check_trace(P + B + tail + E + F + FB + FB + FE + E2, N + "_fb")
    return N, text, desc(N, 216), errs, (256, 256, NST * STG)

def gen_mix():
    N = "mix_kernel"
    _, ta, _, ea, _ = gen_attn(True) if "a32" in EXP else gen_attn16()
    _, ty, _, ey, _ = gen_ygemm(True) if "y32" in EXP else gen_ygemm16(True)
    H = header(N) + ["s_cmp_ge_u32 s2, 256", "s_cbranch_scc1 mix_kernel_a_done",
         "v_lshrrev_b32 v1, 6, v0", "v_and_b32 v0, 63, v0", "v_readfirstlane_b32 s3, v1", "s_nop 3",
         "s_cmp_ge_u32 s3, 4", "s_cbranch_scc1 mix_kernel_ystart"]
    text = H + (["s_setprio 1"] if "prioa" in EXP else []) + ta + ["mix_kernel_ystart:", "s_sub_u32 s3, s3, 4"] + (["s_setprio 1"] if "prioy" in EXP else []) + ty
    return N, text, desc(N, 216), ea + ey, (256, 512, 163840)

def gen_out():
    N = "out_kernel"
    NST = 6 if "o6" in EXP else 4; STG = 24576; L_B = 8192
    ACC = 64
    def acc(i): return ACC + i * 16
    def fr(s, i): return 32 + s * 12 + i * 4
    VL16 = 1; VW = [2, 3]; WA0 = 4; BA0 = 5; WA = 6; BA = 7; VG = 8; VO = 9
    T0, T1, T2, T3 = 16, 17, 18, 19
    Y = 96
    P = ["s_cmp_ge_u32 s2, 256", f"s_cbranch_scc1 {N}_done"]
    P += stamp(0)
    P += ["s_load_dwordx2 s[4:5], s[0:1], 56", "s_load_dwordx2 s[6:7], s[0:1], 72", "s_load_dwordx2 s[40:41], s[0:1], 88"]
    P += ["v_lshrrev_b32 v1, 6, v0", "v_and_b32 v0, 63, v0", "v_readfirstlane_b32 s3, v1"]
    P += ["s_and_b32 s45, s2, 3", "s_lshl_b32 s45, s45, 2", "s_bfe_u32 s46, s2, 0x20003", "s_add_u32 s45, s45, s46",
          "s_bfe_u32 s44, s2, 0x10002", "s_lshl_b32 s44, s44, 3", "s_lshr_b32 s46, s2, 5", "s_add_u32 s44, s44, s46",
          "s_lshl_b32 s43, s45, 2", "s_add_u32 s43, s43, s3"]
    P += [f"v_lshlrev_b32 v{VL16}, 4, v0"]
    P += [f"v_lshrrev_b32 v{T3}, 2, v0", "s_lshl_b32 s46, s3, 4", f"v_add_u32 v{T3}, s46, v{T3}", f"v_lshlrev_b32 v{T3}, 11, v{T3}",
          f"v_and_b32 v{VW[0]}, 3, v0", f"v_lshlrev_b32 v{VW[0]}, 4, v{VW[0]}", f"v_add_u32 v{VW[0]}, v{VW[0]}, v{T3}",
          "s_lshl_b32 s46, s44, 7", f"v_add_u32 v{VW[0]}, s46, v{VW[0]}", f"v_add_u32 v{VW[1]}, 64, v{VW[0]}"]
    P += [f"v_lshrrev_b32 v{T0}, 5, v0", f"v_lshlrev_b32 v{T0}, 2, v{T0}", f"v_bfe_u32 v{T1}, v0, 2, 2",
          f"v_add_u32 v{T0}, v{T0}, v{T1}", f"v_lshlrev_b32 v{T0}, 6, v{T0}",
          f"v_bfe_u32 v{T1}, v0, 4, 1", f"v_lshlrev_b32 v{T1}, 5, v{T1}", f"v_add_u32 v{T0}, v{T0}, v{T1}",
          f"v_and_b32 v{T1}, 3, v0", f"v_lshlrev_b32 v{T1}, 3, v{T1}", f"v_add_u32 v{WA0}, v{T0}, v{T1}",
          "s_lshl_b32 s50, s3, 12", f"s_add_u32 s46, s50, {L_B}", f"v_add_u32 v{BA0}, s46, v{VL16}",
          f"v_mov_b32 v{WA}, v{WA0}", f"v_mov_b32 v{BA}, v{BA0}"]
    P += [f"v_and_b32 v{T0}, 31, v0", "s_lshl_b32 s46, s43, 5", f"v_add_u32 v{T1}, s46, v{T0}", f"v_lshlrev_b32 v{VO}, 11, v{T1}",
          f"v_lshrrev_b32 v{T2}, 5, v0", f"v_lshlrev_b32 v{T2}, 4, v{T2}", f"v_add_u32 v{VO}, v{VO}, v{T2}",
          "s_lshl_b32 s46, s44, 7", f"v_add_u32 v{VO}, s46, v{VO}", f"v_lshlrev_b32 v{T1}, 2, v{T1}"]
    P += ["s_waitcnt lgkmcnt(0)"] + stamp(5) + srd(8, 4, 5, 2 * MB) + srd(12, 6, 7, 4 * MB) + srd(24, 40, 41, WS_SIZE)
    P += ["s_lshl_b32 s47, s43, 16", f"s_add_u32 s47, s47, {WS_O}", "s_mov_b32 s48, 0", "s_mov_b32 s49, 0",
          "s_lshl_b32 s53, s3, 10", "s_mov_b32 s51, 0"]
    def dma():
        o = [["s_add_u32 m0, s49, s53", f"buffer_load_dwordx4 v{VW[0]}, s[8:11], s48 offen lds"],
             ["s_add_u32 m0, m0, 4096", f"buffer_load_dwordx4 v{VW[1]}, s[8:11], s48 offen lds"],
             ["s_add_u32 m0, s49, s54", f"buffer_load_dwordx4 v{VL16}, s[24:27], s47 offen lds"]]
        for u in range(1, 4):
            o.append([None, f"buffer_load_dwordx4 v{VL16}, s[24:27], s47 offen offset:{1024*u} lds"])
        if "nowo" in EXP:
            o[0][1] = f"buffer_load_dwordx4 v{VL16}, s[24:27], s47 offen lds"
            o[1][1] = f"buffer_load_dwordx4 v{VL16}, s[24:27], s47 offen lds"
        if "noo" in EXP:
            for u in range(2, 6): o[u][1] = f"buffer_load_dwordx4 v{VW[0]}, s[8:11], s48 offen lds"
        return o
    def dma_adv():
        if "norot3" not in EXP:
            return ["s_add_u32 s56, s56, 4096", "s_and_b32 s56, s56, 0xffff", "s_add_u32 s47, s57, s56", "s_lshl_b32 s48, s56, 5",
                    f"s_add_u32 s49, s49, {STG}", f"s_cmp_ge_u32 s49, {NST*STG}", "s_cselect_b32 s49, 0, s49"]
        return ["s_add_u32 s47, s47, 4096", f"s_add_u32 s48, s48, {64*2048}", f"s_add_u32 s49, s49, {STG}",
                f"s_cmp_ge_u32 s49, {NST*STG}", "s_cselect_b32 s49, 0, s49"]
    P += [f"s_add_u32 s54, s50, {L_B}"]
    if "norot3" not in EXP:
        P += ["s_lshr_b32 s56, s2, 5", "s_lshl_b32 s56, s56, 1", "s_bfe_u32 s57, s2, 0x20003", "s_lshl_b32 s57, s57, 2",
              "s_add_u32 s56, s56, s57", "s_and_b32 s56, s56, 15", "s_lshl_b32 s56, s56, 12",
              "s_mov_b32 s57, s47", "s_add_u32 s47, s57, s56", "s_lshl_b32 s48, s56, 5"]
    YL = []
    YL += ["s_lshl_b32 s46, s44, 18", "s_lshl_b32 s55, s43, 11", "s_add_u32 s46, s46, s55", f"s_add_u32 s46, s46, {WS_Y1}"]
    for i in range(2):
        for p in range(2):
            YL += [f"s_add_u32 s55, s46, {i*131072 + p*4*MB}"]
            for t in range(2):
                YL += [f"buffer_load_dwordx4 {vr(Y+(i*2+p)*8+4*t,4)}, v{VL16}, s[24:27], s55 offen offset:{1024*t}"]
    YL += [f"s_mov_b32 s55, {WS_G}", f"buffer_load_dword v{VG}, v{T1}, s[24:27], s55 offen"]
    if "ylate" not in EXP: P += YL
    P += stamp(6)
    for t in range(NST - 1):
        P += mix([], dma()) + dma_adv()
    P += stamp(7)
    if "ylate" in EXP: P += YL
    for r in range(ACC, ACC + 32): P += [f"v_mov_b32 v{r}, 0"]
    def reads(s_, ks):
        return [f"ds_read_b128 {vr(fr(s_,2),4)}, v{BA} offset:{ks*1024}",
                f"ds_read_b64_tr_b16 {vr(fr(s_,0),2)}, v{WA} offset:{ks*1024}",
                f"ds_read_b64_tr_b16 {vr(fr(s_,0)+2,2)}, v{WA} offset:{ks*1024+512}",
                f"ds_read_b64_tr_b16 {vr(fr(s_,1),2)}, v{WA} offset:{4096+ks*1024}",
                f"ds_read_b64_tr_b16 {vr(fr(s_,1)+2,2)}, v{WA} offset:{4096+ks*1024+512}"]
    def mfmas(s_, ks=0):
        if "nomf" in EXP: return ["s_nop 0", "s_nop 0"]
        return [mfma32(acc(0), fr(s_, 0), fr(s_, 2)), mfma32(acc(1), fr(s_, 1), fr(s_, 2))]
    def rd_adv():
        return [f"s_add_u32 s51, s51, {STG}", f"s_cmp_ge_u32 s51, {NST*STG}", "s_cselect_b32 s51, 0, s51",
                f"v_add_u32 v{WA}, s51, v{WA0}", f"v_add_u32 v{BA}, s51, v{BA0}"]
    P += stamp(1)
    pre, ktext, ktrace = kloop(N, 16, NST, 6, dma, dma_adv, reads, mfmas, rd_adv, 52)
    E = ["s_nop 15"] + stamp(2)
    E += [f"v_sub_f32 v20, 1.0, v{VG}", "v_cvt_pk_bf16_f32 v20, v20, v20", "v_lshlrev_b32 v20, 16, v20"]
    pk = 32
    for i in range(2):
        a = acc(i)
        for r in range(16): E += [f"v_mul_f32 v{a+r}, v20, v{a+r}"]
        for r in range(8):
            y1 = Y + (i * 2) * 8 + r; y2 = Y + (i * 2 + 1) * 8 + r
            E += [f"v_lshlrev_b32 v{T0}, 16, v{y1}", f"v_lshlrev_b32 v{T1}, 16, v{y2}", f"v_sub_f32 v{T0}, v{T0}, v{T1}",
                  f"v_and_b32 v{T2}, 0xffff0000, v{y1}", f"v_and_b32 v{T3}, 0xffff0000, v{y2}", f"v_sub_f32 v{T2}, v{T2}, v{T3}",
                  f"v_fmac_f32 v{a+2*r}, v{VG}, v{T0}", f"v_fmac_f32 v{a+2*r+1}, v{VG}, v{T2}",
                  f"v_cvt_pk_bf16_f32 v{pk+r}, v{a+2*r}, v{a+2*r+1}"]
        E += ["s_nop 1"]
        for t in range(2):
            E += [f"v_permlane32_swap_b32 v{pk+4*t}, v{pk+4*t+2}", f"v_permlane32_swap_b32 v{pk+4*t+1}, v{pk+4*t+3}"]
        for t in range(2):
            E += [f"buffer_store_dwordx4 {vr(pk+4*t,4)}, v{VO}, s[12:15], 0 offen offset:{i*64+t*32}"]
        pk += 8
    E += stamp(3) + ["s_waitcnt vmcnt(0)"] * STAMPS + stamp(4) + stamp_dump(8, 9, 3)
    E += [f"{N}_done:", "s_endpgm"]
    text = header(N) + P + pre + ktext + E
    errs = check_trace(P + pre + ktrace + E, N)
    return N, text, desc(N, 128), errs, (256, 256, NST * STG)

def build(kernels, path):
    hdr = open("gated_mix__spectral_fnet__softmax_full_mha__prompt.s.ref").read().split("; Override launch")[0]
    out = hdr
    for (N, text, d, errs, (g, b, lds)) in kernels:
        out += f"; @launch kernel={N} grid=({g},1,1) block=({b},1,1) lds={lds}\n"
    out += '.amdgcn_target "amdgcn-amd-amdhsa--gfx950"\n.text\n'
    seen = set()
    for (N, text, d, errs, _) in kernels:
        if N in seen: continue
        seen.add(N)
        for e in errs: print("HAZARD", e)
        for l in text:
            out += (l if (l.endswith(":") or l.startswith(".")) else "    " + l) + "\n"
    out += '.section .rodata,"a"\n'
    seen = set()
    for (N, text, d, errs, _) in kernels:
        if N in seen: continue
        seen.add(N)
        out += d
    open(path, "w").write(out)

if __name__ == "__main__":
    if len(sys.argv) > 2 and sys.argv[2] == "stamps": STAMPS = True
    for a in sys.argv[3:]: EXP.add(a)
    ks = [gen_proj(), gen_mix(), gen_out()]
    build(ks, sys.argv[1] if len(sys.argv) > 1 else "k.s")
```

```python
import sys, struct
from asmlib import *

MB = 1 << 20
WS_AT, WS_BT, WS_Q, WS_K, WS_V, WS_O, WS_Y1, WS_Y2, WS_G = [i * 4 * MB for i in range(9)]
WS_SIZE = 40 * MB
LOG2E = 1.4426950408889634
QSCALE = (32 ** -0.5) * LOG2E

def f32bits(x):
    return struct.unpack("<I", struct.pack("<f", x))[0]

def srd(base, lo, hi, size):
    return [f"s_mov_b32 s{base}, s{lo}", f"s_mov_b32 s{base+1}, s{hi}",
            f"s_mov_b32 s{base+2}, {size}", f"s_mov_b32 s{base+3}, 0x00020000"]

def desc(name, nv, ns=102):
    acc = (nv + 3) // 4 * 4
    return f"""
.p2align 6
.amdhsa_kernel {name}
  .amdhsa_next_free_vgpr {nv}
  .amdhsa_next_free_sgpr {ns}
  .amdhsa_accum_offset {acc}
  .amdhsa_group_segment_fixed_size 0
  .amdhsa_kernarg_size 96
  .amdhsa_user_sgpr_count 2
  .amdhsa_user_sgpr_kernarg_segment_ptr 1
  .amdhsa_system_sgpr_workgroup_id_x 1
.end_amdhsa_kernel
"""

def mfma32(d, a, b, c=None):
    cs = vr(d, 16) if c is None else (str(c) if isinstance(c, str) else vr(c, 16))
    return f"v_mfma_f32_32x32x16_bf16 {vr(d,16)}, {vr(a,4)}, {vr(b,4)}, {cs}"
def mfma16(d, a, b):
    return f"v_mfma_f32_16x16x32_bf16 {vr(d,4)}, {vr(a,4)}, {vr(b,4)}, {vr(d,4)}"

STAMPS = False
EXP = set()
def stamp(i):
    if not STAMPS: return []
    return ([f"s_memrealtime s[68:69]"] if i == 0 else [f"s_memrealtime s[100:101]"]) + [f"s_memtime s[{70+2*i}:{71+2*i}]", "s_waitcnt lgkmcnt(0)"] + ([] if i == 0 else [f"s_sub_u32 s{71+2*i}, s100, s68"])
def stamp_dump(n, wgsel=0, slot=0, dbgoff=0):
    if not STAMPS: return []
    o = ["s_load_dwordx2 s[90:91], s[0:1], 80", "s_waitcnt lgkmcnt(0)",
         "s_mov_b32 s92, s90", "s_mov_b32 s93, s91", "s_mov_b32 s94, 256", "s_mov_b32 s95, 0x00020000",
         "s_mov_b64 exec, 1", f"s_mov_b32 s96, {dbgoff}", "s_cmp_lg_u32 s3, 0", "s_cselect_b32 s96, 0x1000, s96"]
    o += [f"s_cmp_lg_u32 s2, {wgsel}", "s_cselect_b32 s96, 0x1000, s96"]
    o += ["s_memrealtime s[98:99]", "s_load_dwordx2 s[60:61], s[0:1], 88", "s_waitcnt lgkmcnt(0)",
          "s_mov_b32 s62, 0x10000000", "s_mov_b32 s63, 0x00020000",
          "s_lshl_b32 s97, s2, 4", f"s_add_u32 s97, s97, {64*MB + slot*65536}",
          "v_mov_b32 v4, s68", "v_mov_b32 v5, s69", "v_mov_b32 v6, s98", "v_mov_b32 v7, s99", "v_mov_b32 v2, 0",
          "buffer_store_dwordx4 v[4:7], v2, s[60:63], s97 offen"]
    for i in range(n):
        o += [f"s_sub_u32 s97, s{70+2*i}, s70", "v_mov_b32 v1, s97", f"v_mov_b32 v2, {4*i}",
              "buffer_store_dword v1, v2, s[92:95], s96 offen"]
    o += ["s_cmp_lg_u32 s3, 0", "s_cselect_b32 s96, 0x1000, s96"]
    for i in range(1, n):
        o += [f"v_mov_b32 v1, s{71+2*i}", f"v_mov_b32 v2, {4*i + 32}", "buffer_store_dword v1, v2, s[92:95], s96 offen"]
    return o

def header(name):
    return [f".globl {name}", ".p2align 8", f".type {name},@function", f"{name}:"]

def gen_proj():
    N = "proj_kernel"
    STG = 53248
    L_HR, L_HI, L_W = 32768, 36864, 40960
    ACC = 96
    def acc(b, c): return ACC + (b * 5 + c) * 16
    def fr(s, i): return 32 + s * 28 + i * 4
    VX = list(range(1, 9)); VH = 9; VW = [10, 88, 89]
    XA0 = [11, 12, 13, 14]; HA0 = [15, 16, 17, 18]; WA0 = 19
    XA = [20, 21, 22, 23]; HA = [24, 25, 26, 27]; WA = 28
    VL16 = 29
    VG = 90
    T0, T1, T2, T3 = 30, 31, 92, 93
    P = []
    P += [f"s_cmp_ge_u32 s2, 256", f"s_cbranch_scc1 {N}_done"]
    P += stamp(0)
    P += ["s_load_dwordx2 s[4:5], s[0:1], 0", "s_load_dwordx4 s[32:35], s[0:1], 24",
          "s_load_dwordx2 s[36:37], s[0:1], 48",
          "s_load_dwordx2 s[40:41], s[0:1], 88"]
    P += ["v_lshrrev_b32 v1, 6, v0", "v_and_b32 v0, 63, v0", "v_readfirstlane_b32 s3, v1"]
    P += ["s_and_b32 s42, s2, 7", "s_lshr_b32 s43, s2, 3",
          "s_and_b32 s44, s42, 1", "s_lshl_b32 s44, s44, 2", "s_and_b32 s45, s43, 3", "s_add_u32 s44, s44, s45",
          "s_lshr_b32 s42, s42, 1", "s_lshl_b32 s42, s42, 3", "s_lshr_b32 s43, s43, 2", "s_add_u32 s43, s43, s42"]
    P += ["s_mov_b32 s42, s44"]
    P += ["s_lshl_b32 s44, s42, 8", "s_lshl_b32 s45, s3, 6", "s_add_u32 s44, s44, s45",
          "s_lshl_b32 s50, s3, 13", "s_lshl_b32 s51, s3, 10"]
    P += [f"v_lshrrev_b32 v{T0}, 3, v0", f"v_and_b32 v{T1}, 7, v0", f"v_lshrrev_b32 v{T2}, 4, v0",
          f"v_lshlrev_b32 v{VL16}, 4, v0"]
    P += [f"v_add_u32 v{T3}, s44, v{T0}", f"v_lshlrev_b32 v{T3}, 11, v{T3}",
          f"v_xor_b32 v{VX[0]}, v{T1}, v{T2}", f"v_lshlrev_b32 v{VX[0]}, 4, v{VX[0]}",
          f"v_add_u32 v{VX[0]}, v{VX[0]}, v{T3}"]
    for q in range(1, 8):
        if q % 2 == 1:
            P += [f"v_xor_b32 v{VX[q]}, 64, v{VX[0]}", f"v_add_u32 v{VX[q]}, {q*8*2048}, v{VX[q]}"]
        else:
            P += [f"v_add_u32 v{VX[q]}, {q*8*2048}, v{VX[0]}"]
    P += ["s_lshl_b32 s45, s43, 5", "s_lshl_b32 s46, s3, 3", "s_add_u32 s45, s45, s46",
          f"v_add_u32 v{T3}, s45, v{T0}", f"v_lshlrev_b32 v{T3}, 11, v{T3}",
          "s_lshl_b32 s46, s3, 2", f"v_add_u32 v{VH}, s46, v{T2}", f"v_and_b32 v{VH}, 7, v{VH}",
          f"v_xor_b32 v{VH}, v{VH}, v{T1}", f"v_lshlrev_b32 v{VH}, 4, v{VH}", f"v_add_u32 v{VH}, v{VH}, v{T3}"]
    P += [f"v_lshrrev_b32 v{T3}, 2, v0", "s_lshl_b32 s46, s3, 4", f"v_add_u32 v{T3}, s46, v{T3}",
          "s_movk_i32 s46, 6144", f"v_mul_lo_u32 v{T3}, v{T3}, s46",
          f"v_and_b32 v{VW[0]}, 3, v0", f"v_lshlrev_b32 v{VW[0]}, 4, v{VW[0]}", f"v_add_u32 v{VW[0]}, v{VW[0]}, v{T3}",
          "s_lshl_b32 s46, s43, 6", f"v_add_u32 v{VW[0]}, s46, v{VW[0]}",
          f"v_add_u32 v{VW[1]}, 2048, v{VW[0]}", f"v_add_u32 v{VW[2]}, 4096, v{VW[0]}"]
    P += ["s_waitcnt lgkmcnt(0)"]
    P += srd(8, 4, 5, 4 * MB) + srd(12, 32, 33, 2 * MB) + srd(16, 34, 35, 2 * MB) + srd(20, 36, 37, 6 * MB)
    def dma():
        out = []
        for q in range(8):
            out.append([f"s_add_u32 m0, s53, {1024*q}", f"buffer_load_dwordx4 v{VX[q]}, s[8:11], s45 offen lds"])
        out.append([f"s_add_u32 m0, s54, {L_HR}", f"buffer_load_dwordx4 v{VH}, s[12:15], s45 offen lds"])
        out.append([f"s_add_u32 m0, s54, {L_HI}", f"buffer_load_dwordx4 v{VH}, s[16:19], s45 offen lds"])
        for c in range(3):
            out.append([f"s_add_u32 m0, s54, {L_W + 4096*c}", f"buffer_load_dwordx4 v{VW[c]}, s[20:23], s46 offen lds"])
        return out
    def dma_adv():
        return ["s_add_u32 s47, s47, %d" % STG, "s_cmp_ge_u32 s47, %d" % (3 * STG), "s_cselect_b32 s47, 0, s47",
                "s_add_u32 s53, s47, s50", "s_add_u32 s54, s47, s51",
                "s_add_u32 s45, s45, 128", "s_and_b32 s45, s45, 0x7ff", "s_mul_i32 s46, s45, 3072"]
    P += ["s_mov_b32 s47, 0", "s_mov_b32 s45, 0", "s_mov_b32 s46, 0", "s_mov_b32 s53, s50", "s_mov_b32 s54, s51"]
    for a_, b_ in dma():
        P += [a_, "s_nop 0", b_]
    P += dma_adv()
    P += stamp(1)
    F = []
    F += srd(24, 40, 41, WS_SIZE)
    F += [f"v_lshrrev_b32 v{T0}, 5, v0", f"v_lshrrev_b32 v{T1}, 1, v0", f"v_and_b32 v{T1}, 7, v{T1}",
          f"v_xor_b32 v{T0}, v{T0}, v{T1}",
          f"v_and_b32 v{T1}, 31, v0", f"v_lshlrev_b32 v{T1}, 7, v{T1}"]
    for ks in range(4):
        F += [f"v_xor_b32 v{T2}, {2*ks}, v{T0}", f"v_lshlrev_b32 v{T2}, 4, v{T2}", f"v_add_u32 v{T2}, v{T2}, v{T1}",
              f"v_add_u32 v{XA0[ks]}, s50, v{T2}", f"v_add_u32 v{HA0[ks]}, {L_HR}, v{T2}"]
    F += [f"v_lshrrev_b32 v{T0}, 5, v0", f"v_lshlrev_b32 v{T0}, 3, v{T0}", f"v_bfe_u32 v{T1}, v0, 2, 2",
          f"v_add_u32 v{T0}, v{T0}, v{T1}", f"v_lshlrev_b32 v{T0}, 6, v{T0}",
          f"v_bfe_u32 v{T1}, v0, 4, 1", f"v_lshlrev_b32 v{T1}, 5, v{T1}", f"v_add_u32 v{T0}, v{T0}, v{T1}",
          f"v_and_b32 v{T1}, 3, v0", f"v_lshlrev_b32 v{T1}, 3, v{T1}", f"v_add_u32 v{T0}, v{T0}, v{T1}",
          f"v_add_u32 v{WA0}, {L_W}, v{T0}"]
    for i in range(4):
        F += [f"v_mov_b32 v{XA[i]}, v{XA0[i]}", f"v_mov_b32 v{HA[i]}, v{HA0[i]}"]
    F += [f"v_mov_b32 v{WA}, v{WA0}", "s_mov_b32 s48, 0", "s_mov_b32 s49, 0"]
    for r in range(ACC, ACC + 160):
        F += [f"v_mov_b32 v{r}, 0"]
    d1 = dma()
    per = (len(F) + len(d1) - 1) // len(d1)
    for i, (a_, b_) in enumerate(d1):
        chunk = F[i * per:(i + 1) * per]
        P += [a_] + chunk[:1] + [b_] + chunk[1:]
    P += dma_adv()
    def reads(s, ks):
        return [f"ds_read_b128 {vr(fr(s,0),4)}, v{XA[ks]}",
                f"ds_read_b128 {vr(fr(s,2),4)}, v{HA[ks]}",
                f"ds_read_b128 {vr(fr(s,3),4)}, v{HA[ks]} offset:4096",
                f"ds_read_b64_tr_b16 {vr(fr(s,4),2)}, v{WA} offset:{ks*1024}",
                f"ds_read_b64_tr_b16 {vr(fr(s,4)+2,2)}, v{WA} offset:{ks*1024+256}",
                f"ds_read_b64_tr_b16 {vr(fr(s,5),2)}, v{WA} offset:{4096+ks*1024}",
                f"ds_read_b64_tr_b16 {vr(fr(s,5)+2,2)}, v{WA} offset:{4096+ks*1024+256}",
                f"ds_read_b64_tr_b16 {vr(fr(s,6),2)}, v{WA} offset:{8192+ks*1024}",
                f"ds_read_b64_tr_b16 {vr(fr(s,6)+2,2)}, v{WA} offset:{8192+ks*1024+256}",
                f"ds_read_b128 {vr(fr(s,1),4)}, v{XA[ks]} offset:4096"]
    def mfmas(s):
        out = []
        for b in range(2):
            X = fr(s, b)
            if "p16" in EXP:
                for c in range(5):
                    out += [mfma16(acc(b, c) + 8 * s, X, fr(s, 2 + c)), mfma16(acc(b, c) + 8 * s + 4, X, fr(s, 2 + c))]
                continue
            out += [mfma32(acc(b, 0), X, fr(s, 2)), mfma32(acc(b, 1), X, fr(s, 3)),
                    mfma32(acc(b, 2), fr(s, 4), X), mfma32(acc(b, 3), fr(s, 5), X),
                    mfma32(acc(b, 4), X, fr(s, 6))]
        return out
    def rd_adv():
        o = ["s_add_u32 s48, s48, %d" % STG, "s_cmp_ge_u32 s48, %d" % (3 * STG), "s_cselect_b32 s48, 0, s48"]
        for i in range(4):
            o += [f"v_add_u32 v{XA[i]}, s48, v{XA0[i]}", f"v_add_u32 v{HA[i]}, s48, v{HA0[i]}"]
        o += [f"v_add_u32 v{WA}, s48, v{WA0}"]
        return o
    P += stamp(2) + stamp(3)
    P += ["s_waitcnt vmcnt(13)", "s_barrier"] + stamp(4) + reads(0, 0)
    def body(do_dma, last):
        o = []
        d = dma() if do_dma else []
        def mix(rd, dd):
            out = []
            for i, r in enumerate(rd):
                if i < len(dd): out += [dd[i][0], r, dd[i][1]]
                else: out += [r]
            return out
        o += ["s_waitcnt lgkmcnt(0)"]
        o += spread(mfmas(0), mix(reads(1, 1), d[:7]))
        o += ["s_waitcnt lgkmcnt(0)"]
        o += spread(mfmas(1), mix(reads(0, 2), d[7:]) + (dma_adv() if do_dma else []))
        o += ["s_waitcnt lgkmcnt(0)"]
        o += spread(mfmas(0), reads(1, 3) + ([] if last else rd_adv()))
        o += ["s_waitcnt lgkmcnt(0)"]
        m = mfmas(1)
        if last:
            o += m
        else:
            o += m[:2] + [f"s_waitcnt vmcnt({13 if do_dma else 0})", "s_barrier"] + spread(m[2:], reads(0, 0))
        return o
    B = body(True, False)
    loop_tail = ["s_add_u32 s49, s49, 1", "s_cmp_lt_u32 s49, 14", f"s_cbranch_scc1 {N}_loop"]
    B14 = body(False, False)
    B15 = body(False, True)
    E = stamp(5)
    E += ["s_nop 7"]
    if "touch" in EXP:
        E += ["s_load_dwordx4 s[64:67], s[0:1], 8", "s_lshl_b32 s60, s2, 2", "s_add_u32 s60, s60, s3", "s_lshl_b32 s60, s60, 13",
              f"v_lshlrev_b32 v{T0}, 7, v0", "s_waitcnt lgkmcnt(0)"]
        E += srd(32, 64, 65, 8 * MB) + srd(36, 66, 67, 8 * MB)
        E += [f"buffer_load_dword v{T1}, v{T0}, s[32:35], s60 offen", f"buffer_load_dword v{T2}, v{T0}, s[36:39], s60 offen"]
    E += ["s_lshl_b32 s45, s43, 17", "s_lshl_b32 s46, s42, 14", "s_add_u32 s45, s45, s46",
          "s_lshl_b32 s46, s3, 12", "s_add_u32 s45, s45, s46", f"s_mov_b32 s57, {hex(f32bits(QSCALE))}"]
    pk = 32
    for c in range(5):
        for b in range(2):
            a = acc(b, c)
            if c == 2:
                for r in range(16):
                    E += [f"v_mul_f32 v{a+r}, s57, v{a+r}"]
            for r in range(8):
                src = r if (c != 4 or "a32" in EXP) else [0, 1, 4, 5, 2, 3, 6, 7][r]
                E += [f"v_cvt_pk_bf16_f32 v{pk+r}, v{a+2*src}, v{a+2*src+1}"]
            if c < 2:
                E += ["s_nop 1"]
                for t in range(2):
                    E += [f"v_permlane32_swap_b32 v{pk+4*t}, v{pk+4*t+2}", f"v_permlane32_swap_b32 v{pk+4*t+1}, v{pk+4*t+3}"]
            for t in range(2):
                E += [f"buffer_store_dwordx4 {vr(pk+4*t,4)}, v{VL16}, s[24:27], s45 offen offset:{(2*b+t)*1024}"]
            pk = 32 + (pk - 32 + 8) % 56
        E += [f"s_add_u32 s45, s45, {4*MB}"]
    E += stamp(6) + ["s_waitcnt vmcnt(0)"] * STAMPS + stamp(7) + stamp_dump(8, 9)
    E += [f"{N}_done:", "s_endpgm"]
    text = header(N) + P + [f"{N}_loop:"] + B + loop_tail + B14 + B15 + E
    trace = P + B + loop_tail + B + loop_tail + B14 + B15 + E
    errs = check_trace(trace, N)
    return N, text, desc(N, 256), errs, (256, 256, 3 * STG)


ATT_OFF = 40.0
ATT_LMAX = 2.0 ** 60
def gen_attn(merged=False):
    N = "attn_kernel" if not merged else "mix_kernel_a"
    NST = 4; STG = 8192
    Q = {"A": 16, "B": 24}
    S = {"A": 32, "B": 48}
    Pk = {"A": 64, "B": 72}
    O = {"A": 80, "B": 96}
    L = {"A": 112, "B": 116}
    CN = {"A": 120, "B": 136}
    KF = [152, 160]
    VF = [168, 176]
    ONES = 184
    VL16 = 1; VRD = 2; VG = {"A": 3, "B": 4}; T0, T1, T2, T3 = 5, 6, 7, 8
    P = []
    if not merged:
        P += ["s_cmp_ge_u32 s2, 256", f"s_cbranch_scc1 {N}_done"]
        P += ["v_lshrrev_b32 v1, 6, v0", "v_and_b32 v0, 63, v0", "v_readfirstlane_b32 s3, v1"]
    P += stamp(0)
    P += ["s_load_dwordx2 s[40:41], s[0:1], 88", "s_load_dwordx2 s[4:5], s[0:1], 0", "s_load_dwordx2 s[38:39], s[0:1], 64"]
    P += ["s_and_b32 s42, s2, 7", "s_lshr_b32 s43, s2, 3", "s_lshl_b32 s42, s42, 2", "s_lshr_b32 s44, s43, 3",
          "s_add_u32 s42, s42, s44",
          "s_and_b32 s43, s43, 7",
          "s_lshl_b32 s43, s43, 3", "s_lshl_b32 s44, s3, 1", "s_add_u32 s43, s43, s44",
          "s_lshl_b32 s44, s42, 17"]
    P += [f"v_lshlrev_b32 v{VL16}, 4, v0"]
    P += ["s_waitcnt lgkmcnt(0)"] + srd(24, 40, 41, WS_SIZE) + srd(8, 4, 5, 4 * MB) + srd(28, 38, 39, 2048)
    P += ["s_lshl_b32 s45, s43, 11", "s_add_u32 s45, s45, s44", f"s_add_u32 s45, s45, {WS_Q}",
          f"s_add_u32 s46, s44, {WS_K}", f"s_add_u32 s47, s44, {WS_V}"]
    if "rot" in EXP: P += ["s_bfe_u32 s58, s2, 0x30003", "s_lshl_b32 s58, s58, 14"]
    else: P += ["s_mov_b32 s58, 0"]
    P += ["s_add_u32 s59, s46, s58"]
    for i in range(4):
        P += [f"buffer_load_dwordx4 {vr(16+4*i,4)}, v{VL16}, s[24:27], s45 offen offset:{1024*i}"]
    for i in range(4):
        P += [f"buffer_load_dwordx4 {vr(KF[0]+4*i,4)}, v{VL16}, s[24:27], s59 offen offset:{1024*i}"]
    P += ["s_lshl_b32 s51, s3, 10", "s_add_u32 s61, s58, s51", "s_add_u32 s60, s61, 2048", "s_and_b32 s60, s60, 0x1ffff",
          "s_add_u32 s48, s46, s60", "s_add_u32 s49, s47, s61", "s_mov_b32 s50, s51"]
    def dma():
        return [["s_mov_b32 m0, s50", f"buffer_load_dwordx4 v{VL16}, s[24:27], s48 offen lds"],
                ["s_add_u32 m0, s50, 4096", f"buffer_load_dwordx4 v{VL16}, s[24:27], s49 offen lds"]]
    def dma_adv():
        return ["s_add_u32 s60, s60, 4096", "s_and_b32 s60, s60, 0x1ffff", "s_add_u32 s61, s61, 4096", "s_and_b32 s61, s61, 0x1ffff",
                "s_add_u32 s48, s46, s60", "s_add_u32 s49, s47, s61", f"s_add_u32 s50, s50, {STG}",
                f"s_and_b32 s50, s50, {NST*STG-1}"]
    for t in range(NST - 1):
        for a, b in dma(): P += [a, "s_nop 0", b]
        P += dma_adv()
    GX = 192
    P += ["s_lshl_b32 s62, s2, 3", "s_lshl_b32 s45, s3, 1", "s_add_u32 s62, s62, s45", "s_lshl_b32 s45, s62, 11",
          f"v_lshlrev_b32 v{T0}, 5, v0"]
    P += [f"buffer_load_dwordx4 v[{GX}:{GX+3}], v{T0}, s[8:11], s45 offen",
          f"buffer_load_dwordx4 v[{GX+4}:{GX+7}], v{T0}, s[8:11], s45 offen offset:16",
          f"buffer_load_dwordx4 v[{GX+8}:{GX+11}], v{T0}, s[8:11], s45 offen offset:2048",
          f"buffer_load_dwordx4 v[{GX+12}:{GX+15}], v{T0}, s[8:11], s45 offen offset:2064",
          f"buffer_load_dwordx4 v[{GX+16}:{GX+19}], v{T0}, s[28:31], 0 offen",
          f"buffer_load_dwordx4 v[{GX+20}:{GX+23}], v{T0}, s[28:31], 0 offen offset:16"]
    for r in list(range(80, 120)) + list(range(Pk["B"], Pk["B"] + 8)) + list(range(VF[0], VF[0] + 16)):
        P += [f"v_mov_b32 v{r}, 0"]
    P += [f"v_bfe_u32 v{T0}, v0, 2, 1", f"v_bfe_u32 v{T1}, v0, 4, 1", f"v_cmp_eq_u32 vcc, v{T0}, v{T1}",
          f"v_mov_b32 v{T2}, 0x3f803f80", "s_nop 0", f"v_cndmask_b32 v{ONES}, 0, v{T2}, vcc"]
    for i in range(1, 4): P += [f"v_mov_b32 v{ONES+i}, v{ONES}"]
    P += [f"v_mov_b32 v{VRD}, v{VL16}", "s_mov_b32 s52, 0", "s_mov_b32 s53, 0", "s_mov_b32 s63, 0x3f803f80"]
    P += [f"s_waitcnt vmcnt({2*(NST-1)+6})"]
    for X in "AB":
        P += [mfma32(S[X], KF[0], Q[X], "0"), mfma32(S[X], KF[0] + 4, Q[X] + 4),
              mfma32(CN[X], KF[1], Q[X], "0"), mfma32(CN[X], KF[1] + 4, Q[X] + 4)]
    P += ["s_nop 15"]
    for X in "AB":
        m = T0 if X == "A" else T1
        P += [f"v_max3_f32 v{m}, v{S[X]}, v{S[X]+1}, v{S[X]+2}"]
        vals = [S[X] + i for i in range(3, 16)] + [CN[X] + i for i in range(16)]
        for i in range(0, 28, 2):
            P += [f"v_max3_f32 v{m}, v{m}, v{vals[i]}, v{vals[i+1]}"]
        P += [f"v_max_f32 v{m}, v{m}, v{vals[28]}"]
    P += [f"v_mov_b32 v{T2}, v{T0}", f"v_mov_b32 v{T3}, v{T1}", "s_nop 1",
          f"v_permlane32_swap_b32 v{T0}, v{T2}", f"v_permlane32_swap_b32 v{T1}, v{T3}",
          f"v_max_f32 v{T0}, v{T0}, v{T2}", f"v_max_f32 v{T1}, v{T1}, v{T3}",
          f"s_mov_b32 s54, {hex(f32bits(-ATT_OFF))}",
          f"v_sub_f32 v{T0}, s54, v{T0}", f"v_sub_f32 v{T1}, s54, v{T1}"]
    for i in range(16):
        P += [f"v_mov_b32 v{CN['A']+i}, v{T0}", f"v_mov_b32 v{CN['B']+i}, v{T1}"]
    P += ["s_nop 1", mfma32(S["A"], KF[0], Q["A"], CN["A"]), mfma32(S["A"], KF[0] + 4, Q["A"] + 4)]
    P += stamp(1)
    def slot(X, kset_qk, vset_pv, rd):
        Y = "B" if X == "A" else "A"
        mf = [mfma32(S[Y], KF[kset_qk], Q[Y], CN[Y]), mfma32(S[Y], KF[kset_qk] + 4, Q[Y] + 4),
              mfma32(O[Y], VF[vset_pv], Pk[Y]), mfma16(L[Y], ONES, Pk[Y]),
              mfma32(O[Y], VF[vset_pv] + 4, Pk[Y] + 4), mfma16(L[Y], ONES, Pk[Y] + 4)]
        if "a16" in EXP:
            def two(d, a, b): return [mfma16(d, a, b), mfma16(d + 4, a, b)]
            def twoc(d, a, b, c): return [f"v_mfma_f32_16x16x32_bf16 {vr(d,4)}, {vr(a,4)}, {vr(b,4)}, {vr(c,4)}", f"v_mfma_f32_16x16x32_bf16 {vr(d+4,4)}, {vr(a,4)}, {vr(b+4,4)}, {vr(c,4)}"]
            mf = [twoc(S[Y], KF[kset_qk], Q[Y], CN[Y]), twoc(S[Y] + 8, KF[kset_qk] + 4, Q[Y], CN[Y]),
                  two(O[Y], VF[vset_pv], Pk[Y]), [mfma16(L[Y], ONES, Pk[Y])],
                  two(O[Y] + 8, VF[vset_pv] + 4, Pk[Y] + 4), [mfma16(L[Y], ONES, Pk[Y] + 4)]]
        e = [f"v_exp_f32 v{S[X]+i}, v{S[X]+i}" for i in range(16)]
        if "noexp" in EXP: e = [f"v_mov_b32 v{S[X]+i}, v{S[X]+i}" for i in range(16)]
        c = [f"v_cvt_pk_bf16_f32 v{Pk[X]+j}, v{S[X]+2*j}, v{S[X]+2*j+1}" for j in range(8)]
        va = e[0:3] + [c[0]] + e[3:5] + [c[1]] + e[5:7] + [c[2]] + e[7:9] + [c[3]] + e[9:11] + [c[4]] + e[11:13] + [c[5]] + e[13:16] + [c[6], c[7]]
        o = []
        if "ldot" in EXP:
            mf = [mf[0], mf[1], mf[2], mf[4]]
            dots = [f"v_dot2c_f32_bf16 v{L[Y]+(j%4)}, s63, v{Pk[Y]+j}" for j in range(8)]
            for i in range(4):
                o += [mf[i]]
                if i < 2: o += rd[2*i:2*i+2]
                o += va[6*i:6*i+3] + dots[2*i:2*i+1] + va[6*i+3:6*i+6] + dots[2*i+1:2*i+2]
            return o
        if "ladd" in EXP:
            mf = [mf[0], mf[1], mf[2], mf[4]]
            adds = [f"v_add_f32 v{L[X]+(i%4)}, v{L[X]+(i%4)}, v{S[X]+i}" for i in range(16)]
            va2 = []
            ai = 0
            for k_, ins in enumerate(va):
                va2.append(ins)
                if ins.startswith("v_cvt"):
                    va2 += adds[ai:ai+2]; ai += 2
            for i in range(4):
                o += [mf[i]]
                if i < 2: o += rd[2*i:2*i+2]
                o += va2[10*i:10*i+10]
            return o
        for i in range(6):
            if isinstance(mf[i], list):
                o += [mf[i][0]] + va[4*i:4*i+2]
                if len(mf[i]) > 1: o += [mf[i][1]]
                if i < 2: o += rd[2*i:2*i+2]
                o += va[4*i+2:4*i+4]
                continue
            o += [mf[i]]
            if i < 2: o += rd[2*i:2*i+2]
            o += va[4*i:4*i+4]
        return o
    def rds(kb_par, half):
        return [f"ds_read_b128 {vr(KF[1-kb_par],4)}, v{VRD} offset:{half*2048}",
                f"ds_read_b128 {vr(KF[1-kb_par]+4,4)}, v{VRD} offset:{half*2048+1024}",
                f"ds_read_b128 {vr(VF[kb_par],4)}, v{VRD} offset:{4096+half*2048}",
                f"ds_read_b128 {vr(VF[kb_par]+4,4)}, v{VRD} offset:{4096+half*2048+1024}"]
    B = [f"s_waitcnt vmcnt({2*(NST-2)})", "s_barrier"]
    d = dma()
    B += [d[0][0], "s_nop 0", d[0][1], d[1][0], "s_nop 0", d[1][1]] + dma_adv()
    B += slot("A", 0, 1, rds(0, 0))
    B += ["s_waitcnt lgkmcnt(0)"]
    B += slot("B", 1, 0, [])
    B += slot("A", 1, 0, rds(1, 1))
    B += ["s_waitcnt lgkmcnt(0)"]
    B += [f"s_add_u32 s53, s53, {STG}", f"s_and_b32 s53, s53, {NST*STG-1}", f"v_add_u32 v{VRD}, s53, v{VL16}"]
    B += slot("B", 0, 1, [])
    tail = ["s_add_u32 s52, s52, 1", "s_cmp_lt_u32 s52, 32", f"s_cbranch_scc1 {N}_loop"]
    E = stamp(2)
    if "ldot" in EXP:
        E += ["s_nop 1", mfma32(O["B"], VF[1], Pk["B"]), mfma32(O["B"], VF[1] + 4, Pk["B"] + 4)]
        E += [f"v_dot2c_f32_bf16 v{L['B']+(j%4)}, s63, v{Pk['B']+j}" for j in range(8)] + ["s_nop 3"]
        for X in "AB":
            E += [f"v_add_f32 v{L[X]}, v{L[X]}, v{L[X]+1}", f"v_add_f32 v{L[X]+2}, v{L[X]+2}, v{L[X]+3}", f"v_add_f32 v{L[X]}, v{L[X]}, v{L[X]+2}",
                  f"v_mov_b32 v{T1}, v{L[X]}", "s_nop 1", f"v_permlane32_swap_b32 v{L[X]}, v{T1}", f"v_add_f32 v{L[X]}, v{L[X]}, v{T1}"]
        E += ["s_nop 7"]
    else:
        E += ["s_nop 1", mfma32(O["B"], VF[1], Pk["B"]), mfma16(L["B"], ONES, Pk["B"]),
              mfma32(O["B"], VF[1] + 4, Pk["B"] + 4), mfma16(L["B"], ONES, Pk["B"] + 4), "s_nop 15"]
    E += [f"s_mov_b32 s54, {hex(f32bits(ATT_LMAX))}",
          f"v_cmp_gt_f32 vcc, s54, v{L['A']}", f"v_cmp_gt_f32 s[56:57], s54, v{L['B']}", "s_nop 1",
          "s_and_b64 vcc, vcc, s[56:57]", "s_cmp_eq_u64 vcc, exec", f"s_cbranch_scc0 {N}_fallback"]
    E2 = [f"{N}_final:"]
    E2 += ["s_lshl_b32 s45, s43, 16", "s_lshl_b32 s46, s42, 11", "s_add_u32 s45, s45, s46", f"s_add_u32 s45, s45, {WS_O}"]
    for X in "AB":
        E2 += [f"v_rcp_f32 v{T0}, v{L[X]}", "s_nop 0"]
        for i in range(16):
            E2 += [f"v_mul_f32 v{O[X]+i}, v{O[X]+i}, v{T0}"]
        for j in range(8):
            E2 += [f"v_cvt_pk_bf16_f32 v{S[X]+j}, v{O[X]+2*j}, v{O[X]+2*j+1}"]
        for t in range(2):
            E2 += [f"buffer_store_dwordx4 {vr(S[X]+4*t,4)}, v{VL16}, s[24:27], s45 offen offset:{1024*t}"]
        E2 += ["s_add_u32 s45, s45, 65536"]
    A0, A1 = 64, 65
    E2 += ["s_waitcnt vmcnt(4)", f"v_mov_b32 v{A0}, 0", f"v_mov_b32 v{A1}, 0"]
    for i in range(8):
        w = GX + 16 + i
        E2 += [f"v_lshlrev_b32 v66, 16, v{w}", f"v_and_b32 v67, 0xffff0000, v{w}"]
        for r, a in ((0, A0), (1, A1)):
            x = GX + 8 * r + i
            E2 += [f"v_lshlrev_b32 v68, 16, v{x}", f"v_and_b32 v69, 0xffff0000, v{x}",
                  "v_mul_f32 v68, v68, v66", "v_mul_f32 v69, v69, v67",
                  "v_cvt_pk_bf16_f32 v70, v68, v69",
                  "v_lshlrev_b32 v68, 16, v70", "v_and_b32 v69, 0xffff0000, v70",
                  f"v_add_f32 v{a}, v{a}, v68", f"v_add_f32 v{a}, v{a}, v69"]
    for off in (0x041F, 0x081F, 0x101F, 0x201F, 0x401F):
        E2 += [f"ds_swizzle_b32 v66, v{A0} offset:{off}", f"ds_swizzle_b32 v67, v{A1} offset:{off}",
              "s_waitcnt lgkmcnt(0)", f"v_add_f32 v{A0}, v{A0}, v66", f"v_add_f32 v{A1}, v{A1}, v67"]
    E2 += ["s_nop 0", f"v_readlane_b32 s55, v{A0}, 32", f"v_readlane_b32 s56, v{A1}, 32", "s_nop 1",
          f"v_add_f32 v{A0}, s55, v{A0}", f"v_add_f32 v{A1}, s56, v{A1}",
          "v_cmp_eq_u32 vcc, 1, v0", "s_nop 1", f"v_cndmask_b32 v{A0}, v{A0}, v{A1}, vcc",
          f"v_cvt_pk_bf16_f32 v{A0}, v{A0}, v{A0}", f"v_lshlrev_b32 v{A0}, 16, v{A0}",
          f"v_mul_f32 v{A0}, {hex(f32bits(-LOG2E))}, v{A0}", f"v_exp_f32 v{A0}, v{A0}", "s_nop 0",
          f"v_add_f32 v{A0}, 1.0, v{A0}", f"v_rcp_f32 v{A0}, v{A0}", "s_nop 0",
          f"v_cvt_pk_bf16_f32 v{A0}, v{A0}, v{A0}", f"v_lshlrev_b32 v{VG['A']}, 16, v{A0}"]
    E2 += [f"v_lshlrev_b32 v{T0}, 2, v0", "s_lshl_b32 s45, s62, 2", f"s_add_u32 s45, s45, {WS_G}",
           "v_cmp_gt_u32 vcc, 2, v0", "s_and_saveexec_b64 s[58:59], vcc",
           f"buffer_store_dword v{VG['A']}, v{T0}, s[24:27], s45 offen", "s_mov_b64 exec, s[58:59]"]
    E2 += stamp(3) + ["s_waitcnt vmcnt(0)"] + stamp(4) + stamp_dump(5, 9, 1)
    E2 += [f"{N}_done:", "s_endpgm"]
    F = [f"{N}_fallback:", "s_waitcnt vmcnt(0)"]
    M = {"A": 9, "B": 10}; AL = 11
    for X in "AB":
        F += [f"v_mov_b32 v{M[X]}, 0xff7fffff", f"v_mov_b32 v{L[X]}, 0"]
        for i in range(16): F += [f"v_mov_b32 v{O[X]+i}, 0"]
    F += [f"s_add_u32 s46, s44, {WS_K}", f"s_add_u32 s47, s44, {WS_V}", "s_mov_b32 s52, 0"]
    FB = []
    FB += [f"buffer_load_dwordx4 {vr(KF[0],4)}, v{VL16}, s[24:27], s46 offen",
           f"buffer_load_dwordx4 {vr(KF[0]+4,4)}, v{VL16}, s[24:27], s46 offen offset:1024",
           f"buffer_load_dwordx4 {vr(VF[0],4)}, v{VL16}, s[24:27], s47 offen",
           f"buffer_load_dwordx4 {vr(VF[0]+4,4)}, v{VL16}, s[24:27], s47 offen offset:1024",
           "s_waitcnt vmcnt(0)"]
    for X in "AB":
        FB += [mfma32(S[X], KF[0], Q[X], "0"), mfma32(S[X], KF[0] + 4, Q[X] + 4), "s_nop 15"]
        FB += [f"v_max3_f32 v{T0}, v{S[X]}, v{S[X]+1}, v{M[X]}"]
        for i in range(2, 16, 2): FB += [f"v_max3_f32 v{T0}, v{T0}, v{S[X]+i}, v{S[X]+i+1}"]
        FB += [f"v_mov_b32 v{T1}, v{T0}", "s_nop 1", f"v_permlane32_swap_b32 v{T0}, v{T1}", f"v_max_f32 v{T0}, v{T0}, v{T1}",
               f"v_sub_f32 v{AL}, v{M[X]}, v{T0}", f"v_exp_f32 v{AL}, v{AL}", f"v_mov_b32 v{M[X]}, v{T0}",
               f"v_mul_f32 v{L[X]}, v{L[X]}, v{AL}"]
        for i in range(16):
            FB += [f"v_sub_f32 v{S[X]+i}, v{S[X]+i}, v{T0}", f"v_exp_f32 v{S[X]+i}, v{S[X]+i}", f"v_mul_f32 v{O[X]+i}, v{O[X]+i}, v{AL}"]
        for j in range(8):
            FB += [f"v_cvt_pk_bf16_f32 v{Pk[X]+j}, v{S[X]+2*j}, v{S[X]+2*j+1}",
                   f"v_lshlrev_b32 v{T1}, 16, v{Pk[X]+j}", f"v_and_b32 v{T2}, 0xffff0000, v{Pk[X]+j}",
                   f"v_add_f32 v{L[X]}, v{L[X]}, v{T1}", f"v_add_f32 v{L[X]}, v{L[X]}, v{T2}"]
        FB += ["s_nop 1", mfma32(O[X], VF[0], Pk[X]), mfma32(O[X], VF[0] + 4, Pk[X] + 4)]
    FB += ["s_nop 15", "s_add_u32 s46, s46, 2048", "s_add_u32 s47, s47, 2048", "s_add_u32 s52, s52, 1", "s_cmp_lt_u32 s52, 64",
           f"s_cbranch_scc1 {N}_fbloop"]
    FE = []
    for X in "AB":
        FE += [f"v_mov_b32 v{T1}, v{L[X]}", "s_nop 1", f"v_permlane32_swap_b32 v{L[X]}, v{T1}", f"v_add_f32 v{L[X]}, v{L[X]}, v{T1}"]
    FE += [f"s_branch {N}_final"]
    text = (header(N) if not merged else []) + P + [f"{N}_loop:"] + B + tail + E + E2 + F + [f"{N}_fbloop:"] + FB + FE
    errs = check_trace(P + B + tail + B + tail + E + E2, N)
    errs += check_trace(P + B + tail + E + F + FB + FB + FE + E2, N + "_fb")
    return N, text, desc(N, 216), errs, (256, 256, NST * STG)


def mix(rd, dd):
    out = []
    for i, r in enumerate(rd):
        if i < len(dd): out += [dd[i][0], r, dd[i][1]] if dd[i][0] else [r, dd[i][1]]
        else: out += [r]
    for j in range(len(rd), len(dd)):
        out += ([dd[j][0], "s_nop 0"] if dd[j][0] else []) + [dd[j][1]]
    return out

def kloop(N, nkt, nst, ndma, dma, dma_adv, reads, mfmas, rd_adv, cnt_sreg, npre=1, late=0):
    pre = [f"s_waitcnt vmcnt({ndma*(nst-2-late)})", "s_barrier"] + reads(0, 0) + [f"s_mov_b32 s{cnt_sreg}, 0"]
    for i in range(late):
        pre += mix([], dma()) + dma_adv()
    def body(do_dma, last, inflight):
        o = []
        d = dma() if do_dma else []
        h = (len(d) + 1) // 2
        o += ["s_waitcnt lgkmcnt(0)"]
        o += spread(mfmas(0, 0), mix(reads(1, 1), d[:h]))
        o += ["s_waitcnt lgkmcnt(0)"]
        o += spread(mfmas(1, 1), mix(reads(0, 2), d[h:]) + (dma_adv() if do_dma else []))
        o += ["s_waitcnt lgkmcnt(0)"]
        o += spread(mfmas(0, 2), reads(1, 3) + ([] if last else rd_adv()))
        o += ["s_waitcnt lgkmcnt(0)"]
        m = mfmas(1, 3)
        if last:
            o += m
        else:
            o += m[:npre] + [f"s_waitcnt vmcnt({inflight*ndma})", "s_barrier"] + spread(m[npre:], reads(0, 0))
        return o
    nmain = nkt - (nst - 1)
    B = body(True, False, nst - 2)
    tail = [f"s_add_u32 s{cnt_sreg}, s{cnt_sreg}, 1", f"s_cmp_lt_u32 s{cnt_sreg}, {nmain}", f"s_cbranch_scc1 {N}_loop"]
    rest = []
    for i in range(nst - 1):
        last = (i == nst - 2)
        rest += body(False, last, nst - 3 - i if not last else 0)
    text = [f"{N}_loop:"] + B + tail + rest
    trace = B + tail + B + tail + rest
    return pre, text, trace

def gen_ygemm(merged=False):
    N = "ygemm_kernel" if not merged else "mix_kernel_y"
    NST = 4; STG = 32768; L_B = 16384
    LB0 = 32768 if merged else 0
    ACC = 64
    def acc(i, j): return ACC + (i * 2 + j) * 16
    def fr(s, i): return 32 + s * 16 + i * 4
    VL16 = 1; VB = [2, 3, 4, 5]; AA0 = 6; BA0 = [7, 8, 9, 10]; AA = 11; BA = [12, 13, 14, 15]
    T0, T1, T2, T3 = 16, 17, 18, 19
    P = []
    if not merged:
        P += ["s_cmp_ge_u32 s2, 256", f"s_cbranch_scc1 {N}_done"]
        P += ["v_lshrrev_b32 v1, 6, v0", "v_and_b32 v0, 63, v0", "v_readfirstlane_b32 s3, v1"]
    P += stamp(0)
    P += ["s_and_b32 s42, s2, 1",
          "s_load_dwordx4 s[4:7], s[0:1], 8", "s_load_dwordx2 s[40:41], s[0:1], 88"]
    P += ["s_bfe_u32 s44, s2, 0x10001", "s_lshl_b32 s44, s44, 2", "s_bfe_u32 s45, s2, 0x20003", "s_add_u32 s44, s44, s45",
          "s_bfe_u32 s45, s2, 0x10002", "s_lshl_b32 s45, s45, 3", "s_lshr_b32 s46, s2, 5", "s_add_u32 s45, s45, s46"]
    P += [f"v_lshlrev_b32 v{VL16}, 4, v0"]
    P += [f"v_lshrrev_b32 v{T0}, 3, v0", f"v_and_b32 v{T1}, 7, v0", f"v_lshrrev_b32 v{T2}, 4, v0",
          "s_lshl_b32 s46, s45, 7", "s_lshl_b32 s47, s3, 5", "s_add_u32 s46, s46, s47",
          f"v_add_u32 v{T3}, s46, v{T0}", f"v_lshlrev_b32 v{T3}, 12, v{T3}",
          f"v_xor_b32 v{VB[0]}, v{T1}, v{T2}", f"v_lshlrev_b32 v{VB[0]}, 4, v{VB[0]}", f"v_add_u32 v{VB[0]}, v{VB[0]}, v{T3}"]
    for q in range(1, 4):
        if q % 2: P += [f"v_xor_b32 v{VB[q]}, 64, v{VB[0]}", f"v_add_u32 v{VB[q]}, {q*8*4096}, v{VB[q]}"]
        else: P += [f"v_add_u32 v{VB[q]}, {q*8*4096}, v{VB[0]}"]
    P += ["s_and_b32 s46, s3, 1", "s_lshl_b32 s46, s46, 13", f"s_add_u32 s46, s46, {LB0}", f"v_add_u32 v{AA0}, s46, v{VL16}",
          "s_lshr_b32 s46, s3, 1", "s_lshl_b32 s46, s46, 13", f"s_add_u32 s46, s46, {L_B + LB0}"]
    P += [f"v_lshrrev_b32 v{T0}, 5, v0", f"v_lshrrev_b32 v{T1}, 1, v0", f"v_and_b32 v{T1}, 7, v{T1}",
          f"v_xor_b32 v{T0}, v{T0}, v{T1}", f"v_and_b32 v{T1}, 31, v0", f"v_lshlrev_b32 v{T1}, 7, v{T1}",
          f"v_add_u32 v{T1}, s46, v{T1}"]
    for ks in range(4):
        P += [f"v_xor_b32 v{T2}, {2*ks}, v{T0}", f"v_lshlrev_b32 v{T2}, 4, v{T2}", f"v_add_u32 v{BA0[ks]}, v{T2}, v{T1}",
              f"v_mov_b32 v{BA[ks]}, v{BA0[ks]}"]
    P += [f"v_mov_b32 v{AA}, v{AA0}"]
    P += ["s_waitcnt lgkmcnt(0)", "s_cmp_eq_u32 s42, 0", "s_cselect_b32 s4, s4, s6", "s_cselect_b32 s5, s5, s7"] + srd(8, 4, 5, 8 * MB) + srd(24, 40, 41, WS_SIZE)
    P += ["s_lshl_b32 s47, s44, 2", "s_add_u32 s47, s47, s3", "s_lshl_b32 s47, s47, 17",
          f"s_mul_i32 s46, s42, {4*MB}", "s_add_u32 s47, s47, s46",
          "s_mov_b32 s48, 0", "s_lshl_b32 s50, s3, 12", "s_mov_b32 s49, s50", "s_mov_b32 s51, 0", "s_mov_b32 s57, s47"]
    if "yrot1" in EXP or "yrot2" in EXP:
        P += ["s_lshr_b32 s48, s2, 5", f"s_lshl_b32 s48, s48, {8 if 'yrot2' in EXP else 7}", "s_lshl_b32 s56, s48, 5", "s_add_u32 s47, s57, s56"]
    if "rot" in EXP:
        P += ["s_lshr_b32 s48, s2, 5", "s_lshl_b32 s48, s48, 2", "s_bfe_u32 s56, s2, 0x20003", "s_lshl_b32 s56, s56, 3",
              "s_add_u32 s48, s48, s56", "s_and_b32 s48, s48, 31", "s_lshl_b32 s48, s48, 7",
              "s_lshl_b32 s56, s48, 5", "s_add_u32 s47, s57, s56"]
    def dma():
        o = [[f"s_add_u32 m0, s49, {LB0}", f"buffer_load_dwordx4 v{VL16}, s[24:27], s47 offen lds"]]
        for u in range(1, 4):
            o.append([None, f"buffer_load_dwordx4 v{VL16}, s[24:27], s47 offen offset:{1024*u} lds"])
        for q in range(4):
            o.append([f"s_add_u32 m0, s49, {LB0 + L_B + 1024*q}", f"buffer_load_dwordx4 v{VB[q]}, s[8:11], s48 offen lds"])
        if "noydma" in EXP: o = [[a_, "s_nop 0"] for a_, b_ in o]
        return o
    def dma_adv():
        return ["s_add_u32 s48, s48, 128", "s_and_b32 s48, s48, 0xfff", "s_lshl_b32 s56, s48, 5", "s_add_u32 s47, s57, s56",
                f"s_add_u32 s49, s49, {STG}", f"s_and_b32 s49, s49, {NST*STG-1}"]
    LATE = 1 if "late1" in EXP else (2 if "late2" in EXP else 0)
    for t in range(NST - 1 - LATE):
        P += mix([], dma()) + dma_adv()
    for r in range(ACC, ACC + 64): P += [f"v_mov_b32 v{r}, 0"]
    def reads(s_, ks):
        if "noyrd" in EXP: return ["s_nop 0"] * 4
        return [f"ds_read_b128 {vr(fr(s_,0),4)}, v{AA} offset:{ks*1024}",
                f"ds_read_b128 {vr(fr(s_,2),4)}, v{BA[ks]}",
                f"ds_read_b128 {vr(fr(s_,3),4)}, v{BA[ks]} offset:4096",
                f"ds_read_b128 {vr(fr(s_,1),4)}, v{AA} offset:{4096+ks*1024}"]
    def mfmas(s_, ks=0):
        if "noy" in EXP: return ["s_nop 0"] * 4
        if "y16" in EXP:
            o = []
            for (i, j) in ((0, 0), (0, 1), (1, 0), (1, 1)):
                o += [mfma16(acc(i, j) + 8 * s_, fr(s_, i), fr(s_, 2 + j)), mfma16(acc(i, j) + 8 * s_ + 4, fr(s_, i), fr(s_, 2 + j))]
            return o
        return [mfma32(acc(0, 0), fr(s_, 0), fr(s_, 2)), mfma32(acc(0, 1), fr(s_, 0), fr(s_, 3)),
                mfma32(acc(1, 0), fr(s_, 1), fr(s_, 2)), mfma32(acc(1, 1), fr(s_, 1), fr(s_, 3))]
    def rd_adv():
        o = [f"s_add_u32 s51, s51, {STG}", f"s_and_b32 s51, s51, {NST*STG-1}", f"v_add_u32 v{AA}, s51, v{AA0}"]
        for i in range(4): o += [f"v_add_u32 v{BA[i]}, s51, v{BA0[i]}"]
        return o
    P += stamp(1)
    pre, ktext, ktrace = kloop(N, 32, NST, 8, dma, dma_adv, reads, mfmas, rd_adv, 52, late=LATE)
    E = ["s_nop 15"] + stamp(2)
    E += ["s_lshl_b32 s46, s44, 2", "s_and_b32 s47, s3, 1", "s_lshl_b32 s47, s47, 1", "s_add_u32 s46, s46, s47", "s_lshl_b32 s46, s46, 17",
          "s_lshl_b32 s47, s45, 2", "s_lshr_b32 s48, s3, 1", "s_lshl_b32 s48, s48, 1", "s_add_u32 s47, s47, s48", "s_lshl_b32 s47, s47, 11",
          "s_add_u32 s46, s46, s47", f"s_mul_i32 s47, s42, {4*MB}", "s_add_u32 s46, s46, s47", f"s_add_u32 s46, s46, {WS_Y1}"]
    pk = 32
    for i in range(2):
        for j in range(2):
            a = acc(i, j)
            for r in range(8): E += [f"v_cvt_pk_bf16_f32 v{pk+r}, v{a+2*r}, v{a+2*r+1}"]
            for t in range(2):
                E += [f"buffer_store_dwordx4 {vr(pk+4*t,4)}, v{VL16}, s[24:27], s46 offen offset:{j*2048+t*1024}"]
            pk = 32 + (pk - 32 + 8) % 32
        E += ["s_add_u32 s46, s46, 131072"]
    E += stamp(3) + ["s_waitcnt vmcnt(0)"] * STAMPS + stamp(4) + stamp_dump(5, 9, 2, 128 if merged else 0)
    E += [f"{N}_done:", "s_endpgm"]
    text = (header(N) if not merged else []) + P + pre + ktext + E
    errs = check_trace(P + pre + ktrace + E, N)
    return N, text, desc(N, 128), errs, (256, 256, NST * STG)

def gen_ygemm16(merged=False):
    N = "ygemm_kernel" if not merged else "mix_kernel_y"
    NST = 4; STG = 32768; L_B = 16384
    LB0 = 32768 if merged else 0
    ACC = 72
    def acc(i, j): return ACC + (i * 4 + j) * 4
    def fa(s, i): return 24 + s * 8 + i * 4
    def fb(s, j): return 40 + s * 16 + j * 4
    VL16 = 1; VB = [2, 3, 4, 5]; AA0 = 6; BA0 = [7, 8]; AA = 11; BA = [12, 13]; VY = 14
    T0, T1, T2, T3 = 16, 17, 18, 19
    P = []
    if not merged:
        P += ["s_cmp_ge_u32 s2, 256", f"s_cbranch_scc1 {N}_done"]
        P += ["v_lshrrev_b32 v1, 6, v0", "v_and_b32 v0, 63, v0", "v_readfirstlane_b32 s3, v1"]
    P += stamp(0)
    P += ["s_and_b32 s42, s2, 1",
          "s_load_dwordx4 s[4:7], s[0:1], 8", "s_load_dwordx2 s[40:41], s[0:1], 88"]
    P += ["s_bfe_u32 s44, s2, 0x10001", "s_lshl_b32 s44, s44, 2", "s_bfe_u32 s45, s2, 0x20003", "s_add_u32 s44, s44, s45",
          "s_bfe_u32 s45, s2, 0x10002", "s_lshl_b32 s45, s45, 3", "s_lshr_b32 s46, s2, 5", "s_add_u32 s45, s45, s46"]
    P += [f"v_lshlrev_b32 v{VL16}, 4, v0"]
    P += [f"v_lshrrev_b32 v{T0}, 3, v0", f"v_and_b32 v{T1}, 7, v0", f"v_lshrrev_b32 v{T2}, 4, v0",
          "s_lshl_b32 s46, s45, 7", "s_lshl_b32 s47, s3, 5", "s_add_u32 s46, s46, s47",
          f"v_add_u32 v{T3}, s46, v{T0}", f"v_lshlrev_b32 v{T3}, 12, v{T3}",
          f"v_xor_b32 v{VB[0]}, v{T1}, v{T2}", f"v_lshlrev_b32 v{VB[0]}, 4, v{VB[0]}", f"v_add_u32 v{VB[0]}, v{VB[0]}, v{T3}"]
    for q in range(1, 4):
        if q % 2: P += [f"v_xor_b32 v{VB[q]}, 64, v{VB[0]}", f"v_add_u32 v{VB[q]}, {q*8*4096}, v{VB[q]}"]
        else: P += [f"v_add_u32 v{VB[q]}, {q*8*4096}, v{VB[0]}"]
    P += [f"v_and_b32 v{T0}, 15, v0", f"v_lshrrev_b32 v{T1}, 4, v0",
          f"v_and_b32 v{T2}, 1, v{T1}", f"v_lshlrev_b32 v{T2}, 5, v{T2}", f"v_add_u32 v{T2}, v{T2}, v{T0}", f"v_lshlrev_b32 v{T2}, 4, v{T2}",
          f"v_lshrrev_b32 v{T3}, 1, v{T1}",
          f"v_lshlrev_b32 v{VY}, 3, v{T3}", f"v_add_u32 v{VY}, v{VY}, v{T2}",
          f"v_lshlrev_b32 v{T3}, 10, v{T3}", f"v_add_u32 v{T2}, v{T2}, v{T3}",
          "s_and_b32 s46, s3, 1", "s_lshl_b32 s46, s46, 13", f"s_add_u32 s46, s46, {LB0}", f"v_add_u32 v{AA0}, s46, v{T2}",
          "s_lshr_b32 s46, s3, 1", "s_lshl_b32 s46, s46, 13", f"s_add_u32 s46, s46, {L_B + LB0}",
          f"v_lshrrev_b32 v{T2}, 1, v{T0}", f"v_xor_b32 v{T2}, v{T2}, v{T1}",
          f"v_lshlrev_b32 v{T3}, 7, v{T0}", f"v_add_u32 v{T3}, s46, v{T3}"]
    for kk in range(2):
        P += [f"v_xor_b32 v{T0}, {4*kk}, v{T2}", f"v_lshlrev_b32 v{T0}, 4, v{T0}", f"v_add_u32 v{BA0[kk]}, v{T0}, v{T3}",
              f"v_mov_b32 v{BA[kk]}, v{BA0[kk]}"]
    P += [f"v_mov_b32 v{AA}, v{AA0}"]
    P += ["s_waitcnt lgkmcnt(0)", "s_cmp_eq_u32 s42, 0", "s_cselect_b32 s4, s4, s6", "s_cselect_b32 s5, s5, s7"] + srd(8, 4, 5, 8 * MB) + srd(24, 40, 41, WS_SIZE)
    P += ["s_lshl_b32 s47, s44, 2", "s_add_u32 s47, s47, s3", "s_lshl_b32 s47, s47, 17",
          f"s_mul_i32 s46, s42, {4*MB}", "s_add_u32 s47, s47, s46",
          "s_mov_b32 s48, 0", "s_lshl_b32 s50, s3, 12", "s_mov_b32 s49, s50", "s_mov_b32 s51, 0", "s_mov_b32 s57, s47"]
    if "yrot1" in EXP or "yrot2" in EXP:
        P += ["s_lshr_b32 s48, s2, 5", f"s_lshl_b32 s48, s48, {8 if 'yrot2' in EXP else 7}", "s_lshl_b32 s56, s48, 5", "s_add_u32 s47, s57, s56"]
    if "rot" in EXP:
        P += ["s_lshr_b32 s48, s2, 5", "s_lshl_b32 s48, s48, 2", "s_bfe_u32 s56, s2, 0x20003", "s_lshl_b32 s56, s56, 3",
              "s_add_u32 s48, s48, s56", "s_and_b32 s48, s48, 31", "s_lshl_b32 s48, s48, 7",
              "s_lshl_b32 s56, s48, 5", "s_add_u32 s47, s57, s56"]
    def dma():
        o = [[f"s_add_u32 m0, s49, {LB0}", f"buffer_load_dwordx4 v{VL16}, s[24:27], s47 offen lds"]]
        for u in range(1, 4):
            o.append([None, f"buffer_load_dwordx4 v{VL16}, s[24:27], s47 offen offset:{1024*u} lds"])
        for q in range(4):
            o.append([f"s_add_u32 m0, s49, {LB0 + L_B + 1024*q}", f"buffer_load_dwordx4 v{VB[q]}, s[8:11], s48 offen lds"])
        if "noydma" in EXP: o = [[a_, "s_nop 0"] for a_, b_ in o]
        return o
    def dma_adv():
        return ["s_add_u32 s48, s48, 128", "s_and_b32 s48, s48, 0xfff", "s_lshl_b32 s56, s48, 5", "s_add_u32 s47, s57, s56",
                f"s_add_u32 s49, s49, {STG}", f"s_and_b32 s49, s49, {NST*STG-1}"]
    LATE = 1 if "late1" in EXP else (2 if "late2" in EXP else 0)
    for t in range(NST - 1 - LATE):
        P += mix([], dma()) + dma_adv()
    for r in range(ACC, ACC + 64): P += [f"v_mov_b32 v{r}, 0"]
    def reads(s_, ks):
        kk, eh = ks >> 1, ks & 1
        o = [f"ds_read_b128 {vr(fa(s_,0),4)}, v{AA} offset:{eh*4096+kk*2048}"]
        if eh == 0:
            o += [f"ds_read_b128 {vr(fb(kk,j),4)}, v{BA[kk]} offset:{j*2048}" for j in range(4)]
        o += [f"ds_read_b128 {vr(fa(s_,1),4)}, v{AA} offset:{eh*4096+kk*2048+256}"]
        return o
    def mfmas(s_, ks=0):
        kk, eh = ks >> 1, ks & 1
        return [mfma16(acc(2 * eh + i, j), fa(s_, i), fb(kk, j)) for i in range(2) for j in range(4)]
    def rd_adv():
        o = [f"s_add_u32 s51, s51, {STG}", f"s_and_b32 s51, s51, {NST*STG-1}", f"v_add_u32 v{AA}, s51, v{AA0}"]
        for i in range(2): o += [f"v_add_u32 v{BA[i]}, s51, v{BA0[i]}"]
        return o
    P += stamp(1)
    pre, ktext, ktrace = kloop(N, 32, NST, 8, dma, dma_adv, reads, mfmas, rd_adv, 52, npre=2, late=LATE)
    E = ["s_nop 15"] + stamp(2)
    E += ["s_lshl_b32 s46, s44, 2", "s_and_b32 s47, s3, 1", "s_lshl_b32 s47, s47, 1", "s_add_u32 s46, s46, s47", "s_lshl_b32 s46, s46, 17",
          "s_lshl_b32 s47, s45, 2", "s_lshr_b32 s48, s3, 1", "s_lshl_b32 s48, s48, 1", "s_add_u32 s47, s47, s48", "s_lshl_b32 s47, s47, 11",
          "s_add_u32 s46, s46, s47", f"s_mul_i32 s47, s42, {4*MB}", "s_add_u32 s46, s46, s47", f"s_add_u32 s46, s46, {WS_Y1}"]
    pk = 24
    for i in range(4):
        for j in range(4):
            a = acc(i, j)
            E += [f"v_cvt_pk_bf16_f32 v{pk}, v{a}, v{a+1}", f"v_cvt_pk_bf16_f32 v{pk+1}, v{a+2}, v{a+3}",
                  f"buffer_store_dwordx2 {vr(pk,2)}, v{VY}, s[24:27], s46 offen offset:{(i&1)*1024 + (j&1)*256 + (j>>1)*2048}"]
            pk = 24 + (pk - 24 + 2) % 32
        if i == 1: E += ["s_add_u32 s46, s46, 131072"]
    E += stamp(3) + ["s_waitcnt vmcnt(0)"] * STAMPS + stamp(4) + stamp_dump(5, 9, 2, 128 if merged else 0)
    E += [f"{N}_done:", "s_endpgm"]
    text = (header(N) if not merged else []) + P + pre + ktext + E
    errs = check_trace(P + pre + ktrace + E, N)
    return N, text, desc(N, 136), errs, (256, 256, NST * STG)


def mfma16c(d, a, b, c):
    cs = c if isinstance(c, str) else vr(c, 4)
    return f"v_mfma_f32_16x16x32_bf16 {vr(d,4)}, {vr(a,4)}, {vr(b,4)}, {cs}"

def gen_attn16():
    N = "mix_kernel_a"
    NST = 4; STG = 8192
    def Q(qb): return 16 + 4 * qb
    S = {"A": 32, "B": 48}
    Pk = {"A": 64, "B": 72}
    def O(qb, db=0): return 80 + 8 * qb + 4 * db
    def L(qb): return 112 + 4 * qb
    def CN(qb): return 128 + 4 * qb
    KF = [144, 152]; VF = [160, 168]; ONES = 176
    QB0 = {"A": 0, "B": 2}
    VL16 = 1; VRD = 2; VG = 3; VPAT = 4; T0, T1, T2, T3 = 5, 6, 7, 8; VO = 9
    P = []
    P += stamp(0)
    P += ["s_load_dwordx2 s[40:41], s[0:1], 88", "s_load_dwordx2 s[4:5], s[0:1], 0", "s_load_dwordx2 s[38:39], s[0:1], 64"]
    P += ["s_and_b32 s42, s2, 7", "s_lshr_b32 s43, s2, 3", "s_lshl_b32 s42, s42, 2", "s_lshr_b32 s44, s43, 3",
          "s_add_u32 s42, s42, s44", "s_and_b32 s43, s43, 7",
          "s_lshl_b32 s43, s43, 3", "s_lshl_b32 s44, s3, 1", "s_add_u32 s43, s43, s44",
          "s_lshl_b32 s44, s42, 17"]
    P += [f"v_lshlrev_b32 v{VL16}, 4, v0", f"v_and_b32 v{T0}, 15, v0", f"v_bfe_u32 v{T1}, v0, 4, 1", f"v_lshlrev_b32 v{T1}, 5, v{T1}",
          f"v_add_u32 v{T0}, v{T0}, v{T1}", f"v_lshlrev_b32 v{T0}, 4, v{T0}", f"v_lshrrev_b32 v{T1}, 5, v0",
          f"v_lshlrev_b32 v{T2}, 10, v{T1}", f"v_add_u32 v{VPAT}, v{T0}, v{T2}", f"v_lshlrev_b32 v{T2}, 3, v{T1}", f"v_add_u32 v{VO}, v{T0}, v{T2}"]
    P += ["s_waitcnt lgkmcnt(0)"] + srd(24, 40, 41, WS_SIZE) + srd(8, 4, 5, 4 * MB) + srd(28, 38, 39, 2048)
    P += ["s_lshl_b32 s45, s43, 11", "s_add_u32 s45, s45, s44", f"s_add_u32 s45, s45, {WS_Q}",
          f"s_add_u32 s46, s44, {WS_K}", f"s_add_u32 s47, s44, {WS_V}"]
    for qb in range(4):
        P += [f"buffer_load_dwordx4 {vr(Q(qb),4)}, v{VPAT}, s[24:27], s45 offen offset:{(qb&1)*256 + (qb>>1)*2048}"]
    for i in range(4):
        P += [f"buffer_load_dwordx4 {vr(KF[0]+4*i,4)}, v{VPAT}, s[24:27], s46 offen offset:{(i&1)*256 + (i>>1)*2048}"]
    P += ["s_lshl_b32 s51, s3, 10", "s_mov_b32 s61, s51", "s_add_u32 s60, s61, 2048",
          "s_add_u32 s48, s46, s60", "s_add_u32 s49, s47, s61", "s_mov_b32 s50, s51"]
    def dma():
        return [["s_mov_b32 m0, s50", f"buffer_load_dwordx4 v{VL16}, s[24:27], s48 offen lds"],
                ["s_add_u32 m0, s50, 4096", f"buffer_load_dwordx4 v{VL16}, s[24:27], s49 offen lds"]]
    def dma_adv():
        return ["s_add_u32 s60, s60, 4096", "s_and_b32 s60, s60, 0x1ffff", "s_add_u32 s61, s61, 4096", "s_and_b32 s61, s61, 0x1ffff",
                "s_add_u32 s48, s46, s60", "s_add_u32 s49, s47, s61", f"s_add_u32 s50, s50, {STG}",
                f"s_and_b32 s50, s50, {NST*STG-1}"]
    for t in range(NST - 1):
        for a, b in dma(): P += [a, "s_nop 0", b]
        P += dma_adv()
    GX = 192
    P += ["s_lshl_b32 s62, s2, 3", "s_lshl_b32 s45, s3, 1", "s_add_u32 s62, s62, s45", "s_lshl_b32 s45, s62, 11",
          f"v_lshlrev_b32 v{T0}, 5, v0"]
    P += [f"buffer_load_dwordx4 v[{GX}:{GX+3}], v{T0}, s[8:11], s45 offen",
          f"buffer_load_dwordx4 v[{GX+4}:{GX+7}], v{T0}, s[8:11], s45 offen offset:16",
          f"buffer_load_dwordx4 v[{GX+8}:{GX+11}], v{T0}, s[8:11], s45 offen offset:2048",
          f"buffer_load_dwordx4 v[{GX+12}:{GX+15}], v{T0}, s[8:11], s45 offen offset:2064",
          f"buffer_load_dwordx4 v[{GX+16}:{GX+19}], v{T0}, s[28:31], 0 offen",
          f"buffer_load_dwordx4 v[{GX+20}:{GX+23}], v{T0}, s[28:31], 0 offen offset:16"]
    for r in list(range(112, 128)) + list(range(Pk["B"], Pk["B"] + 8)) + list(range(VF[0], VF[0] + 16)):
        P += [f"v_mov_b32 v{r}, 0"]
    for i in range(4): P += [f"v_mov_b32 v{ONES+i}, 0x3f803f80"]
    P += [f"v_mov_b32 v{VRD}, v{VPAT}", "s_mov_b32 s52, 0", "s_mov_b32 s53, 0"]
    P += [f"s_waitcnt vmcnt({2*(NST-1)+6})"]
    def TM(qb): return (32 + 16 * qb) if qb < 2 else (80 + 16 * (qb - 2))
    for qb in range(4):
        for i in range(4):
            P += [mfma16c(TM(qb) + 4 * i, KF[0] + 4 * i, Q(qb), "0")]
    P += ["s_nop 7"]
    MX = [10, 11, 12, 13]
    for qb in range(4):
        t = TM(qb); m = MX[qb]
        P += [f"v_max3_f32 v{m}, v{t}, v{t+1}, v{t+2}"]
        for i in range(3, 15, 2): P += [f"v_max3_f32 v{m}, v{m}, v{t+i}, v{t+i+1}"]
        P += [f"v_max_f32 v{m}, v{m}, v{t+15}"]
    for qb in range(4): P += [f"ds_swizzle_b32 v{T0+qb}, v{MX[qb]} offset:0x401F"]
    P += ["s_waitcnt lgkmcnt(0)"]
    for qb in range(4): P += [f"v_max_f32 v{MX[qb]}, v{MX[qb]}, v{T0+qb}"]
    for qb in range(4): P += [f"v_mov_b32 v{T0+qb}, v{MX[qb]}"]
    P += ["s_nop 1"]
    for qb in range(4): P += [f"v_permlane32_swap_b32 v{MX[qb]}, v{T0+qb}"]
    P += [f"s_mov_b32 s54, {hex(f32bits(-ATT_OFF))}"]
    for qb in range(4):
        P += [f"v_max_f32 v{MX[qb]}, v{MX[qb]}, v{T0+qb}", f"v_sub_f32 v{MX[qb]}, s54, v{MX[qb]}"]
        for i in range(4): P += [f"v_mov_b32 v{CN(qb)+i}, v{MX[qb]}"]
    for r in range(80, 112): P += [f"v_mov_b32 v{r}, 0"]
    def qk(Y, kset):
        return [mfma16c(S[Y] + (qi * 2 + kb) * 4, KF[kset] + 4 * kb, Q(QB0[Y] + qi), CN(QB0[Y] + qi)) for qi in range(2) for kb in range(2)]
    def pv(Y, vset):
        o = []
        for qi in range(2):
            qb = QB0[Y] + qi
            o += [mfma16(O(qb, 0), VF[vset], Pk[Y] + 4 * qi), mfma16(O(qb, 1), VF[vset] + 4, Pk[Y] + 4 * qi), mfma16(L(qb), ONES, Pk[Y] + 4 * qi)]
        return o
    P += qk("A", 0) + ["s_nop 7"]
    P += stamp(1)
    def slot(X, kset_qk, vset_pv, rd, extra=[]):
        Y = "B" if X == "A" else "A"
        mf = qk(Y, kset_qk) + pv(Y, vset_pv)
        e = [f"v_exp_f32 v{S[X]+i}, v{S[X]+i}" for i in range(16)]
        c = [f"v_cvt_pk_bf16_f32 v{Pk[X]+j}, v{S[X]+2*j}, v{S[X]+2*j+1}" for j in range(8)]
        va = e[0:3] + [c[0]] + e[3:5] + [c[1]] + e[5:7] + [c[2]] + e[7:9] + [c[3]] + e[9:11] + [c[4]] + e[11:13] + [c[5]] + e[13:16] + [c[6], c[7]]
        cnt = [2, 2, 3, 2, 3, 2, 3, 2, 3, 2]
        o = []; vi = 0
        for i in range(10):
            o += [mf[i]]
            if i < 4 and rd: o += [rd[i]]
            if i < len(extra): o += extra[i][:1]
            o += va[vi:vi + cnt[i]]; vi += cnt[i]
            if i < len(extra): o += extra[i][1:]
        assert vi == 24
        return o
    def rds(kb_par, half):
        return [f"ds_read_b128 {vr(KF[1-kb_par],4)}, v{VRD} offset:{half*2048}",
                f"ds_read_b128 {vr(KF[1-kb_par]+4,4)}, v{VRD} offset:{half*2048+256}",
                f"ds_read_b128 {vr(VF[kb_par],4)}, v{VRD} offset:{4096+half*2048}",
                f"ds_read_b128 {vr(VF[kb_par]+4,4)}, v{VRD} offset:{4096+half*2048+256}"]
    B = [f"s_waitcnt vmcnt({2*(NST-2)})", "s_barrier"]
    d = dma()
    if "newtop" not in EXP:
        B += [d[0][0], "s_nop 0", d[0][1], d[1][0], "s_nop 0", d[1][1]] + dma_adv()
        B += slot("A", 0, 1, rds(0, 0))
        B += ["s_waitcnt lgkmcnt(0)"]
        B += slot("B", 1, 0, [])
    else:
        adv = dma_adv()
        B += slot("A", 0, 1, rds(0, 0), [[], [], [], [], d[0], d[1]])
        B += ["s_waitcnt lgkmcnt(0)"]
        B += slot("B", 1, 0, [], [adv[0:2], adv[2:4], adv[4:6], adv[6:8]])
    B += slot("A", 1, 0, rds(1, 1))
    B += ["s_waitcnt lgkmcnt(0)"]
    B += slot("B", 0, 1, [], [[f"s_add_u32 s53, s53, {STG}", f"s_and_b32 s53, s53, {NST*STG-1}"], [f"v_add_u32 v{VRD}, s53, v{VPAT}"]])
    tail = ["s_add_u32 s52, s52, 1", "s_cmp_lt_u32 s52, 32", f"s_cbranch_scc1 {N}_loop"]
    E = stamp(2)
    E += ["s_nop 1"] + pv("B", 1) + ["s_nop 7"]
    E += [f"s_mov_b32 s54, {hex(f32bits(ATT_LMAX))}",
          f"v_max3_f32 v{T0}, v{L(0)}, v{L(1)}, v{L(2)}", f"v_cmp_gt_f32 vcc, s54, v{T0}", f"v_cmp_gt_f32 s[56:57], s54, v{L(3)}",
          f"v_cmp_o_f32 s[58:59], v{L(0)}, v{L(1)}", f"v_cmp_o_f32 s[64:65], v{L(2)}, v{L(3)}", "s_nop 1",
          "s_and_b64 vcc, vcc, s[56:57]", "s_and_b64 vcc, vcc, s[58:59]", "s_and_b64 vcc, vcc, s[64:65]",
          "s_cmp_eq_u64 vcc, exec", f"s_cbranch_scc0 {N}_fallback"]
    E2 = [f"{N}_final:"]
    E2 += ["s_lshl_b32 s45, s43, 16", "s_lshl_b32 s46, s42, 11", "s_add_u32 s45, s45, s46", f"s_add_u32 s45, s45, {WS_O}"]
    for qb in range(4):
        E2 += [f"v_rcp_f32 v{T0}, v{L(qb)}", "s_nop 0"]
        for i in range(8): E2 += [f"v_mul_f32 v{O(qb)+i}, v{O(qb)+i}, v{T0}"]
        for db in range(2):
            pk = 32 + qb * 4 + db * 2
            E2 += [f"v_cvt_pk_bf16_f32 v{pk}, v{O(qb,db)}, v{O(qb,db)+1}", f"v_cvt_pk_bf16_f32 v{pk+1}, v{O(qb,db)+2}, v{O(qb,db)+3}",
                   f"buffer_store_dwordx2 {vr(pk,2)}, v{VO}, s[24:27], s45 offen offset:{(qb&1)*256 + db*1024}"]
        if qb == 1: E2 += ["s_add_u32 s45, s45, 65536"]
    A0, A1 = 64, 65
    E2 += ["s_waitcnt vmcnt(8)", f"v_mov_b32 v{A0}, 0", f"v_mov_b32 v{A1}, 0"]
    for i in range(8):
        w = GX + 16 + i
        E2 += [f"v_lshlrev_b32 v66, 16, v{w}", f"v_and_b32 v67, 0xffff0000, v{w}"]
        for r, a in ((0, A0), (1, A1)):
            x = GX + 8 * r + i
            E2 += [f"v_lshlrev_b32 v68, 16, v{x}", f"v_and_b32 v69, 0xffff0000, v{x}",
                  "v_mul_f32 v68, v68, v66", "v_mul_f32 v69, v69, v67",
                  "v_cvt_pk_bf16_f32 v70, v68, v69",
                  "v_lshlrev_b32 v68, 16, v70", "v_and_b32 v69, 0xffff0000, v70",
                  f"v_add_f32 v{a}, v{a}, v68", f"v_add_f32 v{a}, v{a}, v69"]
    for off in (0x041F, 0x081F, 0x101F, 0x201F, 0x401F):
        E2 += [f"ds_swizzle_b32 v66, v{A0} offset:{off}", f"ds_swizzle_b32 v67, v{A1} offset:{off}",
              "s_waitcnt lgkmcnt(0)", f"v_add_f32 v{A0}, v{A0}, v66", f"v_add_f32 v{A1}, v{A1}, v67"]
    E2 += ["s_nop 0", f"v_readlane_b32 s55, v{A0}, 32", f"v_readlane_b32 s56, v{A1}, 32", "s_nop 1",
          f"v_add_f32 v{A0}, s55, v{A0}", f"v_add_f32 v{A1}, s56, v{A1}",
          "v_cmp_eq_u32 vcc, 1, v0", "s_nop 1", f"v_cndmask_b32 v{A0}, v{A0}, v{A1}, vcc",
          f"v_cvt_pk_bf16_f32 v{A0}, v{A0}, v{A0}", f"v_lshlrev_b32 v{A0}, 16, v{A0}",
          f"v_mul_f32 v{A0}, {hex(f32bits(-LOG2E))}, v{A0}", f"v_exp_f32 v{A0}, v{A0}", "s_nop 0",
          f"v_add_f32 v{A0}, 1.0, v{A0}", f"v_rcp_f32 v{A0}, v{A0}", "s_nop 0",
          f"v_cvt_pk_bf16_f32 v{A0}, v{A0}, v{A0}", f"v_lshlrev_b32 v{VG}, 16, v{A0}"]
    E2 += [f"v_lshlrev_b32 v{T0}, 2, v0", "s_lshl_b32 s45, s62, 2", f"s_add_u32 s45, s45, {WS_G}",
           "v_cmp_gt_u32 vcc, 2, v0", "s_and_saveexec_b64 s[58:59], vcc",
           f"buffer_store_dword v{VG}, v{T0}, s[24:27], s45 offen", "s_mov_b64 exec, s[58:59]"]
    E2 += stamp(3) + ["s_waitcnt vmcnt(0)"] + stamp(4) + stamp_dump(5, 9, 1)
    E2 += [f"{N}_done:", "s_endpgm"]
    F = [f"{N}_fallback:", "s_waitcnt vmcnt(0)"]
    AL = 14
    for qb in range(4):
        F += [f"v_mov_b32 v{MX[qb]}, 0xff7fffff", f"v_mov_b32 v{L(qb)}, 0"]
        for i in range(8): F += [f"v_mov_b32 v{O(qb)+i}, 0"]
    F += [f"s_add_u32 s46, s44, {WS_K}", f"s_add_u32 s47, s44, {WS_V}", "s_mov_b32 s52, 0"]
    FB = [f"buffer_load_dwordx4 {vr(KF[0],4)}, v{VPAT}, s[24:27], s46 offen",
          f"buffer_load_dwordx4 {vr(KF[0]+4,4)}, v{VPAT}, s[24:27], s46 offen offset:256",
          f"buffer_load_dwordx4 {vr(VF[0],4)}, v{VPAT}, s[24:27], s47 offen",
          f"buffer_load_dwordx4 {vr(VF[0]+4,4)}, v{VPAT}, s[24:27], s47 offen offset:256",
          "s_waitcnt vmcnt(0)"]
    for qb in range(4):
        s0 = 32; p0 = 64
        FB += [mfma16c(s0, KF[0], Q(qb), "0"), mfma16c(s0 + 4, KF[0] + 4, Q(qb), "0"), "s_nop 7"]
        FB += [f"v_max3_f32 v{T0}, v{s0}, v{s0+1}, v{MX[qb]}", f"v_max3_f32 v{T0}, v{T0}, v{s0+2}, v{s0+3}",
               f"v_max3_f32 v{T0}, v{T0}, v{s0+4}, v{s0+5}", f"v_max3_f32 v{T0}, v{T0}, v{s0+6}, v{s0+7}",
               f"ds_swizzle_b32 v{T1}, v{T0} offset:0x401F", "s_waitcnt lgkmcnt(0)", f"v_max_f32 v{T0}, v{T0}, v{T1}",
               f"v_mov_b32 v{T1}, v{T0}", "s_nop 1", f"v_permlane32_swap_b32 v{T0}, v{T1}", f"v_max_f32 v{T0}, v{T0}, v{T1}",
               f"v_sub_f32 v{AL}, v{MX[qb]}, v{T0}", f"v_exp_f32 v{AL}, v{AL}", f"v_mov_b32 v{MX[qb]}, v{T0}",
               f"v_mul_f32 v{L(qb)}, v{L(qb)}, v{AL}"]
        for i in range(8):
            FB += [f"v_sub_f32 v{s0+i}, v{s0+i}, v{T0}", f"v_exp_f32 v{s0+i}, v{s0+i}", f"v_mul_f32 v{O(qb)+i}, v{O(qb)+i}, v{AL}"]
        for j in range(4):
            FB += [f"v_cvt_pk_bf16_f32 v{p0+j}, v{s0+2*j}, v{s0+2*j+1}",
                   f"v_lshlrev_b32 v{T1}, 16, v{p0+j}", f"v_and_b32 v{T2}, 0xffff0000, v{p0+j}",
                   f"v_add_f32 v{L(qb)}, v{L(qb)}, v{T1}", f"v_add_f32 v{L(qb)}, v{L(qb)}, v{T2}"]
        FB += ["s_nop 1", mfma16(O(qb, 0), VF[0], p0), mfma16(O(qb, 1), VF[0] + 4, p0), "s_nop 7"]
    FB += ["s_add_u32 s46, s46, 2048", "s_add_u32 s47, s47, 2048", "s_add_u32 s52, s52, 1", "s_cmp_lt_u32 s52, 64",
           f"s_cbranch_scc1 {N}_fbloop"]
    FE = []
    for qb in range(4):
        FE += [f"ds_swizzle_b32 v{T1}, v{L(qb)} offset:0x401F", "s_waitcnt lgkmcnt(0)", f"v_add_f32 v{L(qb)}, v{L(qb)}, v{T1}",
               f"v_mov_b32 v{T1}, v{L(qb)}", "s_nop 1", f"v_permlane32_swap_b32 v{L(qb)}, v{T1}", f"v_add_f32 v{L(qb)}, v{L(qb)}, v{T1}"]
    FE += [f"s_branch {N}_final"]
    text = P + [f"{N}_loop:"] + B + tail + E + E2 + F + [f"{N}_fbloop:"] + FB + FE
    errs = check_trace(P + B + tail + B + tail + E + E2, N)
    errs += check_trace(P + B + tail + E + F + FB + FB + FE + E2, N + "_fb")
    return N, text, desc(N, 216), errs, (256, 256, NST * STG)

def gen_mix():
    N = "mix_kernel"
    _, ta, _, ea, _ = gen_attn(True) if "a32" in EXP else gen_attn16()
    _, ty, _, ey, _ = gen_ygemm(True) if "y32" in EXP else gen_ygemm16(True)
    H = header(N) + ["s_cmp_ge_u32 s2, 256", "s_cbranch_scc1 mix_kernel_a_done",
         "v_lshrrev_b32 v1, 6, v0", "v_and_b32 v0, 63, v0", "v_readfirstlane_b32 s3, v1", "s_nop 3",
         "s_cmp_ge_u32 s3, 4", "s_cbranch_scc1 mix_kernel_ystart"]
    text = H + (["s_setprio 1"] if "prioa" in EXP else []) + ta + ["mix_kernel_ystart:", "s_sub_u32 s3, s3, 4"] + (["s_setprio 1"] if "prioy" in EXP else []) + ty
    return N, text, desc(N, 216), ea + ey, (256, 512, 163840)

def gen_out():
    N = "out_kernel"
    NST = 6 if "o6" in EXP else 4; STG = 24576; L_B = 8192
    ACC = 64
    def acc(i): return ACC + i * 16
    def fr(s, i): return 32 + s * 12 + i * 4
    VL16 = 1; VW = [2, 3]; WA0 = 4; BA0 = 5; WA = 6; BA = 7; VG = 8; VO = 9
    T0, T1, T2, T3 = 16, 17, 18, 19
    Y = 96
    P = ["s_cmp_ge_u32 s2, 256", f"s_cbranch_scc1 {N}_done"]
    P += stamp(0)
    P += ["s_load_dwordx2 s[4:5], s[0:1], 56", "s_load_dwordx2 s[6:7], s[0:1], 72", "s_load_dwordx2 s[40:41], s[0:1], 88"]
    P += ["v_lshrrev_b32 v1, 6, v0", "v_and_b32 v0, 63, v0", "v_readfirstlane_b32 s3, v1"]
    P += ["s_and_b32 s45, s2, 3", "s_lshl_b32 s45, s45, 2", "s_bfe_u32 s46, s2, 0x20003", "s_add_u32 s45, s45, s46",
          "s_bfe_u32 s44, s2, 0x10002", "s_lshl_b32 s44, s44, 3", "s_lshr_b32 s46, s2, 5", "s_add_u32 s44, s44, s46",
          "s_lshl_b32 s43, s45, 2", "s_add_u32 s43, s43, s3"]
    P += [f"v_lshlrev_b32 v{VL16}, 4, v0"]
    P += [f"v_lshrrev_b32 v{T3}, 2, v0", "s_lshl_b32 s46, s3, 4", f"v_add_u32 v{T3}, s46, v{T3}", f"v_lshlrev_b32 v{T3}, 11, v{T3}",
          f"v_and_b32 v{VW[0]}, 3, v0", f"v_lshlrev_b32 v{VW[0]}, 4, v{VW[0]}", f"v_add_u32 v{VW[0]}, v{VW[0]}, v{T3}",
          "s_lshl_b32 s46, s44, 7", f"v_add_u32 v{VW[0]}, s46, v{VW[0]}", f"v_add_u32 v{VW[1]}, 64, v{VW[0]}"]
    P += [f"v_lshrrev_b32 v{T0}, 5, v0", f"v_lshlrev_b32 v{T0}, 2, v{T0}", f"v_bfe_u32 v{T1}, v0, 2, 2",
          f"v_add_u32 v{T0}, v{T0}, v{T1}", f"v_lshlrev_b32 v{T0}, 6, v{T0}",
          f"v_bfe_u32 v{T1}, v0, 4, 1", f"v_lshlrev_b32 v{T1}, 5, v{T1}", f"v_add_u32 v{T0}, v{T0}, v{T1}",
          f"v_and_b32 v{T1}, 3, v0", f"v_lshlrev_b32 v{T1}, 3, v{T1}", f"v_add_u32 v{WA0}, v{T0}, v{T1}",
          "s_lshl_b32 s50, s3, 12", f"s_add_u32 s46, s50, {L_B}", f"v_add_u32 v{BA0}, s46, v{VL16}",
          f"v_mov_b32 v{WA}, v{WA0}", f"v_mov_b32 v{BA}, v{BA0}"]
    P += [f"v_and_b32 v{T0}, 31, v0", "s_lshl_b32 s46, s43, 5", f"v_add_u32 v{T1}, s46, v{T0}", f"v_lshlrev_b32 v{VO}, 11, v{T1}",
          f"v_lshrrev_b32 v{T2}, 5, v0", f"v_lshlrev_b32 v{T2}, 4, v{T2}", f"v_add_u32 v{VO}, v{VO}, v{T2}",
          "s_lshl_b32 s46, s44, 7", f"v_add_u32 v{VO}, s46, v{VO}", f"v_lshlrev_b32 v{T1}, 2, v{T1}"]
    P += ["s_waitcnt lgkmcnt(0)"] + stamp(5) + srd(8, 4, 5, 2 * MB) + srd(12, 6, 7, 4 * MB) + srd(24, 40, 41, WS_SIZE)
    P += ["s_lshl_b32 s47, s43, 16", f"s_add_u32 s47, s47, {WS_O}", "s_mov_b32 s48, 0", "s_mov_b32 s49, 0",
          "s_lshl_b32 s53, s3, 10", "s_mov_b32 s51, 0"]
    def dma():
        o = [["s_add_u32 m0, s49, s53", f"buffer_load_dwordx4 v{VW[0]}, s[8:11], s48 offen lds"],
             ["s_add_u32 m0, m0, 4096", f"buffer_load_dwordx4 v{VW[1]}, s[8:11], s48 offen lds"],
             ["s_add_u32 m0, s49, s54", f"buffer_load_dwordx4 v{VL16}, s[24:27], s47 offen lds"]]
        for u in range(1, 4):
            o.append([None, f"buffer_load_dwordx4 v{VL16}, s[24:27], s47 offen offset:{1024*u} lds"])
        if "nowo" in EXP:
            o[0][1] = f"buffer_load_dwordx4 v{VL16}, s[24:27], s47 offen lds"
            o[1][1] = f"buffer_load_dwordx4 v{VL16}, s[24:27], s47 offen lds"
        if "noo" in EXP:
            for u in range(2, 6): o[u][1] = f"buffer_load_dwordx4 v{VW[0]}, s[8:11], s48 offen lds"
        return o
    def dma_adv():
        if "norot3" not in EXP:
            return ["s_add_u32 s56, s56, 4096", "s_and_b32 s56, s56, 0xffff", "s_add_u32 s47, s57, s56", "s_lshl_b32 s48, s56, 5",
                    f"s_add_u32 s49, s49, {STG}", f"s_cmp_ge_u32 s49, {NST*STG}", "s_cselect_b32 s49, 0, s49"]
        return ["s_add_u32 s47, s47, 4096", f"s_add_u32 s48, s48, {64*2048}", f"s_add_u32 s49, s49, {STG}",
                f"s_cmp_ge_u32 s49, {NST*STG}", "s_cselect_b32 s49, 0, s49"]
    P += [f"s_add_u32 s54, s50, {L_B}"]
    if "norot3" not in EXP:
        P += ["s_lshr_b32 s56, s2, 5", "s_lshl_b32 s56, s56, 1", "s_bfe_u32 s57, s2, 0x20003", "s_lshl_b32 s57, s57, 2",
              "s_add_u32 s56, s56, s57", "s_and_b32 s56, s56, 15", "s_lshl_b32 s56, s56, 12",
              "s_mov_b32 s57, s47", "s_add_u32 s47, s57, s56", "s_lshl_b32 s48, s56, 5"]
    YL = []
    YL += ["s_lshl_b32 s46, s44, 18", "s_lshl_b32 s55, s43, 11", "s_add_u32 s46, s46, s55", f"s_add_u32 s46, s46, {WS_Y1}"]
    for i in range(2):
        for p in range(2):
            YL += [f"s_add_u32 s55, s46, {i*131072 + p*4*MB}"]
            for t in range(2):
                YL += [f"buffer_load_dwordx4 {vr(Y+(i*2+p)*8+4*t,4)}, v{VL16}, s[24:27], s55 offen offset:{1024*t}"]
    YL += [f"s_mov_b32 s55, {WS_G}", f"buffer_load_dword v{VG}, v{T1}, s[24:27], s55 offen"]
    if "ylate" not in EXP: P += YL
    P += stamp(6)
    for t in range(NST - 1):
        P += mix([], dma()) + dma_adv()
    P += stamp(7)
    if "ylate" in EXP: P += YL
    for r in range(ACC, ACC + 32): P += [f"v_mov_b32 v{r}, 0"]
    def reads(s_, ks):
        return [f"ds_read_b128 {vr(fr(s_,2),4)}, v{BA} offset:{ks*1024}",
                f"ds_read_b64_tr_b16 {vr(fr(s_,0),2)}, v{WA} offset:{ks*1024}",
                f"ds_read_b64_tr_b16 {vr(fr(s_,0)+2,2)}, v{WA} offset:{ks*1024+512}",
                f"ds_read_b64_tr_b16 {vr(fr(s_,1),2)}, v{WA} offset:{4096+ks*1024}",
                f"ds_read_b64_tr_b16 {vr(fr(s_,1)+2,2)}, v{WA} offset:{4096+ks*1024+512}"]
    def mfmas(s_, ks=0):
        if "nomf" in EXP: return ["s_nop 0", "s_nop 0"]
        return [mfma32(acc(0), fr(s_, 0), fr(s_, 2)), mfma32(acc(1), fr(s_, 1), fr(s_, 2))]
    def rd_adv():
        return [f"s_add_u32 s51, s51, {STG}", f"s_cmp_ge_u32 s51, {NST*STG}", "s_cselect_b32 s51, 0, s51",
                f"v_add_u32 v{WA}, s51, v{WA0}", f"v_add_u32 v{BA}, s51, v{BA0}"]
    P += stamp(1)
    pre, ktext, ktrace = kloop(N, 16, NST, 6, dma, dma_adv, reads, mfmas, rd_adv, 52)
    E = ["s_nop 15"] + stamp(2)
    E += [f"v_sub_f32 v20, 1.0, v{VG}", "v_cvt_pk_bf16_f32 v20, v20, v20", "v_lshlrev_b32 v20, 16, v20"]
    pk = 32
    for i in range(2):
        a = acc(i)
        for r in range(16): E += [f"v_mul_f32 v{a+r}, v20, v{a+r}"]
        for r in range(8):
            y1 = Y + (i * 2) * 8 + r; y2 = Y + (i * 2 + 1) * 8 + r
            E += [f"v_lshlrev_b32 v{T0}, 16, v{y1}", f"v_lshlrev_b32 v{T1}, 16, v{y2}", f"v_sub_f32 v{T0}, v{T0}, v{T1}",
                  f"v_and_b32 v{T2}, 0xffff0000, v{y1}", f"v_and_b32 v{T3}, 0xffff0000, v{y2}", f"v_sub_f32 v{T2}, v{T2}, v{T3}",
                  f"v_fmac_f32 v{a+2*r}, v{VG}, v{T0}", f"v_fmac_f32 v{a+2*r+1}, v{VG}, v{T2}",
                  f"v_cvt_pk_bf16_f32 v{pk+r}, v{a+2*r}, v{a+2*r+1}"]
        E += ["s_nop 1"]
        for t in range(2):
            E += [f"v_permlane32_swap_b32 v{pk+4*t}, v{pk+4*t+2}", f"v_permlane32_swap_b32 v{pk+4*t+1}, v{pk+4*t+3}"]
        for t in range(2):
            E += [f"buffer_store_dwordx4 {vr(pk+4*t,4)}, v{VO}, s[12:15], 0 offen offset:{i*64+t*32}"]
        pk += 8
    E += stamp(3) + ["s_waitcnt vmcnt(0)"] * STAMPS + stamp(4) + stamp_dump(8, 9, 3)
    E += [f"{N}_done:", "s_endpgm"]
    text = header(N) + P + pre + ktext + E
    errs = check_trace(P + pre + ktrace + E, N)
    return N, text, desc(N, 128), errs, (256, 256, NST * STG)

def build(kernels, path):
    hdr = open("gated_mix__spectral_fnet__softmax_full_mha__prompt.s.ref").read().split("; Override launch")[0]
    out = hdr
    for (N, text, d, errs, (g, b, lds)) in kernels:
        out += f"; @launch kernel={N} grid=({g},1,1) block=({b},1,1) lds={lds}\n"
    out += '.amdgcn_target "amdgcn-amd-amdhsa--gfx950"\n.text\n'
    seen = set()
    for (N, text, d, errs, _) in kernels:
        if N in seen: continue
        seen.add(N)
        for e in errs: print("HAZARD", e)
        for l in text:
            out += (l if (l.endswith(":") or l.startswith(".")) else "    " + l) + "\n"
    out += '.section .rodata,"a"\n'
    seen = set()
    for (N, text, d, errs, _) in kernels:
        if N in seen: continue
        seen.add(N)
        out += d
    for fl in ("sc1", "sc0 sc1", "nt", "sc0"):
        if "st_" + fl.replace(" ", "_") in EXP:
            import re as _re
            out = _re.sub(r"(buffer_store_dwordx[24] [^\n]*s\[24:27\][^\n]*)", lambda m: m.group(1) + " " + fl, out)
    for fl in ("sc1", "nt"):
        if "sto_" + fl in EXP:
            import re as _re
            out = _re.sub(r"(buffer_store_dwordx[24] [^\n]*s\[12:15\][^\n]*)", lambda m: m.group(1) + " " + fl, out)
    open(path, "w").write(out)

if __name__ == "__main__":
    if len(sys.argv) > 2 and sys.argv[2] == "stamps": STAMPS = True
    for a in sys.argv[3:]: EXP.add(a)
    ks = [gen_proj(), gen_mix(), gen_out()]
    build(ks, sys.argv[1] if len(sys.argv) > 1 else "k.s")
```

```python
import sys, struct
from asmlib import *

MB = 1 << 20
WS_AT, WS_BT, WS_Q, WS_K, WS_V, WS_O, WS_Y1, WS_Y2, WS_G = [i * 4 * MB for i in range(9)]
WS_SIZE = 40 * MB
LOG2E = 1.4426950408889634
QSCALE = (32 ** -0.5) * LOG2E

def f32bits(x):
    return struct.unpack("<I", struct.pack("<f", x))[0]

def srd(base, lo, hi, size):
    return [f"s_mov_b32 s{base}, s{lo}", f"s_mov_b32 s{base+1}, s{hi}",
            f"s_mov_b32 s{base+2}, {size}", f"s_mov_b32 s{base+3}, 0x00020000"]

def desc(name, nv, ns=102):
    acc = (nv + 3) // 4 * 4
    return f"""
.p2align 6
.amdhsa_kernel {name}
  .amdhsa_next_free_vgpr {nv}
  .amdhsa_next_free_sgpr {ns}
  .amdhsa_accum_offset {acc}
  .amdhsa_group_segment_fixed_size 0
  .amdhsa_kernarg_size 96
  .amdhsa_user_sgpr_count 2
  .amdhsa_user_sgpr_kernarg_segment_ptr 1
  .amdhsa_system_sgpr_workgroup_id_x 1
.end_amdhsa_kernel
"""

def mfma32(d, a, b, c=None):
    cs = vr(d, 16) if c is None else (str(c) if isinstance(c, str) else vr(c, 16))
    return f"v_mfma_f32_32x32x16_bf16 {vr(d,16)}, {vr(a,4)}, {vr(b,4)}, {cs}"
def mfma16(d, a, b):
    return f"v_mfma_f32_16x16x32_bf16 {vr(d,4)}, {vr(a,4)}, {vr(b,4)}, {vr(d,4)}"

STAMPS = False
EXP = set()
def stamp(i):
    if not STAMPS: return []
    return ([f"s_memrealtime s[68:69]"] if i == 0 else [f"s_memrealtime s[100:101]"]) + [f"s_memtime s[{70+2*i}:{71+2*i}]", "s_waitcnt lgkmcnt(0)"] + ([] if i == 0 else [f"s_sub_u32 s{71+2*i}, s100, s68"])
def stamp_dump(n, wgsel=0, slot=0, dbgoff=0):
    if not STAMPS: return []
    o = ["s_load_dwordx2 s[90:91], s[0:1], 80", "s_waitcnt lgkmcnt(0)",
         "s_mov_b32 s92, s90", "s_mov_b32 s93, s91", "s_mov_b32 s94, 256", "s_mov_b32 s95, 0x00020000",
         "s_mov_b64 exec, 1", f"s_mov_b32 s96, {dbgoff}", "s_cmp_lg_u32 s3, 0", "s_cselect_b32 s96, 0x1000, s96"]
    o += [f"s_cmp_lg_u32 s2, {wgsel}", "s_cselect_b32 s96, 0x1000, s96"]
    o += ["s_memrealtime s[98:99]", "s_load_dwordx2 s[60:61], s[0:1], 88", "s_waitcnt lgkmcnt(0)",
          "s_mov_b32 s62, 0x10000000", "s_mov_b32 s63, 0x00020000",
          "s_lshl_b32 s97, s2, 4", f"s_add_u32 s97, s97, {64*MB + slot*65536}",
          "v_mov_b32 v4, s68", "v_mov_b32 v5, s69", "v_mov_b32 v6, s98", "v_mov_b32 v7, s99", "v_mov_b32 v2, 0",
          "buffer_store_dwordx4 v[4:7], v2, s[60:63], s97 offen"]
    for i in range(n):
        o += [f"s_sub_u32 s97, s{70+2*i}, s70", "v_mov_b32 v1, s97", f"v_mov_b32 v2, {4*i}",
              "buffer_store_dword v1, v2, s[92:95], s96 offen"]
    o += ["s_cmp_lg_u32 s3, 0", "s_cselect_b32 s96, 0x1000, s96"]
    for i in range(1, n):
        o += [f"v_mov_b32 v1, s{71+2*i}", f"v_mov_b32 v2, {4*i + 32}", "buffer_store_dword v1, v2, s[92:95], s96 offen"]
    return o

def header(name):
    return [f".globl {name}", ".p2align 8", f".type {name},@function", f"{name}:"]

def gen_proj():
    N = "proj_kernel"
    STG = 53248
    L_HR, L_HI, L_W = 32768, 36864, 40960
    ACC = 96
    def acc(b, c): return ACC + (b * 5 + c) * 16
    def fr(s, i): return 32 + s * 28 + i * 4
    VX = list(range(1, 9)); VH = 9; VW = [10, 88, 89]
    XA0 = [11, 12, 13, 14]; HA0 = [15, 16, 17, 18]; WA0 = 19
    XA = [20, 21, 22, 23]; HA = [24, 25, 26, 27]; WA = 28
    VL16 = 29
    VG = 90
    T0, T1, T2, T3 = 30, 31, 92, 93
    P = []
    P += [f"s_cmp_ge_u32 s2, 256", f"s_cbranch_scc1 {N}_done"]
    P += stamp(0)
    P += ["s_load_dwordx2 s[4:5], s[0:1], 0", "s_load_dwordx4 s[32:35], s[0:1], 24",
          "s_load_dwordx2 s[36:37], s[0:1], 48",
          "s_load_dwordx2 s[40:41], s[0:1], 88"]
    P += ["v_lshrrev_b32 v1, 6, v0", "v_and_b32 v0, 63, v0", "v_readfirstlane_b32 s3, v1"]
    P += ["s_and_b32 s42, s2, 7", "s_lshr_b32 s43, s2, 3",
          "s_and_b32 s44, s42, 1", "s_lshl_b32 s44, s44, 2", "s_and_b32 s45, s43, 3", "s_add_u32 s44, s44, s45",
          "s_lshr_b32 s42, s42, 1", "s_lshl_b32 s42, s42, 3", "s_lshr_b32 s43, s43, 2", "s_add_u32 s43, s43, s42"]
    P += ["s_mov_b32 s42, s44"]
    P += ["s_lshl_b32 s44, s42, 8", "s_lshl_b32 s45, s3, 6", "s_add_u32 s44, s44, s45",
          "s_lshl_b32 s50, s3, 13", "s_lshl_b32 s51, s3, 10"]
    P += [f"v_lshrrev_b32 v{T0}, 3, v0", f"v_and_b32 v{T1}, 7, v0", f"v_lshrrev_b32 v{T2}, 4, v0",
          f"v_lshlrev_b32 v{VL16}, 4, v0"]
    P += [f"v_add_u32 v{T3}, s44, v{T0}", f"v_lshlrev_b32 v{T3}, 11, v{T3}",
          f"v_xor_b32 v{VX[0]}, v{T1}, v{T2}", f"v_lshlrev_b32 v{VX[0]}, 4, v{VX[0]}",
          f"v_add_u32 v{VX[0]}, v{VX[0]}, v{T3}"]
    for q in range(1, 8):
        if q % 2 == 1:
            P += [f"v_xor_b32 v{VX[q]}, 64, v{VX[0]}", f"v_add_u32 v{VX[q]}, {q*8*2048}, v{VX[q]}"]
        else:
            P += [f"v_add_u32 v{VX[q]}, {q*8*2048}, v{VX[0]}"]
    P += ["s_lshl_b32 s45, s43, 5", "s_lshl_b32 s46, s3, 3", "s_add_u32 s45, s45, s46",
          f"v_add_u32 v{T3}, s45, v{T0}", f"v_lshlrev_b32 v{T3}, 11, v{T3}",
          "s_lshl_b32 s46, s3, 2", f"v_add_u32 v{VH}, s46, v{T2}", f"v_and_b32 v{VH}, 7, v{VH}",
          f"v_xor_b32 v{VH}, v{VH}, v{T1}", f"v_lshlrev_b32 v{VH}, 4, v{VH}", f"v_add_u32 v{VH}, v{VH}, v{T3}"]
    P += [f"v_lshrrev_b32 v{T3}, 2, v0", "s_lshl_b32 s46, s3, 4", f"v_add_u32 v{T3}, s46, v{T3}",
          "s_movk_i32 s46, 6144", f"v_mul_lo_u32 v{T3}, v{T3}, s46",
          f"v_and_b32 v{VW[0]}, 3, v0", f"v_lshlrev_b32 v{VW[0]}, 4, v{VW[0]}", f"v_add_u32 v{VW[0]}, v{VW[0]}, v{T3}",
          "s_lshl_b32 s46, s43, 6", f"v_add_u32 v{VW[0]}, s46, v{VW[0]}",
          f"v_add_u32 v{VW[1]}, 2048, v{VW[0]}", f"v_add_u32 v{VW[2]}, 4096, v{VW[0]}"]
    P += ["s_waitcnt lgkmcnt(0)"]
    P += srd(8, 4, 5, 4 * MB) + srd(12, 32, 33, 2 * MB) + srd(16, 34, 35, 2 * MB) + srd(20, 36, 37, 6 * MB)
    def dma():
        out = []
        for q in range(8):
            out.append([f"s_add_u32 m0, s53, {1024*q}", f"buffer_load_dwordx4 v{VX[q]}, s[8:11], s45 offen lds"])
        out.append([f"s_add_u32 m0, s54, {L_HR}", f"buffer_load_dwordx4 v{VH}, s[12:15], s45 offen lds"])
        out.append([f"s_add_u32 m0, s54, {L_HI}", f"buffer_load_dwordx4 v{VH}, s[16:19], s45 offen lds"])
        for c in range(3):
            out.append([f"s_add_u32 m0, s54, {L_W + 4096*c}", f"buffer_load_dwordx4 v{VW[c]}, s[20:23], s46 offen lds"])
        return out
    def dma_adv():
        return ["s_add_u32 s47, s47, %d" % STG, "s_cmp_ge_u32 s47, %d" % (3 * STG), "s_cselect_b32 s47, 0, s47",
                "s_add_u32 s53, s47, s50", "s_add_u32 s54, s47, s51",
                "s_add_u32 s45, s45, 128", "s_and_b32 s45, s45, 0x7ff", "s_mul_i32 s46, s45, 3072"]
    P += ["s_mov_b32 s47, 0", "s_mov_b32 s45, 0", "s_mov_b32 s46, 0", "s_mov_b32 s53, s50", "s_mov_b32 s54, s51"]
    for a_, b_ in dma():
        P += [a_, "s_nop 0", b_]
    P += dma_adv()
    P += stamp(1)
    F = []
    F += srd(24, 40, 41, WS_SIZE)
    F += [f"v_lshrrev_b32 v{T0}, 5, v0", f"v_lshrrev_b32 v{T1}, 1, v0", f"v_and_b32 v{T1}, 7, v{T1}",
          f"v_xor_b32 v{T0}, v{T0}, v{T1}",
          f"v_and_b32 v{T1}, 31, v0", f"v_lshlrev_b32 v{T1}, 7, v{T1}"]
    for ks in range(4):
        F += [f"v_xor_b32 v{T2}, {2*ks}, v{T0}", f"v_lshlrev_b32 v{T2}, 4, v{T2}", f"v_add_u32 v{T2}, v{T2}, v{T1}",
              f"v_add_u32 v{XA0[ks]}, s50, v{T2}", f"v_add_u32 v{HA0[ks]}, {L_HR}, v{T2}"]
    F += [f"v_lshrrev_b32 v{T0}, 5, v0", f"v_lshlrev_b32 v{T0}, 3, v{T0}", f"v_bfe_u32 v{T1}, v0, 2, 2",
          f"v_add_u32 v{T0}, v{T0}, v{T1}", f"v_lshlrev_b32 v{T0}, 6, v{T0}",
          f"v_bfe_u32 v{T1}, v0, 4, 1", f"v_lshlrev_b32 v{T1}, 5, v{T1}", f"v_add_u32 v{T0}, v{T0}, v{T1}",
          f"v_and_b32 v{T1}, 3, v0", f"v_lshlrev_b32 v{T1}, 3, v{T1}", f"v_add_u32 v{T0}, v{T0}, v{T1}",
          f"v_add_u32 v{WA0}, {L_W}, v{T0}"]
    for i in range(4):
        F += [f"v_mov_b32 v{XA[i]}, v{XA0[i]}", f"v_mov_b32 v{HA[i]}, v{HA0[i]}"]
    F += [f"v_mov_b32 v{WA}, v{WA0}", "s_mov_b32 s48, 0", "s_mov_b32 s49, 0"]
    for r in range(ACC, ACC + 160):
        F += [f"v_mov_b32 v{r}, 0"]
    d1 = dma()
    per = (len(F) + len(d1) - 1) // len(d1)
    for i, (a_, b_) in enumerate(d1):
        chunk = F[i * per:(i + 1) * per]
        P += [a_] + chunk[:1] + [b_] + chunk[1:]
    P += dma_adv()
    def reads(s, ks):
        return [f"ds_read_b128 {vr(fr(s,0),4)}, v{XA[ks]}",
                f"ds_read_b128 {vr(fr(s,2),4)}, v{HA[ks]}",
                f"ds_read_b128 {vr(fr(s,3),4)}, v{HA[ks]} offset:4096",
                f"ds_read_b64_tr_b16 {vr(fr(s,4),2)}, v{WA} offset:{ks*1024}",
                f"ds_read_b64_tr_b16 {vr(fr(s,4)+2,2)}, v{WA} offset:{ks*1024+256}",
                f"ds_read_b64_tr_b16 {vr(fr(s,5),2)}, v{WA} offset:{4096+ks*1024}",
                f"ds_read_b64_tr_b16 {vr(fr(s,5)+2,2)}, v{WA} offset:{4096+ks*1024+256}",
                f"ds_read_b64_tr_b16 {vr(fr(s,6),2)}, v{WA} offset:{8192+ks*1024}",
                f"ds_read_b64_tr_b16 {vr(fr(s,6)+2,2)}, v{WA} offset:{8192+ks*1024+256}",
                f"ds_read_b128 {vr(fr(s,1),4)}, v{XA[ks]} offset:4096"]
    def mfmas(s):
        out = []
        for b in range(2):
            X = fr(s, b)
            if "p16" in EXP:
                for c in range(5):
                    out += [mfma16(acc(b, c) + 8 * s, X, fr(s, 2 + c)), mfma16(acc(b, c) + 8 * s + 4, X, fr(s, 2 + c))]
                continue
            out += [mfma32(acc(b, 0), X, fr(s, 2)), mfma32(acc(b, 1), X, fr(s, 3)),
                    mfma32(acc(b, 2), fr(s, 4), X), mfma32(acc(b, 3), fr(s, 5), X),
                    mfma32(acc(b, 4), X, fr(s, 6))]
        return out
    def rd_adv():
        o = ["s_add_u32 s48, s48, %d" % STG, "s_cmp_ge_u32 s48, %d" % (3 * STG), "s_cselect_b32 s48, 0, s48"]
        for i in range(4):
            o += [f"v_add_u32 v{XA[i]}, s48, v{XA0[i]}", f"v_add_u32 v{HA[i]}, s48, v{HA0[i]}"]
        o += [f"v_add_u32 v{WA}, s48, v{WA0}"]
        return o
    P += stamp(2) + stamp(3)
    P += ["s_waitcnt vmcnt(13)", "s_barrier"] + stamp(4) + reads(0, 0)
    def body(do_dma, last):
        o = []
        d = dma() if do_dma else []
        def mix(rd, dd):
            out = []
            for i, r in enumerate(rd):
                if i < len(dd): out += [dd[i][0], r, dd[i][1]]
                else: out += [r]
            return out
        o += ["s_waitcnt lgkmcnt(0)"]
        o += spread(mfmas(0), mix(reads(1, 1), d[:7]))
        o += ["s_waitcnt lgkmcnt(0)"]
        o += spread(mfmas(1), mix(reads(0, 2), d[7:]) + (dma_adv() if do_dma else []))
        o += ["s_waitcnt lgkmcnt(0)"]
        o += spread(mfmas(0), reads(1, 3) + ([] if last else rd_adv()))
        o += ["s_waitcnt lgkmcnt(0)"]
        m = mfmas(1)
        if last:
            o += m
        else:
            o += m[:2] + [f"s_waitcnt vmcnt({13 if do_dma else 0})", "s_barrier"] + spread(m[2:], reads(0, 0))
        return o
    B = body(True, False)
    loop_tail = ["s_add_u32 s49, s49, 1", "s_cmp_lt_u32 s49, 14", f"s_cbranch_scc1 {N}_loop"]
    B14 = body(False, False)
    B15 = body(False, True)
    def blk_epi(b, c, pk, sreg):
        a = acc(b, c); o = []
        if c == 2:
            for r in range(16): o += [f"v_mul_f32 v{a+r}, s57, v{a+r}"]
        for r in range(8):
            src = r if (c != 4 or "a32" in EXP) else [0, 1, 4, 5, 2, 3, 6, 7][r]
            o += [f"v_cvt_pk_bf16_f32 v{pk+r}, v{a+2*src}, v{a+2*src+1}"]
        if c < 2:
            o += ["s_nop 1"]
            for t in range(2):
                o += [f"v_permlane32_swap_b32 v{pk+4*t}, v{pk+4*t+2}", f"v_permlane32_swap_b32 v{pk+4*t+1}, v{pk+4*t+3}"]
        for t in range(2):
            o += [f"buffer_store_dwordx4 {vr(pk+4*t,4)}, v{VL16}, s[24:27], s{sreg} offen offset:{(2*b+t)*1024}"]
        return o
    ADDR = ["s_lshl_b32 s45, s43, 17", "s_lshl_b32 s46, s42, 14", "s_add_u32 s45, s45, s46",
            "s_lshl_b32 s46, s3, 12", "s_add_u32 s45, s45, s46", f"s_mov_b32 s57, {hex(f32bits(QSCALE))}", "s_mov_b32 s46, s45"]
    if "newlast" in EXP:
        def reads1(s_, ks, rb):
            r = reads(s_, ks)
            return [f"ds_read_b128 {vr(fr(s_,rb),4)}, v{XA[ks]} offset:{4096*rb}"] + r[1:9]
        def mf1(s_, rb): return mfmas(s_)[5 * rb:5 * rb + 5]
        epi0 = []
        for c in range(5):
            epi0 += blk_epi(0, c, 2 + 8 * (c & 1), 45) + [f"s_add_u32 s45, s45, {4*MB}"]
        B15 = []
        for p in range(2):
            for ks in range(4):
                st = (p * 4 + ks) & 1
                B15 += ["s_waitcnt lgkmcnt(0)"]
                nxt = reads1(1 - st, ks + 1, p) if ks < 3 else (reads1(1 - st, 0, 1) if p == 0 else [])
                fill = list(nxt)
                if p == 0 and ks == 0: fill += ADDR
                if p == 1:
                    n = len(epi0)
                    lo = [0, 0, n // 3, 2 * n // 3][ks] if ks > 0 else 0
                    hi = [0, n // 3, 2 * n // 3, n][ks]
                    fill += epi0[lo:hi]
                B15 += spread(mf1(st, p), fill)
        E = stamp(5) + ["s_nop 11"]
        pk = 32
        for c in range(5):
            E += blk_epi(1, c, pk, 46) + [f"s_add_u32 s46, s46, {4*MB}"]
            pk = 32 + (pk - 32 + 8) % 56
    else:
        E = stamp(5) + ["s_nop 7"] + ADDR
        pk = 32
        for c in range(5):
            for b in range(2):
                E += blk_epi(b, c, pk, 45)
                pk = 32 + (pk - 32 + 8) % 56
            E += [f"s_add_u32 s45, s45, {4*MB}"]
    E += stamp(6) + ["s_waitcnt vmcnt(0)"] * STAMPS + stamp(7) + stamp_dump(8, 9)
    E += [f"{N}_done:", "s_endpgm"]
    text = header(N) + P + [f"{N}_loop:"] + B + loop_tail + B14 + B15 + E
    trace = P + B + loop_tail + B + loop_tail + B14 + B15 + E
    errs = check_trace(trace, N)
    return N, text, desc(N, 256), errs, (256, 256, 3 * STG)


ATT_OFF = 40.0
ATT_LMAX = 2.0 ** 60
def gen_attn(merged=False):
    N = "attn_kernel" if not merged else "mix_kernel_a"
    NST = 4; STG = 8192
    Q = {"A": 16, "B": 24}
    S = {"A": 32, "B": 48}
    Pk = {"A": 64, "B": 72}
    O = {"A": 80, "B": 96}
    L = {"A": 112, "B": 116}
    CN = {"A": 120, "B": 136}
    KF = [152, 160]
    VF = [168, 176]
    ONES = 184
    VL16 = 1; VRD = 2; VG = {"A": 3, "B": 4}; T0, T1, T2, T3 = 5, 6, 7, 8
    P = []
    if not merged:
        P += ["s_cmp_ge_u32 s2, 256", f"s_cbranch_scc1 {N}_done"]
        P += ["v_lshrrev_b32 v1, 6, v0", "v_and_b32 v0, 63, v0", "v_readfirstlane_b32 s3, v1"]
    P += stamp(0)
    P += ["s_load_dwordx2 s[40:41], s[0:1], 88", "s_load_dwordx2 s[4:5], s[0:1], 0", "s_load_dwordx2 s[38:39], s[0:1], 64"]
    P += ["s_and_b32 s42, s2, 7", "s_lshr_b32 s43, s2, 3", "s_lshl_b32 s42, s42, 2", "s_lshr_b32 s44, s43, 3",
          "s_add_u32 s42, s42, s44",
          "s_and_b32 s43, s43, 7",
          "s_lshl_b32 s43, s43, 3", "s_lshl_b32 s44, s3, 1", "s_add_u32 s43, s43, s44",
          "s_lshl_b32 s44, s42, 17"]
    P += [f"v_lshlrev_b32 v{VL16}, 4, v0"]
    P += ["s_waitcnt lgkmcnt(0)"] + srd(24, 40, 41, WS_SIZE) + srd(8, 4, 5, 4 * MB) + srd(28, 38, 39, 2048)
    P += ["s_lshl_b32 s45, s43, 11", "s_add_u32 s45, s45, s44", f"s_add_u32 s45, s45, {WS_Q}",
          f"s_add_u32 s46, s44, {WS_K}", f"s_add_u32 s47, s44, {WS_V}"]
    if "rot" in EXP: P += ["s_bfe_u32 s58, s2, 0x30003", "s_lshl_b32 s58, s58, 14"]
    else: P += ["s_mov_b32 s58, 0"]
    P += ["s_add_u32 s59, s46, s58"]
    for i in range(4):
        P += [f"buffer_load_dwordx4 {vr(16+4*i,4)}, v{VL16}, s[24:27], s45 offen offset:{1024*i}"]
    for i in range(4):
        P += [f"buffer_load_dwordx4 {vr(KF[0]+4*i,4)}, v{VL16}, s[24:27], s59 offen offset:{1024*i}"]
    P += ["s_lshl_b32 s51, s3, 10", "s_add_u32 s61, s58, s51", "s_add_u32 s60, s61, 2048", "s_and_b32 s60, s60, 0x1ffff",
          "s_add_u32 s48, s46, s60", "s_add_u32 s49, s47, s61", "s_mov_b32 s50, s51"]
    def dma():
        return [["s_mov_b32 m0, s50", f"buffer_load_dwordx4 v{VL16}, s[24:27], s48 offen lds"],
                ["s_add_u32 m0, s50, 4096", f"buffer_load_dwordx4 v{VL16}, s[24:27], s49 offen lds"]]
    def dma_adv():
        return ["s_add_u32 s60, s60, 4096", "s_and_b32 s60, s60, 0x1ffff", "s_add_u32 s61, s61, 4096", "s_and_b32 s61, s61, 0x1ffff",
                "s_add_u32 s48, s46, s60", "s_add_u32 s49, s47, s61", f"s_add_u32 s50, s50, {STG}",
                f"s_and_b32 s50, s50, {NST*STG-1}"]
    for t in range(NST - 1):
        for a, b in dma(): P += [a, "s_nop 0", b]
        P += dma_adv()
    GX = 192
    P += ["s_lshl_b32 s62, s2, 3", "s_lshl_b32 s45, s3, 1", "s_add_u32 s62, s62, s45", "s_lshl_b32 s45, s62, 11",
          f"v_lshlrev_b32 v{T0}, 5, v0"]
    P += [f"buffer_load_dwordx4 v[{GX}:{GX+3}], v{T0}, s[8:11], s45 offen",
          f"buffer_load_dwordx4 v[{GX+4}:{GX+7}], v{T0}, s[8:11], s45 offen offset:16",
          f"buffer_load_dwordx4 v[{GX+8}:{GX+11}], v{T0}, s[8:11], s45 offen offset:2048",
          f"buffer_load_dwordx4 v[{GX+12}:{GX+15}], v{T0}, s[8:11], s45 offen offset:2064",
          f"buffer_load_dwordx4 v[{GX+16}:{GX+19}], v{T0}, s[28:31], 0 offen",
          f"buffer_load_dwordx4 v[{GX+20}:{GX+23}], v{T0}, s[28:31], 0 offen offset:16"]
    for r in list(range(80, 120)) + list(range(Pk["B"], Pk["B"] + 8)) + list(range(VF[0], VF[0] + 16)):
        P += [f"v_mov_b32 v{r}, 0"]
    P += [f"v_bfe_u32 v{T0}, v0, 2, 1", f"v_bfe_u32 v{T1}, v0, 4, 1", f"v_cmp_eq_u32 vcc, v{T0}, v{T1}",
          f"v_mov_b32 v{T2}, 0x3f803f80", "s_nop 0", f"v_cndmask_b32 v{ONES}, 0, v{T2}, vcc"]
    for i in range(1, 4): P += [f"v_mov_b32 v{ONES+i}, v{ONES}"]
    P += [f"v_mov_b32 v{VRD}, v{VL16}", "s_mov_b32 s52, 0", "s_mov_b32 s53, 0", "s_mov_b32 s63, 0x3f803f80"]
    P += [f"s_waitcnt vmcnt({2*(NST-1)+6})"]
    for X in "AB":
        P += [mfma32(S[X], KF[0], Q[X], "0"), mfma32(S[X], KF[0] + 4, Q[X] + 4),
              mfma32(CN[X], KF[1], Q[X], "0"), mfma32(CN[X], KF[1] + 4, Q[X] + 4)]
    P += ["s_nop 15"]
    for X in "AB":
        m = T0 if X == "A" else T1
        P += [f"v_max3_f32 v{m}, v{S[X]}, v{S[X]+1}, v{S[X]+2}"]
        vals = [S[X] + i for i in range(3, 16)] + [CN[X] + i for i in range(16)]
        for i in range(0, 28, 2):
            P += [f"v_max3_f32 v{m}, v{m}, v{vals[i]}, v{vals[i+1]}"]
        P += [f"v_max_f32 v{m}, v{m}, v{vals[28]}"]
    P += [f"v_mov_b32 v{T2}, v{T0}", f"v_mov_b32 v{T3}, v{T1}", "s_nop 1",
          f"v_permlane32_swap_b32 v{T0}, v{T2}", f"v_permlane32_swap_b32 v{T1}, v{T3}",
          f"v_max_f32 v{T0}, v{T0}, v{T2}", f"v_max_f32 v{T1}, v{T1}, v{T3}",
          f"s_mov_b32 s54, {hex(f32bits(-ATT_OFF))}",
          f"v_sub_f32 v{T0}, s54, v{T0}", f"v_sub_f32 v{T1}, s54, v{T1}"]
    for i in range(16):
        P += [f"v_mov_b32 v{CN['A']+i}, v{T0}", f"v_mov_b32 v{CN['B']+i}, v{T1}"]
    P += ["s_nop 1", mfma32(S["A"], KF[0], Q["A"], CN["A"]), mfma32(S["A"], KF[0] + 4, Q["A"] + 4)]
    P += stamp(1)
    def slot(X, kset_qk, vset_pv, rd):
        Y = "B" if X == "A" else "A"
        mf = [mfma32(S[Y], KF[kset_qk], Q[Y], CN[Y]), mfma32(S[Y], KF[kset_qk] + 4, Q[Y] + 4),
              mfma32(O[Y], VF[vset_pv], Pk[Y]), mfma16(L[Y], ONES, Pk[Y]),
              mfma32(O[Y], VF[vset_pv] + 4, Pk[Y] + 4), mfma16(L[Y], ONES, Pk[Y] + 4)]
        if "a16" in EXP:
            def two(d, a, b): return [mfma16(d, a, b), mfma16(d + 4, a, b)]
            def twoc(d, a, b, c): return [f"v_mfma_f32_16x16x32_bf16 {vr(d,4)}, {vr(a,4)}, {vr(b,4)}, {vr(c,4)}", f"v_mfma_f32_16x16x32_bf16 {vr(d+4,4)}, {vr(a,4)}, {vr(b+4,4)}, {vr(c,4)}"]
            mf = [twoc(S[Y], KF[kset_qk], Q[Y], CN[Y]), twoc(S[Y] + 8, KF[kset_qk] + 4, Q[Y], CN[Y]),
                  two(O[Y], VF[vset_pv], Pk[Y]), [mfma16(L[Y], ONES, Pk[Y])],
                  two(O[Y] + 8, VF[vset_pv] + 4, Pk[Y] + 4), [mfma16(L[Y], ONES, Pk[Y] + 4)]]
        e = [f"v_exp_f32 v{S[X]+i}, v{S[X]+i}" for i in range(16)]
        if "noexp" in EXP: e = [f"v_mov_b32 v{S[X]+i}, v{S[X]+i}" for i in range(16)]
        c = [f"v_cvt_pk_bf16_f32 v{Pk[X]+j}, v{S[X]+2*j}, v{S[X]+2*j+1}" for j in range(8)]
        va = e[0:3] + [c[0]] + e[3:5] + [c[1]] + e[5:7] + [c[2]] + e[7:9] + [c[3]] + e[9:11] + [c[4]] + e[11:13] + [c[5]] + e[13:16] + [c[6], c[7]]
        o = []
        if "ldot" in EXP:
            mf = [mf[0], mf[1], mf[2], mf[4]]
            dots = [f"v_dot2c_f32_bf16 v{L[Y]+(j%4)}, s63, v{Pk[Y]+j}" for j in range(8)]
            for i in range(4):
                o += [mf[i]]
                if i < 2: o += rd[2*i:2*i+2]
                o += va[6*i:6*i+3] + dots[2*i:2*i+1] + va[6*i+3:6*i+6] + dots[2*i+1:2*i+2]
            return o
        if "ladd" in EXP:
            mf = [mf[0], mf[1], mf[2], mf[4]]
            adds = [f"v_add_f32 v{L[X]+(i%4)}, v{L[X]+(i%4)}, v{S[X]+i}" for i in range(16)]
            va2 = []
            ai = 0
            for k_, ins in enumerate(va):
                va2.append(ins)
                if ins.startswith("v_cvt"):
                    va2 += adds[ai:ai+2]; ai += 2
            for i in range(4):
                o += [mf[i]]
                if i < 2: o += rd[2*i:2*i+2]
                o += va2[10*i:10*i+10]
            return o
        for i in range(6):
            if isinstance(mf[i], list):
                o += [mf[i][0]] + va[4*i:4*i+2]
                if len(mf[i]) > 1: o += [mf[i][1]]
                if i < 2: o += rd[2*i:2*i+2]
                o += va[4*i+2:4*i+4]
                continue
            o += [mf[i]]
            if i < 2: o += rd[2*i:2*i+2]
            o += va[4*i:4*i+4]
        return o
    def rds(kb_par, half):
        return [f"ds_read_b128 {vr(KF[1-kb_par],4)}, v{VRD} offset:{half*2048}",
                f"ds_read_b128 {vr(KF[1-kb_par]+4,4)}, v{VRD} offset:{half*2048+1024}",
                f"ds_read_b128 {vr(VF[kb_par],4)}, v{VRD} offset:{4096+half*2048}",
                f"ds_read_b128 {vr(VF[kb_par]+4,4)}, v{VRD} offset:{4096+half*2048+1024}"]
    B = [f"s_waitcnt vmcnt({2*(NST-2)})", "s_barrier"]
    d = dma()
    B += [d[0][0], "s_nop 0", d[0][1], d[1][0], "s_nop 0", d[1][1]] + dma_adv()
    B += slot("A", 0, 1, rds(0, 0))
    B += ["s_waitcnt lgkmcnt(0)"]
    B += slot("B", 1, 0, [])
    B += slot("A", 1, 0, rds(1, 1))
    B += ["s_waitcnt lgkmcnt(0)"]
    B += [f"s_add_u32 s53, s53, {STG}", f"s_and_b32 s53, s53, {NST*STG-1}", f"v_add_u32 v{VRD}, s53, v{VL16}"]
    B += slot("B", 0, 1, [])
    tail = ["s_add_u32 s52, s52, 1", "s_cmp_lt_u32 s52, 32", f"s_cbranch_scc1 {N}_loop"]
    E = stamp(2)
    if "ldot" in EXP:
        E += ["s_nop 1", mfma32(O["B"], VF[1], Pk["B"]), mfma32(O["B"], VF[1] + 4, Pk["B"] + 4)]
        E += [f"v_dot2c_f32_bf16 v{L['B']+(j%4)}, s63, v{Pk['B']+j}" for j in range(8)] + ["s_nop 3"]
        for X in "AB":
            E += [f"v_add_f32 v{L[X]}, v{L[X]}, v{L[X]+1}", f"v_add_f32 v{L[X]+2}, v{L[X]+2}, v{L[X]+3}", f"v_add_f32 v{L[X]}, v{L[X]}, v{L[X]+2}",
                  f"v_mov_b32 v{T1}, v{L[X]}", "s_nop 1", f"v_permlane32_swap_b32 v{L[X]}, v{T1}", f"v_add_f32 v{L[X]}, v{L[X]}, v{T1}"]
        E += ["s_nop 7"]
    else:
        E += ["s_nop 1", mfma32(O["B"], VF[1], Pk["B"]), mfma16(L["B"], ONES, Pk["B"]),
              mfma32(O["B"], VF[1] + 4, Pk["B"] + 4), mfma16(L["B"], ONES, Pk["B"] + 4), "s_nop 15"]
    E += [f"s_mov_b32 s54, {hex(f32bits(ATT_LMAX))}",
          f"v_cmp_gt_f32 vcc, s54, v{L['A']}", f"v_cmp_gt_f32 s[56:57], s54, v{L['B']}", "s_nop 1",
          "s_and_b64 vcc, vcc, s[56:57]", "s_cmp_eq_u64 vcc, exec", f"s_cbranch_scc0 {N}_fallback"]
    E2 = [f"{N}_final:"]
    E2 += ["s_lshl_b32 s45, s43, 16", "s_lshl_b32 s46, s42, 11", "s_add_u32 s45, s45, s46", f"s_add_u32 s45, s45, {WS_O}"]
    for X in "AB":
        E2 += [f"v_rcp_f32 v{T0}, v{L[X]}", "s_nop 0"]
        for i in range(16):
            E2 += [f"v_mul_f32 v{O[X]+i}, v{O[X]+i}, v{T0}"]
        for j in range(8):
            E2 += [f"v_cvt_pk_bf16_f32 v{S[X]+j}, v{O[X]+2*j}, v{O[X]+2*j+1}"]
        for t in range(2):
            E2 += [f"buffer_store_dwordx4 {vr(S[X]+4*t,4)}, v{VL16}, s[24:27], s45 offen offset:{1024*t}"]
        E2 += ["s_add_u32 s45, s45, 65536"]
    A0, A1 = 64, 65
    E2 += ["s_waitcnt vmcnt(4)", f"v_mov_b32 v{A0}, 0", f"v_mov_b32 v{A1}, 0"]
    for i in range(8):
        w = GX + 16 + i
        E2 += [f"v_lshlrev_b32 v66, 16, v{w}", f"v_and_b32 v67, 0xffff0000, v{w}"]
        for r, a in ((0, A0), (1, A1)):
            x = GX + 8 * r + i
            E2 += [f"v_lshlrev_b32 v68, 16, v{x}", f"v_and_b32 v69, 0xffff0000, v{x}",
                  "v_mul_f32 v68, v68, v66", "v_mul_f32 v69, v69, v67",
                  "v_cvt_pk_bf16_f32 v70, v68, v69",
                  "v_lshlrev_b32 v68, 16, v70", "v_and_b32 v69, 0xffff0000, v70",
                  f"v_add_f32 v{a}, v{a}, v68", f"v_add_f32 v{a}, v{a}, v69"]
    for off in (0x041F, 0x081F, 0x101F, 0x201F, 0x401F):
        E2 += [f"ds_swizzle_b32 v66, v{A0} offset:{off}", f"ds_swizzle_b32 v67, v{A1} offset:{off}",
              "s_waitcnt lgkmcnt(0)", f"v_add_f32 v{A0}, v{A0}, v66", f"v_add_f32 v{A1}, v{A1}, v67"]
    E2 += ["s_nop 0", f"v_readlane_b32 s55, v{A0}, 32", f"v_readlane_b32 s56, v{A1}, 32", "s_nop 1",
          f"v_add_f32 v{A0}, s55, v{A0}", f"v_add_f32 v{A1}, s56, v{A1}",
          "v_cmp_eq_u32 vcc, 1, v0", "s_nop 1", f"v_cndmask_b32 v{A0}, v{A0}, v{A1}, vcc",
          f"v_cvt_pk_bf16_f32 v{A0}, v{A0}, v{A0}", f"v_lshlrev_b32 v{A0}, 16, v{A0}",
          f"v_mul_f32 v{A0}, {hex(f32bits(-LOG2E))}, v{A0}", f"v_exp_f32 v{A0}, v{A0}", "s_nop 0",
          f"v_add_f32 v{A0}, 1.0, v{A0}", f"v_rcp_f32 v{A0}, v{A0}", "s_nop 0",
          f"v_cvt_pk_bf16_f32 v{A0}, v{A0}, v{A0}", f"v_lshlrev_b32 v{VG['A']}, 16, v{A0}"]
    E2 += [f"v_lshlrev_b32 v{T0}, 2, v0", "s_lshl_b32 s45, s62, 2", f"s_add_u32 s45, s45, {WS_G}",
           "v_cmp_gt_u32 vcc, 2, v0", "s_and_saveexec_b64 s[58:59], vcc",
           f"buffer_store_dword v{VG['A']}, v{T0}, s[24:27], s45 offen", "s_mov_b64 exec, s[58:59]"]
    E2 += stamp(3) + ["s_waitcnt vmcnt(0)"] + stamp(4) + stamp_dump(5, 9, 1)
    E2 += [f"{N}_done:", "s_endpgm"]
    F = [f"{N}_fallback:", "s_waitcnt vmcnt(0)"]
    M = {"A": 9, "B": 10}; AL = 11
    for X in "AB":
        F += [f"v_mov_b32 v{M[X]}, 0xff7fffff", f"v_mov_b32 v{L[X]}, 0"]
        for i in range(16): F += [f"v_mov_b32 v{O[X]+i}, 0"]
    F += [f"s_add_u32 s46, s44, {WS_K}", f"s_add_u32 s47, s44, {WS_V}", "s_mov_b32 s52, 0"]
    FB = []
    FB += [f"buffer_load_dwordx4 {vr(KF[0],4)}, v{VL16}, s[24:27], s46 offen",
           f"buffer_load_dwordx4 {vr(KF[0]+4,4)}, v{VL16}, s[24:27], s46 offen offset:1024",
           f"buffer_load_dwordx4 {vr(VF[0],4)}, v{VL16}, s[24:27], s47 offen",
           f"buffer_load_dwordx4 {vr(VF[0]+4,4)}, v{VL16}, s[24:27], s47 offen offset:1024",
           "s_waitcnt vmcnt(0)"]
    for X in "AB":
        FB += [mfma32(S[X], KF[0], Q[X], "0"), mfma32(S[X], KF[0] + 4, Q[X] + 4), "s_nop 15"]
        FB += [f"v_max3_f32 v{T0}, v{S[X]}, v{S[X]+1}, v{M[X]}"]
        for i in range(2, 16, 2): FB += [f"v_max3_f32 v{T0}, v{T0}, v{S[X]+i}, v{S[X]+i+1}"]
        FB += [f"v_mov_b32 v{T1}, v{T0}", "s_nop 1", f"v_permlane32_swap_b32 v{T0}, v{T1}", f"v_max_f32 v{T0}, v{T0}, v{T1}",
               f"v_sub_f32 v{AL}, v{M[X]}, v{T0}", f"v_exp_f32 v{AL}, v{AL}", f"v_mov_b32 v{M[X]}, v{T0}",
               f"v_mul_f32 v{L[X]}, v{L[X]}, v{AL}"]
        for i in range(16):
            FB += [f"v_sub_f32 v{S[X]+i}, v{S[X]+i}, v{T0}", f"v_exp_f32 v{S[X]+i}, v{S[X]+i}", f"v_mul_f32 v{O[X]+i}, v{O[X]+i}, v{AL}"]
        for j in range(8):
            FB += [f"v_cvt_pk_bf16_f32 v{Pk[X]+j}, v{S[X]+2*j}, v{S[X]+2*j+1}",
                   f"v_lshlrev_b32 v{T1}, 16, v{Pk[X]+j}", f"v_and_b32 v{T2}, 0xffff0000, v{Pk[X]+j}",
                   f"v_add_f32 v{L[X]}, v{L[X]}, v{T1}", f"v_add_f32 v{L[X]}, v{L[X]}, v{T2}"]
        FB += ["s_nop 1", mfma32(O[X], VF[0], Pk[X]), mfma32(O[X], VF[0] + 4, Pk[X] + 4)]
    FB += ["s_nop 15", "s_add_u32 s46, s46, 2048", "s_add_u32 s47, s47, 2048", "s_add_u32 s52, s52, 1", "s_cmp_lt_u32 s52, 64",
           f"s_cbranch_scc1 {N}_fbloop"]
    FE = []
    for X in "AB":
        FE += [f"v_mov_b32 v{T1}, v{L[X]}", "s_nop 1", f"v_permlane32_swap_b32 v{L[X]}, v{T1}", f"v_add_f32 v{L[X]}, v{L[X]}, v{T1}"]
    FE += [f"s_branch {N}_final"]
    text = (header(N) if not merged else []) + P + [f"{N}_loop:"] + B + tail + E + E2 + F + [f"{N}_fbloop:"] + FB + FE
    errs = check_trace(P + B + tail + B + tail + E + E2, N)
    errs += check_trace(P + B + tail + E + F + FB + FB + FE + E2, N + "_fb")
    return N, text, desc(N, 216), errs, (256, 256, NST * STG)


def mix(rd, dd):
    out = []
    for i, r in enumerate(rd):
        if i < len(dd): out += [dd[i][0], r, dd[i][1]] if dd[i][0] else [r, dd[i][1]]
        else: out += [r]
    for j in range(len(rd), len(dd)):
        out += ([dd[j][0], "s_nop 0"] if dd[j][0] else []) + [dd[j][1]]
    return out

def kloop(N, nkt, nst, ndma, dma, dma_adv, reads, mfmas, rd_adv, cnt_sreg, npre=1, late=0, mid=[]):
    pre = [f"s_waitcnt vmcnt({ndma*(nst-2-late)})", "s_barrier"] + reads(0, 0) + [f"s_mov_b32 s{cnt_sreg}, 0"]
    for i in range(late):
        pre += mix([], dma()) + dma_adv()
    def body(do_dma, last, inflight):
        o = []
        d = dma() if do_dma else []
        h = (len(d) + 1) // 2
        o += ["s_waitcnt lgkmcnt(0)"]
        o += spread(mfmas(0, 0), mix(reads(1, 1), d[:h]))
        o += ["s_waitcnt lgkmcnt(0)"]
        o += spread(mfmas(1, 1), mix(reads(0, 2), d[h:]) + (dma_adv() if do_dma else []))
        o += ["s_waitcnt lgkmcnt(0)"]
        o += spread(mfmas(0, 2), reads(1, 3) + ([] if last else rd_adv()))
        o += ["s_waitcnt lgkmcnt(0)"]
        m = mfmas(1, 3)
        if last:
            o += m
        else:
            o += m[:npre] + [f"s_waitcnt vmcnt({inflight*ndma})", "s_barrier"] + spread(m[npre:], reads(0, 0))
        return o
    nmain = nkt - (nst - 1)
    B = body(True, False, nst - 2)
    tail = [f"s_add_u32 s{cnt_sreg}, s{cnt_sreg}, 1", f"s_cmp_lt_u32 s{cnt_sreg}, {nmain}", f"s_cbranch_scc1 {N}_loop"]
    rest = []
    for i in range(nst - 1):
        last = (i == nst - 2)
        rest += body(False, last, nst - 3 - i if not last else 0)
    text = [f"{N}_loop:"] + B + tail + mid + rest
    trace = B + tail + B + tail + mid + rest
    return pre, text, trace

def gen_ygemm(merged=False):
    N = "ygemm_kernel" if not merged else "mix_kernel_y"
    NST = 4; STG = 32768; L_B = 16384
    LB0 = 32768 if merged else 0
    ACC = 64
    def acc(i, j): return ACC + (i * 2 + j) * 16
    def fr(s, i): return 32 + s * 16 + i * 4
    VL16 = 1; VB = [2, 3, 4, 5]; AA0 = 6; BA0 = [7, 8, 9, 10]; AA = 11; BA = [12, 13, 14, 15]
    T0, T1, T2, T3 = 16, 17, 18, 19
    P = []
    if not merged:
        P += ["s_cmp_ge_u32 s2, 256", f"s_cbranch_scc1 {N}_done"]
        P += ["v_lshrrev_b32 v1, 6, v0", "v_and_b32 v0, 63, v0", "v_readfirstlane_b32 s3, v1"]
    P += stamp(0)
    P += ["s_and_b32 s42, s2, 1",
          "s_load_dwordx4 s[4:7], s[0:1], 8", "s_load_dwordx2 s[40:41], s[0:1], 88"]
    P += ["s_bfe_u32 s44, s2, 0x10001", "s_lshl_b32 s44, s44, 2", "s_bfe_u32 s45, s2, 0x20003", "s_add_u32 s44, s44, s45",
          "s_bfe_u32 s45, s2, 0x10002", "s_lshl_b32 s45, s45, 3", "s_lshr_b32 s46, s2, 5", "s_add_u32 s45, s45, s46"]
    P += [f"v_lshlrev_b32 v{VL16}, 4, v0"]
    P += [f"v_lshrrev_b32 v{T0}, 3, v0", f"v_and_b32 v{T1}, 7, v0", f"v_lshrrev_b32 v{T2}, 4, v0",
          "s_lshl_b32 s46, s45, 7", "s_lshl_b32 s47, s3, 5", "s_add_u32 s46, s46, s47",
          f"v_add_u32 v{T3}, s46, v{T0}", f"v_lshlrev_b32 v{T3}, 12, v{T3}",
          f"v_xor_b32 v{VB[0]}, v{T1}, v{T2}", f"v_lshlrev_b32 v{VB[0]}, 4, v{VB[0]}", f"v_add_u32 v{VB[0]}, v{VB[0]}, v{T3}"]
    for q in range(1, 4):
        if q % 2: P += [f"v_xor_b32 v{VB[q]}, 64, v{VB[0]}", f"v_add_u32 v{VB[q]}, {q*8*4096}, v{VB[q]}"]
        else: P += [f"v_add_u32 v{VB[q]}, {q*8*4096}, v{VB[0]}"]
    P += ["s_and_b32 s46, s3, 1", "s_lshl_b32 s46, s46, 13", f"s_add_u32 s46, s46, {LB0}", f"v_add_u32 v{AA0}, s46, v{VL16}",
          "s_lshr_b32 s46, s3, 1", "s_lshl_b32 s46, s46, 13", f"s_add_u32 s46, s46, {L_B + LB0}"]
    P += [f"v_lshrrev_b32 v{T0}, 5, v0", f"v_lshrrev_b32 v{T1}, 1, v0", f"v_and_b32 v{T1}, 7, v{T1}",
          f"v_xor_b32 v{T0}, v{T0}, v{T1}", f"v_and_b32 v{T1}, 31, v0", f"v_lshlrev_b32 v{T1}, 7, v{T1}",
          f"v_add_u32 v{T1}, s46, v{T1}"]
    for ks in range(4):
        P += [f"v_xor_b32 v{T2}, {2*ks}, v{T0}", f"v_lshlrev_b32 v{T2}, 4, v{T2}", f"v_add_u32 v{BA0[ks]}, v{T2}, v{T1}",
              f"v_mov_b32 v{BA[ks]}, v{BA0[ks]}"]
    P += [f"v_mov_b32 v{AA}, v{AA0}"]
    P += ["s_waitcnt lgkmcnt(0)", "s_cmp_eq_u32 s42, 0", "s_cselect_b32 s4, s4, s6", "s_cselect_b32 s5, s5, s7"] + srd(8, 4, 5, 8 * MB) + srd(24, 40, 41, WS_SIZE)
    P += ["s_lshl_b32 s47, s44, 2", "s_add_u32 s47, s47, s3", "s_lshl_b32 s47, s47, 17",
          f"s_mul_i32 s46, s42, {4*MB}", "s_add_u32 s47, s47, s46",
          "s_mov_b32 s48, 0", "s_lshl_b32 s50, s3, 12", "s_mov_b32 s49, s50", "s_mov_b32 s51, 0", "s_mov_b32 s57, s47"]
    if "yrot1" in EXP or "yrot2" in EXP:
        P += ["s_lshr_b32 s48, s2, 5", f"s_lshl_b32 s48, s48, {8 if 'yrot2' in EXP else 7}", "s_lshl_b32 s56, s48, 5", "s_add_u32 s47, s57, s56"]
    if "rot" in EXP:
        P += ["s_lshr_b32 s48, s2, 5", "s_lshl_b32 s48, s48, 2", "s_bfe_u32 s56, s2, 0x20003", "s_lshl_b32 s56, s56, 3",
              "s_add_u32 s48, s48, s56", "s_and_b32 s48, s48, 31", "s_lshl_b32 s48, s48, 7",
              "s_lshl_b32 s56, s48, 5", "s_add_u32 s47, s57, s56"]
    def dma():
        o = [[f"s_add_u32 m0, s49, {LB0}", f"buffer_load_dwordx4 v{VL16}, s[24:27], s47 offen lds"]]
        for u in range(1, 4):
            o.append([None, f"buffer_load_dwordx4 v{VL16}, s[24:27], s47 offen offset:{1024*u} lds"])
        for q in range(4):
            o.append([f"s_add_u32 m0, s49, {LB0 + L_B + 1024*q}", f"buffer_load_dwordx4 v{VB[q]}, s[8:11], s48 offen lds"])
        if "noydma" in EXP: o = [[a_, "s_nop 0"] for a_, b_ in o]
        return o
    def dma_adv():
        return ["s_add_u32 s48, s48, 128", "s_and_b32 s48, s48, 0xfff", "s_lshl_b32 s56, s48, 5", "s_add_u32 s47, s57, s56",
                f"s_add_u32 s49, s49, {STG}", f"s_and_b32 s49, s49, {NST*STG-1}"]
    LATE = 1 if "late1" in EXP else (2 if "late2" in EXP else 0)
    for t in range(NST - 1 - LATE):
        P += mix([], dma()) + dma_adv()
    for r in range(ACC, ACC + 64): P += [f"v_mov_b32 v{r}, 0"]
    def reads(s_, ks):
        if "noyrd" in EXP: return ["s_nop 0"] * 4
        return [f"ds_read_b128 {vr(fr(s_,0),4)}, v{AA} offset:{ks*1024}",
                f"ds_read_b128 {vr(fr(s_,2),4)}, v{BA[ks]}",
                f"ds_read_b128 {vr(fr(s_,3),4)}, v{BA[ks]} offset:4096",
                f"ds_read_b128 {vr(fr(s_,1),4)}, v{AA} offset:{4096+ks*1024}"]
    def mfmas(s_, ks=0):
        if "noy" in EXP: return ["s_nop 0"] * 4
        if "y16" in EXP:
            o = []
            for (i, j) in ((0, 0), (0, 1), (1, 0), (1, 1)):
                o += [mfma16(acc(i, j) + 8 * s_, fr(s_, i), fr(s_, 2 + j)), mfma16(acc(i, j) + 8 * s_ + 4, fr(s_, i), fr(s_, 2 + j))]
            return o
        return [mfma32(acc(0, 0), fr(s_, 0), fr(s_, 2)), mfma32(acc(0, 1), fr(s_, 0), fr(s_, 3)),
                mfma32(acc(1, 0), fr(s_, 1), fr(s_, 2)), mfma32(acc(1, 1), fr(s_, 1), fr(s_, 3))]
    def rd_adv():
        o = [f"s_add_u32 s51, s51, {STG}", f"s_and_b32 s51, s51, {NST*STG-1}", f"v_add_u32 v{AA}, s51, v{AA0}"]
        for i in range(4): o += [f"v_add_u32 v{BA[i]}, s51, v{BA0[i]}"]
        return o
    P += stamp(1)
    pre, ktext, ktrace = kloop(N, 32, NST, 8, dma, dma_adv, reads, mfmas, rd_adv, 52, late=LATE)
    E = ["s_nop 15"] + stamp(2)
    E += ["s_lshl_b32 s46, s44, 2", "s_and_b32 s47, s3, 1", "s_lshl_b32 s47, s47, 1", "s_add_u32 s46, s46, s47", "s_lshl_b32 s46, s46, 17",
          "s_lshl_b32 s47, s45, 2", "s_lshr_b32 s48, s3, 1", "s_lshl_b32 s48, s48, 1", "s_add_u32 s47, s47, s48", "s_lshl_b32 s47, s47, 11",
          "s_add_u32 s46, s46, s47", f"s_mul_i32 s47, s42, {4*MB}", "s_add_u32 s46, s46, s47", f"s_add_u32 s46, s46, {WS_Y1}"]
    pk = 32
    for i in range(2):
        for j in range(2):
            a = acc(i, j)
            for r in range(8): E += [f"v_cvt_pk_bf16_f32 v{pk+r}, v{a+2*r}, v{a+2*r+1}"]
            for t in range(2):
                E += [f"buffer_store_dwordx4 {vr(pk+4*t,4)}, v{VL16}, s[24:27], s46 offen offset:{j*2048+t*1024}"]
            pk = 32 + (pk - 32 + 8) % 32
        E += ["s_add_u32 s46, s46, 131072"]
    E += stamp(3) + ["s_waitcnt vmcnt(0)"] * STAMPS + stamp(4) + stamp_dump(5, 9, 2, 128 if merged else 0)
    E += [f"{N}_done:", "s_endpgm"]
    text = (header(N) if not merged else []) + P + pre + ktext + E
    errs = check_trace(P + pre + ktrace + E, N)
    return N, text, desc(N, 128), errs, (256, 256, NST * STG)

def gen_ygemm16(merged=False):
    N = "ygemm_kernel" if not merged else "mix_kernel_y"
    NST = 4; STG = 32768; L_B = 16384
    LB0 = 32768 if merged else 0
    ACC = 72
    def acc(i, j): return ACC + (i * 4 + j) * 4
    def fa(s, i): return 24 + s * 8 + i * 4
    def fb(s, j): return 40 + s * 16 + j * 4
    VL16 = 1; VB = [2, 3, 4, 5]; AA0 = 6; BA0 = [7, 8]; AA = 11; BA = [12, 13]; VY = 14
    T0, T1, T2, T3 = 16, 17, 18, 19
    P = []
    if not merged:
        P += ["s_cmp_ge_u32 s2, 256", f"s_cbranch_scc1 {N}_done"]
        P += ["v_lshrrev_b32 v1, 6, v0", "v_and_b32 v0, 63, v0", "v_readfirstlane_b32 s3, v1"]
    P += stamp(0)
    P += ["s_and_b32 s42, s2, 1",
          "s_load_dwordx4 s[4:7], s[0:1], 8", "s_load_dwordx2 s[40:41], s[0:1], 88"]
    P += ["s_bfe_u32 s44, s2, 0x10001", "s_lshl_b32 s44, s44, 2", "s_bfe_u32 s45, s2, 0x20003", "s_add_u32 s44, s44, s45",
          "s_bfe_u32 s45, s2, 0x10002", "s_lshl_b32 s45, s45, 3", "s_lshr_b32 s46, s2, 5", "s_add_u32 s45, s45, s46"]
    P += [f"v_lshlrev_b32 v{VL16}, 4, v0"]
    P += [f"v_lshrrev_b32 v{T0}, 3, v0", f"v_and_b32 v{T1}, 7, v0", f"v_lshrrev_b32 v{T2}, 4, v0",
          "s_lshl_b32 s46, s45, 7", "s_lshl_b32 s47, s3, 5", "s_add_u32 s46, s46, s47",
          f"v_add_u32 v{T3}, s46, v{T0}", f"v_lshlrev_b32 v{T3}, 12, v{T3}",
          f"v_xor_b32 v{VB[0]}, v{T1}, v{T2}", f"v_lshlrev_b32 v{VB[0]}, 4, v{VB[0]}", f"v_add_u32 v{VB[0]}, v{VB[0]}, v{T3}"]
    for q in range(1, 4):
        if q % 2: P += [f"v_xor_b32 v{VB[q]}, 64, v{VB[0]}", f"v_add_u32 v{VB[q]}, {q*8*4096}, v{VB[q]}"]
        else: P += [f"v_add_u32 v{VB[q]}, {q*8*4096}, v{VB[0]}"]
    P += [f"v_and_b32 v{T0}, 15, v0", f"v_lshrrev_b32 v{T1}, 4, v0",
          f"v_and_b32 v{T2}, 1, v{T1}", f"v_lshlrev_b32 v{T2}, 5, v{T2}", f"v_add_u32 v{T2}, v{T2}, v{T0}", f"v_lshlrev_b32 v{T2}, 4, v{T2}",
          f"v_lshrrev_b32 v{T3}, 1, v{T1}",
          f"v_lshlrev_b32 v{VY}, 3, v{T3}", f"v_add_u32 v{VY}, v{VY}, v{T2}",
          f"v_lshlrev_b32 v{T3}, 10, v{T3}", f"v_add_u32 v{T2}, v{T2}, v{T3}",
          "s_and_b32 s46, s3, 1", "s_lshl_b32 s46, s46, 13", f"s_add_u32 s46, s46, {LB0}", f"v_add_u32 v{AA0}, s46, v{T2}",
          "s_lshr_b32 s46, s3, 1", "s_lshl_b32 s46, s46, 13", f"s_add_u32 s46, s46, {L_B + LB0}",
          f"v_lshrrev_b32 v{T2}, 1, v{T0}", f"v_xor_b32 v{T2}, v{T2}, v{T1}",
          f"v_lshlrev_b32 v{T3}, 7, v{T0}", f"v_add_u32 v{T3}, s46, v{T3}"]
    for kk in range(2):
        P += [f"v_xor_b32 v{T0}, {4*kk}, v{T2}", f"v_lshlrev_b32 v{T0}, 4, v{T0}", f"v_add_u32 v{BA0[kk]}, v{T0}, v{T3}",
              f"v_mov_b32 v{BA[kk]}, v{BA0[kk]}"]
    P += [f"v_mov_b32 v{AA}, v{AA0}"]
    P += ["s_waitcnt lgkmcnt(0)", "s_cmp_eq_u32 s42, 0", "s_cselect_b32 s4, s4, s6", "s_cselect_b32 s5, s5, s7"] + srd(8, 4, 5, 8 * MB) + srd(24, 40, 41, WS_SIZE)
    P += ["s_lshl_b32 s47, s44, 2", "s_add_u32 s47, s47, s3", "s_lshl_b32 s47, s47, 17",
          f"s_mul_i32 s46, s42, {4*MB}", "s_add_u32 s47, s47, s46",
          "s_mov_b32 s48, 0", "s_lshl_b32 s50, s3, 12", "s_mov_b32 s49, s50", "s_mov_b32 s51, 0", "s_mov_b32 s57, s47"]
    if "yrot1" in EXP or "yrot2" in EXP:
        P += ["s_lshr_b32 s48, s2, 5", f"s_lshl_b32 s48, s48, {8 if 'yrot2' in EXP else 7}", "s_lshl_b32 s56, s48, 5", "s_add_u32 s47, s57, s56"]
    if "rot" in EXP:
        P += ["s_lshr_b32 s48, s2, 5", "s_lshl_b32 s48, s48, 2", "s_bfe_u32 s56, s2, 0x20003", "s_lshl_b32 s56, s56, 3",
              "s_add_u32 s48, s48, s56", "s_and_b32 s48, s48, 31", "s_lshl_b32 s48, s48, 7",
              "s_lshl_b32 s56, s48, 5", "s_add_u32 s47, s57, s56"]
    def dma():
        o = [[f"s_add_u32 m0, s49, {LB0}", f"buffer_load_dwordx4 v{VL16}, s[24:27], s47 offen lds"]]
        for u in range(1, 4):
            o.append([None, f"buffer_load_dwordx4 v{VL16}, s[24:27], s47 offen offset:{1024*u} lds"])
        for q in range(4):
            o.append([f"s_add_u32 m0, s49, {LB0 + L_B + 1024*q}", f"buffer_load_dwordx4 v{VB[q]}, s[8:11], s48 offen lds"])
        if "noydma" in EXP: o = [[a_, "s_nop 0"] for a_, b_ in o]
        return o
    def dma_adv():
        return ["s_add_u32 s48, s48, 128", "s_and_b32 s48, s48, 0xfff", "s_lshl_b32 s56, s48, 5", "s_add_u32 s47, s57, s56",
                f"s_add_u32 s49, s49, {STG}", f"s_and_b32 s49, s49, {NST*STG-1}"]
    LATE = 1 if "late1" in EXP else (2 if "late2" in EXP else 0)
    for t in range(NST - 1 - LATE):
        P += mix([], dma()) + dma_adv()
    for r in range(ACC, ACC + 64): P += [f"v_mov_b32 v{r}, 0"]
    def reads(s_, ks):
        kk, eh = ks >> 1, ks & 1
        o = [f"ds_read_b128 {vr(fa(s_,0),4)}, v{AA} offset:{eh*4096+kk*2048}"]
        if eh == 0:
            o += [f"ds_read_b128 {vr(fb(kk,j),4)}, v{BA[kk]} offset:{j*2048}" for j in range(4)]
        o += [f"ds_read_b128 {vr(fa(s_,1),4)}, v{AA} offset:{eh*4096+kk*2048+256}"]
        return o
    def mfmas(s_, ks=0):
        kk, eh = ks >> 1, ks & 1
        return [mfma16(acc(2 * eh + i, j), fa(s_, i), fb(kk, j)) for i in range(2) for j in range(4)]
    def rd_adv():
        o = [f"s_add_u32 s51, s51, {STG}", f"s_and_b32 s51, s51, {NST*STG-1}", f"v_add_u32 v{AA}, s51, v{AA0}"]
        for i in range(2): o += [f"v_add_u32 v{BA[i]}, s51, v{BA0[i]}"]
        return o
    P += stamp(1)
    pre, ktext, ktrace = kloop(N, 32, NST, 8, dma, dma_adv, reads, mfmas, rd_adv, 52, npre=2, late=LATE)
    E = ["s_nop 15"] + stamp(2)
    E += ["s_lshl_b32 s46, s44, 2", "s_and_b32 s47, s3, 1", "s_lshl_b32 s47, s47, 1", "s_add_u32 s46, s46, s47", "s_lshl_b32 s46, s46, 17",
          "s_lshl_b32 s47, s45, 2", "s_lshr_b32 s48, s3, 1", "s_lshl_b32 s48, s48, 1", "s_add_u32 s47, s47, s48", "s_lshl_b32 s47, s47, 11",
          "s_add_u32 s46, s46, s47", f"s_mul_i32 s47, s42, {4*MB}", "s_add_u32 s46, s46, s47", f"s_add_u32 s46, s46, {WS_Y1}"]
    pk = 24
    for i in range(4):
        for j in range(4):
            a = acc(i, j)
            E += [f"v_cvt_pk_bf16_f32 v{pk}, v{a}, v{a+1}", f"v_cvt_pk_bf16_f32 v{pk+1}, v{a+2}, v{a+3}",
                  f"buffer_store_dwordx2 {vr(pk,2)}, v{VY}, s[24:27], s46 offen offset:{(i&1)*1024 + (j&1)*256 + (j>>1)*2048}"]
            pk = 24 + (pk - 24 + 2) % 32
        if i == 1: E += ["s_add_u32 s46, s46, 131072"]
    E += stamp(3) + ["s_waitcnt vmcnt(0)"] * STAMPS + stamp(4) + stamp_dump(5, 9, 2, 128 if merged else 0)
    E += [f"{N}_done:", "s_endpgm"]
    text = (header(N) if not merged else []) + P + pre + ktext + E
    errs = check_trace(P + pre + ktrace + E, N)
    return N, text, desc(N, 136), errs, (256, 256, NST * STG)


def mfma16c(d, a, b, c):
    cs = c if isinstance(c, str) else vr(c, 4)
    return f"v_mfma_f32_16x16x32_bf16 {vr(d,4)}, {vr(a,4)}, {vr(b,4)}, {cs}"

def gen_attn16():
    N = "mix_kernel_a"
    NST = 4; STG = 8192
    def Q(qb): return 16 + 4 * qb
    S = {"A": 32, "B": 48}
    Pk = {"A": 64, "B": 72}
    def O(qb, db=0): return 80 + 8 * qb + 4 * db
    def L(qb): return 112 + 4 * qb
    def CN(qb): return 128 + 4 * qb
    KF = [144, 152]; VF = [160, 168]; ONES = 176
    QB0 = {"A": 0, "B": 2}
    VL16 = 1; VRD = 2; VG = 3; VPAT = 4; T0, T1, T2, T3 = 5, 6, 7, 8; VO = 9
    P = []
    P += stamp(0)
    P += ["s_load_dwordx2 s[40:41], s[0:1], 88", "s_load_dwordx2 s[4:5], s[0:1], 0", "s_load_dwordx2 s[38:39], s[0:1], 64"]
    P += ["s_and_b32 s42, s2, 7", "s_lshr_b32 s43, s2, 3", "s_lshl_b32 s42, s42, 2", "s_lshr_b32 s44, s43, 3",
          "s_add_u32 s42, s42, s44", "s_and_b32 s43, s43, 7",
          "s_lshl_b32 s43, s43, 3", "s_lshl_b32 s44, s3, 1", "s_add_u32 s43, s43, s44",
          "s_lshl_b32 s44, s42, 17"]
    P += [f"v_lshlrev_b32 v{VL16}, 4, v0", f"v_and_b32 v{T0}, 15, v0", f"v_bfe_u32 v{T1}, v0, 4, 1", f"v_lshlrev_b32 v{T1}, 5, v{T1}",
          f"v_add_u32 v{T0}, v{T0}, v{T1}", f"v_lshlrev_b32 v{T0}, 4, v{T0}", f"v_lshrrev_b32 v{T1}, 5, v0",
          f"v_lshlrev_b32 v{T2}, 10, v{T1}", f"v_add_u32 v{VPAT}, v{T0}, v{T2}", f"v_lshlrev_b32 v{T2}, 3, v{T1}", f"v_add_u32 v{VO}, v{T0}, v{T2}"]
    P += ["s_waitcnt lgkmcnt(0)"] + srd(24, 40, 41, WS_SIZE) + srd(8, 4, 5, 4 * MB) + srd(28, 38, 39, 2048)
    P += ["s_lshl_b32 s45, s43, 11", "s_add_u32 s45, s45, s44", f"s_add_u32 s45, s45, {WS_Q}",
          f"s_add_u32 s46, s44, {WS_K}", f"s_add_u32 s47, s44, {WS_V}"]
    for qb in range(4):
        P += [f"buffer_load_dwordx4 {vr(Q(qb),4)}, v{VPAT}, s[24:27], s45 offen offset:{(qb&1)*256 + (qb>>1)*2048}"]
    for i in range(4):
        P += [f"buffer_load_dwordx4 {vr(KF[0]+4*i,4)}, v{VPAT}, s[24:27], s46 offen offset:{(i&1)*256 + (i>>1)*2048}"]
    P += ["s_lshl_b32 s51, s3, 10", "s_mov_b32 s61, s51", "s_add_u32 s60, s61, 2048",
          "s_add_u32 s48, s46, s60", "s_add_u32 s49, s47, s61", "s_mov_b32 s50, s51"]
    def dma():
        return [["s_mov_b32 m0, s50", f"buffer_load_dwordx4 v{VL16}, s[24:27], s48 offen lds"],
                ["s_add_u32 m0, s50, 4096", f"buffer_load_dwordx4 v{VL16}, s[24:27], s49 offen lds"]]
    def dma_adv():
        return ["s_add_u32 s60, s60, 4096", "s_and_b32 s60, s60, 0x1ffff", "s_add_u32 s61, s61, 4096", "s_and_b32 s61, s61, 0x1ffff",
                "s_add_u32 s48, s46, s60", "s_add_u32 s49, s47, s61", f"s_add_u32 s50, s50, {STG}",
                f"s_and_b32 s50, s50, {NST*STG-1}"]
    for t in range(NST - 1):
        for a, b in dma(): P += [a, "s_nop 0", b]
        P += dma_adv()
    GX = 192
    P += ["s_lshl_b32 s62, s2, 3", "s_lshl_b32 s45, s3, 1", "s_add_u32 s62, s62, s45", "s_lshl_b32 s45, s62, 11",
          f"v_lshlrev_b32 v{T0}, 5, v0"]
    P += [f"buffer_load_dwordx4 v[{GX}:{GX+3}], v{T0}, s[8:11], s45 offen",
          f"buffer_load_dwordx4 v[{GX+4}:{GX+7}], v{T0}, s[8:11], s45 offen offset:16",
          f"buffer_load_dwordx4 v[{GX+8}:{GX+11}], v{T0}, s[8:11], s45 offen offset:2048",
          f"buffer_load_dwordx4 v[{GX+12}:{GX+15}], v{T0}, s[8:11], s45 offen offset:2064",
          f"buffer_load_dwordx4 v[{GX+16}:{GX+19}], v{T0}, s[28:31], 0 offen",
          f"buffer_load_dwordx4 v[{GX+20}:{GX+23}], v{T0}, s[28:31], 0 offen offset:16"]
    for r in list(range(112, 128)) + list(range(Pk["B"], Pk["B"] + 8)) + list(range(VF[0], VF[0] + 16)):
        P += [f"v_mov_b32 v{r}, 0"]
    for i in range(4): P += [f"v_mov_b32 v{ONES+i}, 0x3f803f80"]
    P += [f"v_mov_b32 v{VRD}, v{VPAT}", "s_mov_b32 s52, 0", "s_mov_b32 s53, 0"]
    P += [f"s_waitcnt vmcnt({2*(NST-1)+6})"]
    def TM(qb): return (32 + 16 * qb) if qb < 2 else (80 + 16 * (qb - 2))
    for qb in range(4):
        for i in range(4):
            P += [mfma16c(TM(qb) + 4 * i, KF[0] + 4 * i, Q(qb), "0")]
    P += ["s_nop 7"]
    MX = [10, 11, 12, 13]
    for qb in range(4):
        t = TM(qb); m = MX[qb]
        P += [f"v_max3_f32 v{m}, v{t}, v{t+1}, v{t+2}"]
        for i in range(3, 15, 2): P += [f"v_max3_f32 v{m}, v{m}, v{t+i}, v{t+i+1}"]
        P += [f"v_max_f32 v{m}, v{m}, v{t+15}"]
    for qb in range(4): P += [f"ds_swizzle_b32 v{T0+qb}, v{MX[qb]} offset:0x401F"]
    P += ["s_waitcnt lgkmcnt(0)"]
    for qb in range(4): P += [f"v_max_f32 v{MX[qb]}, v{MX[qb]}, v{T0+qb}"]
    for qb in range(4): P += [f"v_mov_b32 v{T0+qb}, v{MX[qb]}"]
    P += ["s_nop 1"]
    for qb in range(4): P += [f"v_permlane32_swap_b32 v{MX[qb]}, v{T0+qb}"]
    P += [f"s_mov_b32 s54, {hex(f32bits(-ATT_OFF))}"]
    for qb in range(4):
        P += [f"v_max_f32 v{MX[qb]}, v{MX[qb]}, v{T0+qb}", f"v_sub_f32 v{MX[qb]}, s54, v{MX[qb]}"]
        for i in range(4): P += [f"v_mov_b32 v{CN(qb)+i}, v{MX[qb]}"]
    for r in range(80, 112): P += [f"v_mov_b32 v{r}, 0"]
    def qk(Y, kset):
        return [mfma16c(S[Y] + (qi * 2 + kb) * 4, KF[kset] + 4 * kb, Q(QB0[Y] + qi), CN(QB0[Y] + qi)) for qi in range(2) for kb in range(2)]
    def pv(Y, vset):
        o = []
        for qi in range(2):
            qb = QB0[Y] + qi
            o += [mfma16(O(qb, 0), VF[vset], Pk[Y] + 4 * qi), mfma16(O(qb, 1), VF[vset] + 4, Pk[Y] + 4 * qi), mfma16(L(qb), ONES, Pk[Y] + 4 * qi)]
        return o
    P += qk("A", 0) + ["s_nop 7"]
    P += stamp(1)
    def slot(X, kset_qk, vset_pv, rd, extra=[]):
        Y = "B" if X == "A" else "A"
        mf = qk(Y, kset_qk) + pv(Y, vset_pv)
        e = [f"v_exp_f32 v{S[X]+i}, v{S[X]+i}" for i in range(16)]
        c = [f"v_cvt_pk_bf16_f32 v{Pk[X]+j}, v{S[X]+2*j}, v{S[X]+2*j+1}" for j in range(8)]
        va = e[0:3] + [c[0]] + e[3:5] + [c[1]] + e[5:7] + [c[2]] + e[7:9] + [c[3]] + e[9:11] + [c[4]] + e[11:13] + [c[5]] + e[13:16] + [c[6], c[7]]
        cnt = [2, 2, 3, 2, 3, 2, 3, 2, 3, 2]
        o = []; vi = 0
        for i in range(10):
            o += [mf[i]]
            if i < 4 and rd: o += [rd[i]]
            if i < len(extra): o += extra[i][:1]
            o += va[vi:vi + cnt[i]]; vi += cnt[i]
            if i < len(extra): o += extra[i][1:]
        assert vi == 24
        return o
    def rds(kb_par, half):
        return [f"ds_read_b128 {vr(KF[1-kb_par],4)}, v{VRD} offset:{half*2048}",
                f"ds_read_b128 {vr(KF[1-kb_par]+4,4)}, v{VRD} offset:{half*2048+256}",
                f"ds_read_b128 {vr(VF[kb_par],4)}, v{VRD} offset:{4096+half*2048}",
                f"ds_read_b128 {vr(VF[kb_par]+4,4)}, v{VRD} offset:{4096+half*2048+256}"]
    B = [f"s_waitcnt vmcnt({2*(NST-2)})", "s_barrier"]
    d = dma()
    if "newtop" not in EXP:
        B += [d[0][0], "s_nop 0", d[0][1], d[1][0], "s_nop 0", d[1][1]] + dma_adv()
        B += slot("A", 0, 1, rds(0, 0))
        B += ["s_waitcnt lgkmcnt(0)"]
        B += slot("B", 1, 0, [])
    else:
        adv = dma_adv()
        B += slot("A", 0, 1, rds(0, 0), [[], [], [], [], d[0], d[1]])
        B += ["s_waitcnt lgkmcnt(0)"]
        B += slot("B", 1, 0, [], [adv[0:2], adv[2:4], adv[4:6], adv[6:8]])
    B += slot("A", 1, 0, rds(1, 1))
    B += ["s_waitcnt lgkmcnt(0)"]
    B += slot("B", 0, 1, [], [[f"s_add_u32 s53, s53, {STG}", f"s_and_b32 s53, s53, {NST*STG-1}"], [f"v_add_u32 v{VRD}, s53, v{VPAT}"]])
    tail = ["s_add_u32 s52, s52, 1", "s_cmp_lt_u32 s52, 32", f"s_cbranch_scc1 {N}_loop"]
    E = stamp(2)
    E += ["s_nop 1"] + pv("B", 1) + ["s_nop 7"]
    E += [f"s_mov_b32 s54, {hex(f32bits(ATT_LMAX))}",
          f"v_max3_f32 v{T0}, v{L(0)}, v{L(1)}, v{L(2)}", f"v_cmp_gt_f32 vcc, s54, v{T0}", f"v_cmp_gt_f32 s[56:57], s54, v{L(3)}",
          f"v_cmp_o_f32 s[58:59], v{L(0)}, v{L(1)}", f"v_cmp_o_f32 s[64:65], v{L(2)}, v{L(3)}", "s_nop 1",
          "s_and_b64 vcc, vcc, s[56:57]", "s_and_b64 vcc, vcc, s[58:59]", "s_and_b64 vcc, vcc, s[64:65]",
          "s_cmp_eq_u64 vcc, exec", f"s_cbranch_scc0 {N}_fallback"]
    E2 = [f"{N}_final:"]
    E2 += ["s_lshl_b32 s45, s43, 16", "s_lshl_b32 s46, s42, 11", "s_add_u32 s45, s45, s46", f"s_add_u32 s45, s45, {WS_O}"]
    for qb in range(4):
        E2 += [f"v_rcp_f32 v{T0}, v{L(qb)}", "s_nop 0"]
        for i in range(8): E2 += [f"v_mul_f32 v{O(qb)+i}, v{O(qb)+i}, v{T0}"]
        for db in range(2):
            pk = 32 + qb * 4 + db * 2
            E2 += [f"v_cvt_pk_bf16_f32 v{pk}, v{O(qb,db)}, v{O(qb,db)+1}", f"v_cvt_pk_bf16_f32 v{pk+1}, v{O(qb,db)+2}, v{O(qb,db)+3}",
                   f"buffer_store_dwordx2 {vr(pk,2)}, v{VO}, s[24:27], s45 offen offset:{(qb&1)*256 + db*1024}"]
        if qb == 1: E2 += ["s_add_u32 s45, s45, 65536"]
    A0, A1 = 64, 65
    E2 += ["s_waitcnt vmcnt(8)", f"v_mov_b32 v{A0}, 0", f"v_mov_b32 v{A1}, 0"]
    for i in range(8):
        w = GX + 16 + i
        E2 += [f"v_lshlrev_b32 v66, 16, v{w}", f"v_and_b32 v67, 0xffff0000, v{w}"]
        for r, a in ((0, A0), (1, A1)):
            x = GX + 8 * r + i
            E2 += [f"v_lshlrev_b32 v68, 16, v{x}", f"v_and_b32 v69, 0xffff0000, v{x}",
                  "v_mul_f32 v68, v68, v66", "v_mul_f32 v69, v69, v67",
                  "v_cvt_pk_bf16_f32 v70, v68, v69",
                  "v_lshlrev_b32 v68, 16, v70", "v_and_b32 v69, 0xffff0000, v70",
                  f"v_add_f32 v{a}, v{a}, v68", f"v_add_f32 v{a}, v{a}, v69"]
    for off in (0x041F, 0x081F, 0x101F, 0x201F, 0x401F):
        E2 += [f"ds_swizzle_b32 v66, v{A0} offset:{off}", f"ds_swizzle_b32 v67, v{A1} offset:{off}",
              "s_waitcnt lgkmcnt(0)", f"v_add_f32 v{A0}, v{A0}, v66", f"v_add_f32 v{A1}, v{A1}, v67"]
    E2 += ["s_nop 0", f"v_readlane_b32 s55, v{A0}, 32", f"v_readlane_b32 s56, v{A1}, 32", "s_nop 1",
          f"v_add_f32 v{A0}, s55, v{A0}", f"v_add_f32 v{A1}, s56, v{A1}",
          "v_cmp_eq_u32 vcc, 1, v0", "s_nop 1", f"v_cndmask_b32 v{A0}, v{A0}, v{A1}, vcc",
          f"v_cvt_pk_bf16_f32 v{A0}, v{A0}, v{A0}", f"v_lshlrev_b32 v{A0}, 16, v{A0}",
          f"v_mul_f32 v{A0}, {hex(f32bits(-LOG2E))}, v{A0}", f"v_exp_f32 v{A0}, v{A0}", "s_nop 0",
          f"v_add_f32 v{A0}, 1.0, v{A0}", f"v_rcp_f32 v{A0}, v{A0}", "s_nop 0",
          f"v_cvt_pk_bf16_f32 v{A0}, v{A0}, v{A0}", f"v_lshlrev_b32 v{VG}, 16, v{A0}"]
    E2 += [f"v_lshlrev_b32 v{T0}, 2, v0", "s_lshl_b32 s45, s62, 2", f"s_add_u32 s45, s45, {WS_G}",
           "v_cmp_gt_u32 vcc, 2, v0", "s_and_saveexec_b64 s[58:59], vcc",
           f"buffer_store_dword v{VG}, v{T0}, s[24:27], s45 offen", "s_mov_b64 exec, s[58:59]"]
    E2 += stamp(3) + ["s_waitcnt vmcnt(0)"] + stamp(4) + stamp_dump(5, 9, 1)
    E2 += [f"{N}_done:", "s_endpgm"]
    F = [f"{N}_fallback:", "s_waitcnt vmcnt(0)"]
    AL = 14
    for qb in range(4):
        F += [f"v_mov_b32 v{MX[qb]}, 0xff7fffff", f"v_mov_b32 v{L(qb)}, 0"]
        for i in range(8): F += [f"v_mov_b32 v{O(qb)+i}, 0"]
    F += [f"s_add_u32 s46, s44, {WS_K}", f"s_add_u32 s47, s44, {WS_V}", "s_mov_b32 s52, 0"]
    FB = [f"buffer_load_dwordx4 {vr(KF[0],4)}, v{VPAT}, s[24:27], s46 offen",
          f"buffer_load_dwordx4 {vr(KF[0]+4,4)}, v{VPAT}, s[24:27], s46 offen offset:256",
          f"buffer_load_dwordx4 {vr(VF[0],4)}, v{VPAT}, s[24:27], s47 offen",
          f"buffer_load_dwordx4 {vr(VF[0]+4,4)}, v{VPAT}, s[24:27], s47 offen offset:256",
          "s_waitcnt vmcnt(0)"]
    for qb in range(4):
        s0 = 32; p0 = 64
        FB += [mfma16c(s0, KF[0], Q(qb), "0"), mfma16c(s0 + 4, KF[0] + 4, Q(qb), "0"), "s_nop 7"]
        FB += [f"v_max3_f32 v{T0}, v{s0}, v{s0+1}, v{MX[qb]}", f"v_max3_f32 v{T0}, v{T0}, v{s0+2}, v{s0+3}",
               f"v_max3_f32 v{T0}, v{T0}, v{s0+4}, v{s0+5}", f"v_max3_f32 v{T0}, v{T0}, v{s0+6}, v{s0+7}",
               f"ds_swizzle_b32 v{T1}, v{T0} offset:0x401F", "s_waitcnt lgkmcnt(0)", f"v_max_f32 v{T0}, v{T0}, v{T1}",
               f"v_mov_b32 v{T1}, v{T0}", "s_nop 1", f"v_permlane32_swap_b32 v{T0}, v{T1}", f"v_max_f32 v{T0}, v{T0}, v{T1}",
               f"v_sub_f32 v{AL}, v{MX[qb]}, v{T0}", f"v_exp_f32 v{AL}, v{AL}", f"v_mov_b32 v{MX[qb]}, v{T0}",
               f"v_mul_f32 v{L(qb)}, v{L(qb)}, v{AL}"]
        for i in range(8):
            FB += [f"v_sub_f32 v{s0+i}, v{s0+i}, v{T0}", f"v_exp_f32 v{s0+i}, v{s0+i}", f"v_mul_f32 v{O(qb)+i}, v{O(qb)+i}, v{AL}"]
        for j in range(4):
            FB += [f"v_cvt_pk_bf16_f32 v{p0+j}, v{s0+2*j}, v{s0+2*j+1}",
                   f"v_lshlrev_b32 v{T1}, 16, v{p0+j}", f"v_and_b32 v{T2}, 0xffff0000, v{p0+j}",
                   f"v_add_f32 v{L(qb)}, v{L(qb)}, v{T1}", f"v_add_f32 v{L(qb)}, v{L(qb)}, v{T2}"]
        FB += ["s_nop 1", mfma16(O(qb, 0), VF[0], p0), mfma16(O(qb, 1), VF[0] + 4, p0), "s_nop 7"]
    FB += ["s_add_u32 s46, s46, 2048", "s_add_u32 s47, s47, 2048", "s_add_u32 s52, s52, 1", "s_cmp_lt_u32 s52, 64",
           f"s_cbranch_scc1 {N}_fbloop"]
    FE = []
    for qb in range(4):
        FE += [f"ds_swizzle_b32 v{T1}, v{L(qb)} offset:0x401F", "s_waitcnt lgkmcnt(0)", f"v_add_f32 v{L(qb)}, v{L(qb)}, v{T1}",
               f"v_mov_b32 v{T1}, v{L(qb)}", "s_nop 1", f"v_permlane32_swap_b32 v{L(qb)}, v{T1}", f"v_add_f32 v{L(qb)}, v{L(qb)}, v{T1}"]
    FE += [f"s_branch {N}_final"]
    text = P + [f"{N}_loop:"] + B + tail + E + E2 + F + [f"{N}_fbloop:"] + FB + FE
    errs = check_trace(P + B + tail + B + tail + E + E2, N)
    errs += check_trace(P + B + tail + E + F + FB + FB + FE + E2, N + "_fb")
    return N, text, desc(N, 216), errs, (256, 256, NST * STG)

def gen_mix():
    N = "mix_kernel"
    _, ta, _, ea, _ = gen_attn(True) if "a32" in EXP else gen_attn16()
    _, ty, _, ey, _ = gen_ygemm(True) if "y32" in EXP else gen_ygemm16(True)
    H = header(N) + ["s_cmp_ge_u32 s2, 256", "s_cbranch_scc1 mix_kernel_a_done",
         "v_lshrrev_b32 v1, 6, v0", "v_and_b32 v0, 63, v0", "v_readfirstlane_b32 s3, v1", "s_nop 3",
         "s_cmp_ge_u32 s3, 4", "s_cbranch_scc1 mix_kernel_ystart"]
    text = H + (["s_setprio 1"] if "prioa" in EXP else []) + ta + ["mix_kernel_ystart:", "s_sub_u32 s3, s3, 4"] + (["s_setprio 1"] if "prioy" in EXP else []) + ty
    return N, text, desc(N, 216), ea + ey, (256, 512, 163840)

def gen_out():
    N = "out_kernel"
    NST = 4 if "o4" in EXP else 6; STG = 24576; L_B = 8192
    ACC = 64
    def acc(i): return ACC + i * 16
    def fr(s, i): return 32 + s * 12 + i * 4
    def fr2(s, ks, i): return 128 + s * 48 + ks * 12 + i * 4
    VL16 = 1; VW = [2, 3]; WA0 = 4; BA0 = 5; WA = 6; BA = 7; VG = 8; VO = 9; WB0 = 10; WB = 11
    T0, T1, T2, T3 = 16, 17, 18, 19
    Y = 96
    P = ["s_cmp_ge_u32 s2, 256", f"s_cbranch_scc1 {N}_done"]
    P += stamp(0)
    P += ["s_load_dwordx2 s[4:5], s[0:1], 56", "s_load_dwordx2 s[6:7], s[0:1], 72", "s_load_dwordx2 s[40:41], s[0:1], 88"]
    P += ["v_lshrrev_b32 v1, 6, v0", "v_and_b32 v0, 63, v0", "v_readfirstlane_b32 s3, v1"]
    P += ["s_and_b32 s45, s2, 3", "s_lshl_b32 s45, s45, 2", "s_bfe_u32 s46, s2, 0x20003", "s_add_u32 s45, s45, s46",
          "s_bfe_u32 s44, s2, 0x10002", "s_lshl_b32 s44, s44, 3", "s_lshr_b32 s46, s2, 5", "s_add_u32 s44, s44, s46",
          "s_lshl_b32 s43, s45, 2", "s_add_u32 s43, s43, s3"]
    P += [f"v_lshlrev_b32 v{VL16}, 4, v0"]
    P += [f"v_lshrrev_b32 v{T3}, 3, v0", "s_lshl_b32 s46, s3, 4", f"v_add_u32 v{T3}, s46, v{T3}", f"v_lshlrev_b32 v{T3}, 11, v{T3}",
          f"v_bfe_u32 v{T0}, v0, 4, 1", f"v_lshlrev_b32 v{T0}, 2, v{T0}", f"v_and_b32 v{T1}, 7, v0", f"v_xor_b32 v{T0}, v{T0}, v{T1}",
          f"v_lshlrev_b32 v{VW[0]}, 4, v{T0}", f"v_add_u32 v{VW[0]}, v{VW[0]}, v{T3}",
          "s_lshl_b32 s46, s44, 7", f"v_add_u32 v{VW[0]}, s46, v{VW[0]}", f"v_add_u32 v{VW[1]}, {8*2048}, v{VW[0]}"]
    P += [f"v_lshrrev_b32 v{T0}, 5, v0", f"v_lshlrev_b32 v{T0}, 2, v{T0}", f"v_bfe_u32 v{T1}, v0, 2, 2",
          f"v_add_u32 v{T0}, v{T0}, v{T1}", f"v_lshlrev_b32 v{T0}, 7, v{T0}",
          f"v_bfe_u32 v{T1}, v0, 3, 1", f"v_lshlrev_b32 v{T1}, 6, v{T1}", f"v_add_u32 v{T0}, v{T0}, v{T1}",
          f"v_bfe_u32 v{T1}, v0, 4, 1", f"v_lshlrev_b32 v{T1}, 5, v{T1}", f"v_add_u32 v{T0}, v{T0}, v{T1}",
          f"v_and_b32 v{T1}, 3, v0", f"v_lshlrev_b32 v{T1}, 3, v{T1}", f"v_add_u32 v{WA0}, v{T0}, v{T1}",
          f"v_xor_b32 v{WB0}, 64, v{WA0}",
          "s_lshl_b32 s50, s3, 12", f"s_add_u32 s46, s50, {L_B}", f"v_add_u32 v{BA0}, s46, v{VL16}",
          f"v_mov_b32 v{WA}, v{WA0}", f"v_mov_b32 v{WB}, v{WB0}", f"v_mov_b32 v{BA}, v{BA0}"]
    P += [f"v_and_b32 v{T0}, 31, v0", "s_lshl_b32 s46, s43, 5", f"v_add_u32 v{T1}, s46, v{T0}", f"v_lshlrev_b32 v{VO}, 11, v{T1}",
          f"v_lshrrev_b32 v{T2}, 5, v0", f"v_lshlrev_b32 v{T2}, 4, v{T2}", f"v_add_u32 v{VO}, v{VO}, v{T2}",
          "s_lshl_b32 s46, s44, 7", f"v_add_u32 v{VO}, s46, v{VO}", f"v_lshlrev_b32 v{T1}, 2, v{T1}"]
    P += ["s_waitcnt lgkmcnt(0)"] + stamp(5) + srd(8, 4, 5, 2 * MB) + srd(12, 6, 7, 4 * MB) + srd(24, 40, 41, WS_SIZE)
    P += ["s_lshl_b32 s47, s43, 16", f"s_add_u32 s47, s47, {WS_O}", "s_mov_b32 s48, 0", "s_mov_b32 s49, 0",
          "s_lshl_b32 s53, s3, 11", "s_mov_b32 s51, 0"]
    def dma():
        o = [["s_add_u32 m0, s49, s53", f"buffer_load_dwordx4 v{VW[0]}, s[8:11], s48 offen lds"],
             ["s_add_u32 m0, m0, 1024", f"buffer_load_dwordx4 v{VW[1]}, s[8:11], s48 offen lds"],
             ["s_add_u32 m0, s49, s54", f"buffer_load_dwordx4 v{VL16}, s[24:27], s47 offen lds"]]
        for u in range(1, 4):
            o.append([None, f"buffer_load_dwordx4 v{VL16}, s[24:27], s47 offen offset:{1024*u} lds"])
        if "nowo" in EXP:
            o[0][1] = f"buffer_load_dwordx4 v{VL16}, s[24:27], s47 offen lds"
            o[1][1] = f"buffer_load_dwordx4 v{VL16}, s[24:27], s47 offen lds"
        if "noo" in EXP:
            for u in range(2, 6): o[u][1] = f"buffer_load_dwordx4 v{VW[0]}, s[8:11], s48 offen lds"
        return o
    def dma_adv():
        if "norot3" not in EXP:
            return ["s_add_u32 s56, s56, 4096", "s_and_b32 s56, s56, 0xffff", "s_add_u32 s47, s57, s56", "s_lshl_b32 s48, s56, 5",
                    f"s_add_u32 s49, s49, {STG}", f"s_cmp_ge_u32 s49, {NST*STG}", "s_cselect_b32 s49, 0, s49"]
        return ["s_add_u32 s47, s47, 4096", f"s_add_u32 s48, s48, {64*2048}", f"s_add_u32 s49, s49, {STG}",
                f"s_cmp_ge_u32 s49, {NST*STG}", "s_cselect_b32 s49, 0, s49"]
    P += [f"s_add_u32 s54, s50, {L_B}"]
    if "norot3" not in EXP:
        P += ["s_lshr_b32 s56, s2, 5", "s_lshl_b32 s56, s56, 1", "s_bfe_u32 s57, s2, 0x20003", "s_lshl_b32 s57, s57, 2",
              "s_add_u32 s56, s56, s57", "s_and_b32 s56, s56, 15", "s_lshl_b32 s56, s56, 12",
              "s_mov_b32 s57, s47", "s_add_u32 s47, s57, s56", "s_lshl_b32 s48, s56, 5"]
    YL = []
    YL += ["s_lshl_b32 s46, s44, 18", "s_lshl_b32 s55, s43, 11", "s_add_u32 s46, s46, s55", f"s_add_u32 s46, s46, {WS_Y1}"]
    for i in range(2):
        for p in range(2):
            YL += [f"s_add_u32 s55, s46, {i*131072 + p*4*MB}"]
            for t in range(2):
                YL += [f"buffer_load_dwordx4 {vr(Y+(i*2+p)*8+4*t,4)}, v{VL16}, s[24:27], s55 offen offset:{1024*t}"]
    YL += [f"s_mov_b32 s55, {WS_G}", f"buffer_load_dword v{VG}, v{T1}, s[24:27], s55 offen"]
    if "yearly" in EXP: P += YL
    P += stamp(6)
    for t in range(NST - 1 if "k3old" in EXP else NST):
        P += mix([], dma()) + dma_adv()
    P += stamp(7)
    if "ylate" in EXP: P += YL
    for r in range(ACC, ACC + 32): P += [f"v_mov_b32 v{r}, 0"]
    def reads(s_, ks):
        return [f"ds_read_b128 {vr(fr(s_,2),4)}, v{BA} offset:{ks*1024}",
                f"ds_read_b64_tr_b16 {vr(fr(s_,0),2)}, v{WA} offset:{ks*2048}",
                f"ds_read_b64_tr_b16 {vr(fr(s_,0)+2,2)}, v{WA} offset:{ks*2048+1024}",
                f"ds_read_b64_tr_b16 {vr(fr(s_,1),2)}, v{WB} offset:{ks*2048}",
                f"ds_read_b64_tr_b16 {vr(fr(s_,1)+2,2)}, v{WB} offset:{ks*2048+1024}"]
    def mfmas(s_, ks=0):
        if "nomf" in EXP: return ["s_nop 0", "s_nop 0"]
        return [mfma32(acc(0), fr(s_, 0), fr(s_, 2)), mfma32(acc(1), fr(s_, 1), fr(s_, 2))]
    def rd_adv():
        return [f"s_add_u32 s51, s51, {STG}", f"s_cmp_ge_u32 s51, {NST*STG}", "s_cselect_b32 s51, 0, s51",
                f"v_add_u32 v{WA}, s51, v{WA0}", f"v_add_u32 v{WB}, s51, v{WB0}", f"v_add_u32 v{BA}, s51, v{BA0}"]
    P += stamp(1)
    if "k3old" in EXP:
        pre, ktext, ktrace = kloop(N, 16, NST, 6, dma, dma_adv, reads, mfmas, rd_adv, 52, mid=(YL if ("yearly" not in EXP and "ylate" not in EXP) else []))
    else:
        def reads2(s_):
            o = []
            for ks in range(4):
                o += [f"ds_read_b128 {vr(fr2(s_,ks,2),4)}, v{BA} offset:{ks*1024}",
                      f"ds_read_b64_tr_b16 {vr(fr2(s_,ks,0),2)}, v{WA} offset:{ks*2048}",
                      f"ds_read_b64_tr_b16 {vr(fr2(s_,ks,0)+2,2)}, v{WA} offset:{ks*2048+1024}",
                      f"ds_read_b64_tr_b16 {vr(fr2(s_,ks,1),2)}, v{WB} offset:{ks*2048}",
                      f"ds_read_b64_tr_b16 {vr(fr2(s_,ks,1)+2,2)}, v{WB} offset:{ks*2048+1024}"]
            return o
        def mfmas2(s_):
            o = []
            for ks in range(4):
                o += [mfma32(acc(0), fr2(s_, ks, 0), fr2(s_, ks, 2)), mfma32(acc(1), fr2(s_, ks, 1), fr2(s_, ks, 2))]
            return o
        pre = [f"s_waitcnt vmcnt({6*(NST-1)})", "s_barrier"] + reads2(0) + rd_adv() + ["s_mov_b32 s52, 0"]
        def it(s_, do_dma, allowed, last, extra=[]):
            o = [f"s_waitcnt vmcnt({allowed}) lgkmcnt(0)"]
            if not last: o += ["s_barrier"]
            fill = (mix(reads2(1 - s_), dma() if do_dma else []) + (dma_adv() if do_dma else []) + rd_adv()) if not last else []
            return o + extra + spread(mfmas2(s_), fill)
        nmain = 16 - NST
        assert nmain % 2 == 0
        Bm = it(0, True, 6 * (NST - 2), False) + it(1, True, 6 * (NST - 2), False)
        tl = [f"s_add_u32 s52, s52, 1", f"s_cmp_lt_u32 s52, {nmain//2}", f"s_cbranch_scc1 {N}_loop"]
        rest = []
        for tt_ in range(nmain, 16):
            allowed = max(0, 15 - (tt_ + 1)) * 6 + (9 if tt_ > nmain else 0)
            rest += it(tt_ & 1, False, allowed, tt_ == 15, YL if tt_ == nmain else [])
        ktext = [f"{N}_loop:"] + Bm + tl + rest
        ktrace = Bm + tl + Bm + tl + rest
    E = ["s_nop 15", "s_waitcnt vmcnt(0)"] + stamp(2)
    E += [f"v_sub_f32 v20, 1.0, v{VG}", "v_cvt_pk_bf16_f32 v20, v20, v20", "v_lshlrev_b32 v20, 16, v20"]
    pk = 32
    for i in range(2):
        a = acc(i)
        for r in range(16): E += [f"v_mul_f32 v{a+r}, v20, v{a+r}"]
        for r in range(8):
            y1 = Y + (i * 2) * 8 + r; y2 = Y + (i * 2 + 1) * 8 + r
            E += [f"v_lshlrev_b32 v{T0}, 16, v{y1}", f"v_lshlrev_b32 v{T1}, 16, v{y2}", f"v_sub_f32 v{T0}, v{T0}, v{T1}",
                  f"v_and_b32 v{T2}, 0xffff0000, v{y1}", f"v_and_b32 v{T3}, 0xffff0000, v{y2}", f"v_sub_f32 v{T2}, v{T2}, v{T3}",
                  f"v_fmac_f32 v{a+2*r}, v{VG}, v{T0}", f"v_fmac_f32 v{a+2*r+1}, v{VG}, v{T2}",
                  f"v_cvt_pk_bf16_f32 v{pk+r}, v{a+2*r}, v{a+2*r+1}"]
        E += ["s_nop 1"]
        for t in range(2):
            E += [f"v_permlane32_swap_b32 v{pk+4*t}, v{pk+4*t+2}", f"v_permlane32_swap_b32 v{pk+4*t+1}, v{pk+4*t+3}"]
        for t in range(2):
            E += [f"buffer_store_dwordx4 {vr(pk+4*t,4)}, v{VO}, s[12:15], 0 offen offset:{i*64+t*32}"]
        pk += 8
    E += stamp(3) + ["s_waitcnt vmcnt(0)"] * STAMPS + stamp(4) + stamp_dump(8, 9, 3)
    E += [f"{N}_done:", "s_endpgm"]
    text = header(N) + P + pre + ktext + E
    errs = check_trace(P + pre + ktrace + E, N)
    return N, text, desc(N, 224), errs, (256, 256, NST * STG)

def build(kernels, path):
    hdr = open("gated_mix__spectral_fnet__softmax_full_mha__prompt.s.ref").read().split("; Override launch")[0]
    out = hdr
    for (N, text, d, errs, (g, b, lds)) in kernels:
        out += f"; @launch kernel={N} grid=({g},1,1) block=({b},1,1) lds={lds}\n"
    out += '.amdgcn_target "amdgcn-amd-amdhsa--gfx950"\n.text\n'
    seen = set()
    for (N, text, d, errs, _) in kernels:
        if N in seen: continue
        seen.add(N)
        for e in errs: print("HAZARD", e)
        for l in text:
            out += (l if (l.endswith(":") or l.startswith(".")) else "    " + l) + "\n"
    out += '.section .rodata,"a"\n'
    seen = set()
    for (N, text, d, errs, _) in kernels:
        if N in seen: continue
        seen.add(N)
        out += d
    if "st_plain" not in EXP and not any(e.startswith("st_") for e in EXP): EXP.add("st_nt"); EXP.add("sto_nt")
    for fl in ("sc1", "sc0 sc1", "nt", "sc0"):
        if "st_" + fl.replace(" ", "_") in EXP:
            import re as _re
            out = _re.sub(r"(buffer_store_dwordx[24] [^\n]*s\[24:27\][^\n]*)", lambda m: m.group(1) + " " + fl, out)
    for fl in ("sc1", "nt"):
        if "sto_" + fl in EXP:
            import re as _re
            out = _re.sub(r"(buffer_store_dwordx[24] [^\n]*s\[12:15\][^\n]*)", lambda m: m.group(1) + " " + fl, out)
    open(path, "w").write(out)

if __name__ == "__main__":
    if len(sys.argv) > 2 and sys.argv[2] == "stamps": STAMPS = True
    for a in sys.argv[3:]: EXP.add(a)
    ks = [gen_proj(), gen_mix(), gen_out()]
    build(ks, sys.argv[1] if len(sys.argv) > 1 else "k.s")
```

```python
import sys, struct
from asmlib import *

MB = 1 << 20
WS_AT, WS_BT, WS_Q, WS_K, WS_V, WS_O, WS_Y1, WS_Y2, WS_G = [i * 4 * MB for i in range(9)]
WS_SIZE = 40 * MB
LOG2E = 1.4426950408889634
QSCALE = (32 ** -0.5) * LOG2E

def f32bits(x):
    return struct.unpack("<I", struct.pack("<f", x))[0]

def srd(base, lo, hi, size):
    return [f"s_mov_b32 s{base}, s{lo}", f"s_mov_b32 s{base+1}, s{hi}",
            f"s_mov_b32 s{base+2}, {size}", f"s_mov_b32 s{base+3}, 0x00020000"]

def desc(name, nv, ns=102):
    acc = (nv + 3) // 4 * 4
    return f"""
.p2align 6
.amdhsa_kernel {name}
  .amdhsa_next_free_vgpr {nv}
  .amdhsa_next_free_sgpr {ns}
  .amdhsa_accum_offset {acc}
  .amdhsa_group_segment_fixed_size 0
  .amdhsa_kernarg_size 96
  .amdhsa_user_sgpr_count 2
  .amdhsa_user_sgpr_kernarg_segment_ptr 1
  .amdhsa_system_sgpr_workgroup_id_x 1
.end_amdhsa_kernel
"""

def mfma32(d, a, b, c=None):
    cs = vr(d, 16) if c is None else (str(c) if isinstance(c, str) else vr(c, 16))
    return f"v_mfma_f32_32x32x16_bf16 {vr(d,16)}, {vr(a,4)}, {vr(b,4)}, {cs}"
def mfma16(d, a, b):
    return f"v_mfma_f32_16x16x32_bf16 {vr(d,4)}, {vr(a,4)}, {vr(b,4)}, {vr(d,4)}"

STAMPS = False
EXP = set()
def stamp(i):
    if not STAMPS: return []
    return ([f"s_memrealtime s[68:69]"] if i == 0 else [f"s_memrealtime s[100:101]"]) + [f"s_memtime s[{70+2*i}:{71+2*i}]", "s_waitcnt lgkmcnt(0)"] + ([] if i == 0 else [f"s_sub_u32 s{71+2*i}, s100, s68"])
def stamp_dump(n, wgsel=0, slot=0, dbgoff=0):
    if not STAMPS: return []
    o = ["s_load_dwordx2 s[90:91], s[0:1], 80", "s_waitcnt lgkmcnt(0)",
         "s_mov_b32 s92, s90", "s_mov_b32 s93, s91", "s_mov_b32 s94, 256", "s_mov_b32 s95, 0x00020000",
         "s_mov_b64 exec, 1", f"s_mov_b32 s96, {dbgoff}", "s_cmp_lg_u32 s3, 0", "s_cselect_b32 s96, 0x1000, s96"]
    o += [f"s_cmp_lg_u32 s2, {wgsel}", "s_cselect_b32 s96, 0x1000, s96"]
    o += ["s_memrealtime s[98:99]", "s_load_dwordx2 s[60:61], s[0:1], 88", "s_waitcnt lgkmcnt(0)",
          "s_mov_b32 s62, 0x10000000", "s_mov_b32 s63, 0x00020000",
          "s_lshl_b32 s97, s2, 4", f"s_add_u32 s97, s97, {64*MB + slot*65536}",
          "v_mov_b32 v4, s68", "v_mov_b32 v5, s69", "v_mov_b32 v6, s98", "v_mov_b32 v7, s99", "v_mov_b32 v2, 0",
          "buffer_store_dwordx4 v[4:7], v2, s[60:63], s97 offen"]
    for i in range(n):
        o += [f"s_sub_u32 s97, s{70+2*i}, s70", "v_mov_b32 v1, s97", f"v_mov_b32 v2, {4*i}",
              "buffer_store_dword v1, v2, s[92:95], s96 offen"]
    o += ["s_cmp_lg_u32 s3, 0", "s_cselect_b32 s96, 0x1000, s96"]
    for i in range(1, n):
        o += [f"v_mov_b32 v1, s{71+2*i}", f"v_mov_b32 v2, {4*i + 32}", "buffer_store_dword v1, v2, s[92:95], s96 offen"]
    return o

def header(name):
    return [f".globl {name}", ".p2align 8", f".type {name},@function", f"{name}:"]

def gen_proj():
    N = "proj_kernel"
    STG = 53248
    L_HR, L_HI, L_W = 32768, 36864, 40960
    ACC = 96
    def acc(b, c): return ACC + (b * 5 + c) * 16
    def fr(s, i): return 32 + s * 28 + i * 4
    VX = list(range(1, 9)); VH = 9; VW = [10, 88, 89]
    XA0 = [11, 12, 13, 14]; HA0 = [15, 16, 17, 18]; WA0 = 19
    XA = [20, 21, 22, 23]; HA = [24, 25, 26, 27]; WA = 28
    VL16 = 29
    VG = 90
    T0, T1, T2, T3 = 30, 31, 92, 93
    P = []
    P += [f"s_cmp_ge_u32 s2, 256", f"s_cbranch_scc1 {N}_done"]
    P += stamp(0)
    P += ["s_load_dwordx2 s[4:5], s[0:1], 0", "s_load_dwordx4 s[32:35], s[0:1], 24",
          "s_load_dwordx2 s[36:37], s[0:1], 48",
          "s_load_dwordx2 s[40:41], s[0:1], 88"]
    P += ["v_lshrrev_b32 v1, 6, v0", "v_and_b32 v0, 63, v0", "v_readfirstlane_b32 s3, v1"]
    P += ["s_and_b32 s42, s2, 7", "s_lshr_b32 s43, s2, 3",
          "s_and_b32 s44, s42, 1", "s_lshl_b32 s44, s44, 2", "s_and_b32 s45, s43, 3", "s_add_u32 s44, s44, s45",
          "s_lshr_b32 s42, s42, 1", "s_lshl_b32 s42, s42, 3", "s_lshr_b32 s43, s43, 2", "s_add_u32 s43, s43, s42"]
    P += ["s_mov_b32 s42, s44"]
    P += ["s_lshl_b32 s44, s42, 8", "s_lshl_b32 s45, s3, 6", "s_add_u32 s44, s44, s45",
          "s_lshl_b32 s50, s3, 13", "s_lshl_b32 s51, s3, 10"]
    P += [f"v_lshrrev_b32 v{T0}, 3, v0", f"v_and_b32 v{T1}, 7, v0", f"v_lshrrev_b32 v{T2}, 4, v0",
          f"v_lshlrev_b32 v{VL16}, 4, v0"]
    P += [f"v_add_u32 v{T3}, s44, v{T0}", f"v_lshlrev_b32 v{T3}, 11, v{T3}",
          f"v_xor_b32 v{VX[0]}, v{T1}, v{T2}", f"v_lshlrev_b32 v{VX[0]}, 4, v{VX[0]}",
          f"v_add_u32 v{VX[0]}, v{VX[0]}, v{T3}"]
    for q in range(1, 8):
        if q % 2 == 1:
            P += [f"v_xor_b32 v{VX[q]}, 64, v{VX[0]}", f"v_add_u32 v{VX[q]}, {q*8*2048}, v{VX[q]}"]
        else:
            P += [f"v_add_u32 v{VX[q]}, {q*8*2048}, v{VX[0]}"]
    P += ["s_lshl_b32 s45, s43, 5", "s_lshl_b32 s46, s3, 3", "s_add_u32 s45, s45, s46",
          f"v_add_u32 v{T3}, s45, v{T0}", f"v_lshlrev_b32 v{T3}, 11, v{T3}",
          "s_lshl_b32 s46, s3, 2", f"v_add_u32 v{VH}, s46, v{T2}", f"v_and_b32 v{VH}, 7, v{VH}",
          f"v_xor_b32 v{VH}, v{VH}, v{T1}", f"v_lshlrev_b32 v{VH}, 4, v{VH}", f"v_add_u32 v{VH}, v{VH}, v{T3}"]
    P += [f"v_lshrrev_b32 v{T3}, 2, v0", "s_lshl_b32 s46, s3, 4", f"v_add_u32 v{T3}, s46, v{T3}",
          "s_movk_i32 s46, 6144", f"v_mul_lo_u32 v{T3}, v{T3}, s46",
          f"v_and_b32 v{VW[0]}, 3, v0", f"v_lshlrev_b32 v{VW[0]}, 4, v{VW[0]}", f"v_add_u32 v{VW[0]}, v{VW[0]}, v{T3}",
          "s_lshl_b32 s46, s43, 6", f"v_add_u32 v{VW[0]}, s46, v{VW[0]}",
          f"v_add_u32 v{VW[1]}, 2048, v{VW[0]}", f"v_add_u32 v{VW[2]}, 4096, v{VW[0]}"]
    P += ["s_waitcnt lgkmcnt(0)"]
    P += srd(8, 4, 5, 4 * MB) + srd(12, 32, 33, 2 * MB) + srd(16, 34, 35, 2 * MB) + srd(20, 36, 37, 6 * MB)
    def dma():
        out = []
        for q in range(8):
            out.append([f"s_add_u32 m0, s53, {1024*q}", f"buffer_load_dwordx4 v{VX[q]}, s[8:11], s45 offen lds"])
        out.append([f"s_add_u32 m0, s54, {L_HR}", f"buffer_load_dwordx4 v{VH}, s[12:15], s45 offen lds"])
        out.append([f"s_add_u32 m0, s54, {L_HI}", f"buffer_load_dwordx4 v{VH}, s[16:19], s45 offen lds"])
        for c in range(3):
            out.append([f"s_add_u32 m0, s54, {L_W + 4096*c}", f"buffer_load_dwordx4 v{VW[c]}, s[20:23], s46 offen lds"])
        return out
    def dma_adv():
        return ["s_add_u32 s47, s47, %d" % STG, "s_cmp_ge_u32 s47, %d" % (3 * STG), "s_cselect_b32 s47, 0, s47",
                "s_add_u32 s53, s47, s50", "s_add_u32 s54, s47, s51",
                "s_add_u32 s45, s45, 128", "s_and_b32 s45, s45, 0x7ff", "s_mul_i32 s46, s45, 3072"]
    P += ["s_mov_b32 s47, 0", "s_mov_b32 s45, 0", "s_mov_b32 s46, 0", "s_mov_b32 s53, s50", "s_mov_b32 s54, s51"]
    for a_, b_ in dma():
        P += [a_, "s_nop 0", b_]
    P += dma_adv()
    P += stamp(1)
    F = []
    F += srd(24, 40, 41, WS_SIZE)
    F += [f"v_lshrrev_b32 v{T0}, 5, v0", f"v_lshrrev_b32 v{T1}, 1, v0", f"v_and_b32 v{T1}, 7, v{T1}",
          f"v_xor_b32 v{T0}, v{T0}, v{T1}",
          f"v_and_b32 v{T1}, 31, v0", f"v_lshlrev_b32 v{T1}, 7, v{T1}"]
    for ks in range(4):
        F += [f"v_xor_b32 v{T2}, {2*ks}, v{T0}", f"v_lshlrev_b32 v{T2}, 4, v{T2}", f"v_add_u32 v{T2}, v{T2}, v{T1}",
              f"v_add_u32 v{XA0[ks]}, s50, v{T2}", f"v_add_u32 v{HA0[ks]}, {L_HR}, v{T2}"]
    F += [f"v_lshrrev_b32 v{T0}, 5, v0", f"v_lshlrev_b32 v{T0}, 3, v{T0}", f"v_bfe_u32 v{T1}, v0, 2, 2",
          f"v_add_u32 v{T0}, v{T0}, v{T1}", f"v_lshlrev_b32 v{T0}, 6, v{T0}",
          f"v_bfe_u32 v{T1}, v0, 4, 1", f"v_lshlrev_b32 v{T1}, 5, v{T1}", f"v_add_u32 v{T0}, v{T0}, v{T1}",
          f"v_and_b32 v{T1}, 3, v0", f"v_lshlrev_b32 v{T1}, 3, v{T1}", f"v_add_u32 v{T0}, v{T0}, v{T1}",
          f"v_add_u32 v{WA0}, {L_W}, v{T0}"]
    for i in range(4):
        F += [f"v_mov_b32 v{XA[i]}, v{XA0[i]}", f"v_mov_b32 v{HA[i]}, v{HA0[i]}"]
    F += [f"v_mov_b32 v{WA}, v{WA0}", "s_mov_b32 s48, 0", "s_mov_b32 s49, 0"]
    for r in range(ACC, ACC + 160):
        F += [f"v_mov_b32 v{r}, 0"]
    d1 = dma()
    per = (len(F) + len(d1) - 1) // len(d1)
    for i, (a_, b_) in enumerate(d1):
        chunk = F[i * per:(i + 1) * per]
        P += [a_] + chunk[:1] + [b_] + chunk[1:]
    P += dma_adv()
    def reads(s, ks):
        return [f"ds_read_b128 {vr(fr(s,0),4)}, v{XA[ks]}",
                f"ds_read_b128 {vr(fr(s,2),4)}, v{HA[ks]}",
                f"ds_read_b128 {vr(fr(s,3),4)}, v{HA[ks]} offset:4096",
                f"ds_read_b64_tr_b16 {vr(fr(s,4),2)}, v{WA} offset:{ks*1024}",
                f"ds_read_b64_tr_b16 {vr(fr(s,4)+2,2)}, v{WA} offset:{ks*1024+256}",
                f"ds_read_b64_tr_b16 {vr(fr(s,5),2)}, v{WA} offset:{4096+ks*1024}",
                f"ds_read_b64_tr_b16 {vr(fr(s,5)+2,2)}, v{WA} offset:{4096+ks*1024+256}",
                f"ds_read_b64_tr_b16 {vr(fr(s,6),2)}, v{WA} offset:{8192+ks*1024}",
                f"ds_read_b64_tr_b16 {vr(fr(s,6)+2,2)}, v{WA} offset:{8192+ks*1024+256}",
                f"ds_read_b128 {vr(fr(s,1),4)}, v{XA[ks]} offset:4096"]
    def mfmas(s):
        out = []
        for b in range(2):
            X = fr(s, b)
            if "p16" in EXP:
                for c in range(5):
                    out += [mfma16(acc(b, c) + 8 * s, X, fr(s, 2 + c)), mfma16(acc(b, c) + 8 * s + 4, X, fr(s, 2 + c))]
                continue
            out += [mfma32(acc(b, 0), X, fr(s, 2)), mfma32(acc(b, 1), X, fr(s, 3)),
                    mfma32(acc(b, 2), fr(s, 4), X), mfma32(acc(b, 3), fr(s, 5), X),
                    mfma32(acc(b, 4), X, fr(s, 6))]
        return out
    def rd_adv():
        o = ["s_add_u32 s48, s48, %d" % STG, "s_cmp_ge_u32 s48, %d" % (3 * STG), "s_cselect_b32 s48, 0, s48"]
        for i in range(4):
            o += [f"v_add_u32 v{XA[i]}, s48, v{XA0[i]}", f"v_add_u32 v{HA[i]}, s48, v{HA0[i]}"]
        o += [f"v_add_u32 v{WA}, s48, v{WA0}"]
        return o
    P += stamp(2) + stamp(3)
    P += ["s_waitcnt vmcnt(13)", "s_barrier"] + stamp(4) + reads(0, 0)
    def body(do_dma, last):
        o = []
        d = dma() if do_dma else []
        def mix(rd, dd):
            out = []
            for i, r in enumerate(rd):
                if i < len(dd): out += [dd[i][0], r, dd[i][1]]
                else: out += [r]
            return out
        def mix2(rd, dd):
            out = []; di = 0
            for i, r in enumerate(rd):
                if i % 2 == 1 and di < len(dd): out += [dd[di][0], r, dd[di][1]]; di += 1
                else: out += [r]
            assert di == len(dd)
            return out
        if "k1d3" in EXP:
            o += ["s_waitcnt lgkmcnt(0)"]
            o += spread(mfmas(0), mix2(reads(1, 1), d[:5]))
            o += ["s_waitcnt lgkmcnt(0)"]
            o += spread(mfmas(1), mix2(reads(0, 2), d[5:9]))
            o += ["s_waitcnt lgkmcnt(0)"]
            o += spread(mfmas(0), mix2(reads(1, 3), d[9:]) + (dma_adv() if do_dma else []) + ([] if last else rd_adv()))
        else:
            o += ["s_waitcnt lgkmcnt(0)"]
            o += spread(mfmas(0), mix(reads(1, 1), d[:7]))
            o += ["s_waitcnt lgkmcnt(0)"]
            o += spread(mfmas(1), mix(reads(0, 2), d[7:]) + (dma_adv() if do_dma else []))
            o += ["s_waitcnt lgkmcnt(0)"]
            o += spread(mfmas(0), reads(1, 3) + ([] if last else rd_adv()))
        o += ["s_waitcnt lgkmcnt(0)"]
        m = mfmas(1)
        if last:
            o += m
        else:
            np_ = 1 if "k1n1" in EXP else (3 if "k1n3" in EXP else 2)
            o += m[:np_] + [f"s_waitcnt vmcnt({13 if do_dma else 0})", "s_barrier"] + spread(m[np_:], reads(0, 0))
        return o
    B = body(True, False)
    loop_tail = ["s_add_u32 s49, s49, 1", "s_cmp_lt_u32 s49, 14", f"s_cbranch_scc1 {N}_loop"]
    B14 = body(False, False)
    B15 = body(False, True)
    def blk_epi(b, c, pk, sreg):
        a = acc(b, c); o = []
        if c == 2:
            for r in range(16): o += [f"v_mul_f32 v{a+r}, s57, v{a+r}"]
        for r in range(8):
            src = r if (c != 4 or "a32" in EXP) else [0, 1, 4, 5, 2, 3, 6, 7][r]
            o += [f"v_cvt_pk_bf16_f32 v{pk+r}, v{a+2*src}, v{a+2*src+1}"]
        if c < 2:
            o += ["s_nop 1"]
            for t in range(2):
                o += [f"v_permlane32_swap_b32 v{pk+4*t}, v{pk+4*t+2}", f"v_permlane32_swap_b32 v{pk+4*t+1}, v{pk+4*t+3}"]
        for t in range(2):
            o += [f"buffer_store_dwordx4 {vr(pk+4*t,4)}, v{VL16}, s[24:27], s{sreg} offen offset:{(2*b+t)*1024}"]
        return o
    ADDR = ["s_lshl_b32 s45, s43, 17", "s_lshl_b32 s46, s42, 14", "s_add_u32 s45, s45, s46",
            "s_lshl_b32 s46, s3, 12", "s_add_u32 s45, s45, s46", f"s_mov_b32 s57, {hex(f32bits(QSCALE))}", "s_mov_b32 s46, s45"]
    if "newlast" in EXP:
        def reads1(s_, ks, rb):
            r = reads(s_, ks)
            return [f"ds_read_b128 {vr(fr(s_,rb),4)}, v{XA[ks]} offset:{4096*rb}"] + r[1:9]
        def mf1(s_, rb): return mfmas(s_)[5 * rb:5 * rb + 5]
        epi0 = []
        for c in range(5):
            epi0 += blk_epi(0, c, 2 + 8 * (c & 1), 45) + [f"s_add_u32 s45, s45, {4*MB}"]
        B15 = []
        for p in range(2):
            for ks in range(4):
                st = (p * 4 + ks) & 1
                B15 += ["s_waitcnt lgkmcnt(0)"]
                nxt = reads1(1 - st, ks + 1, p) if ks < 3 else (reads1(1 - st, 0, 1) if p == 0 else [])
                fill = list(nxt)
                if p == 0 and ks == 0: fill += ADDR
                if p == 1:
                    n = len(epi0)
                    lo = [0, 0, n // 3, 2 * n // 3][ks] if ks > 0 else 0
                    hi = [0, n // 3, 2 * n // 3, n][ks]
                    fill += epi0[lo:hi]
                B15 += spread(mf1(st, p), fill)
        E = stamp(5) + ["s_nop 11"]
        pk = 32
        for c in range(5):
            E += blk_epi(1, c, pk, 46) + [f"s_add_u32 s46, s46, {4*MB}"]
            pk = 32 + (pk - 32 + 8) % 56
    else:
        E = stamp(5) + ["s_nop 7"] + ADDR
        pk = 32
        for c in range(5):
            for b in range(2):
                E += blk_epi(b, c, pk, 45)
                pk = 32 + (pk - 32 + 8) % 56
            E += [f"s_add_u32 s45, s45, {4*MB}"]
    E += stamp(6) + ["s_waitcnt vmcnt(0)"] * STAMPS + stamp(7) + stamp_dump(8, 9)
    E += [f"{N}_done:", "s_endpgm"]
    text = header(N) + P + [f"{N}_loop:"] + B + loop_tail + B14 + B15 + E
    trace = P + B + loop_tail + B + loop_tail + B14 + B15 + E
    errs = check_trace(trace, N)
    return N, text, desc(N, 256), errs, (256, 256, 3 * STG)


ATT_OFF = 40.0
ATT_LMAX = 2.0 ** 60
def gen_attn(merged=False):
    N = "attn_kernel" if not merged else "mix_kernel_a"
    NST = 4; STG = 8192
    Q = {"A": 16, "B": 24}
    S = {"A": 32, "B": 48}
    Pk = {"A": 64, "B": 72}
    O = {"A": 80, "B": 96}
    L = {"A": 112, "B": 116}
    CN = {"A": 120, "B": 136}
    KF = [152, 160]
    VF = [168, 176]
    ONES = 184
    VL16 = 1; VRD = 2; VG = {"A": 3, "B": 4}; T0, T1, T2, T3 = 5, 6, 7, 8
    P = []
    if not merged:
        P += ["s_cmp_ge_u32 s2, 256", f"s_cbranch_scc1 {N}_done"]
        P += ["v_lshrrev_b32 v1, 6, v0", "v_and_b32 v0, 63, v0", "v_readfirstlane_b32 s3, v1"]
    P += stamp(0)
    P += ["s_load_dwordx2 s[40:41], s[0:1], 88", "s_load_dwordx2 s[4:5], s[0:1], 0", "s_load_dwordx2 s[38:39], s[0:1], 64"]
    P += ["s_and_b32 s42, s2, 7", "s_lshr_b32 s43, s2, 3", "s_lshl_b32 s42, s42, 2", "s_lshr_b32 s44, s43, 3",
          "s_add_u32 s42, s42, s44",
          "s_and_b32 s43, s43, 7",
          "s_lshl_b32 s43, s43, 3", "s_lshl_b32 s44, s3, 1", "s_add_u32 s43, s43, s44",
          "s_lshl_b32 s44, s42, 17"]
    P += [f"v_lshlrev_b32 v{VL16}, 4, v0"]
    P += ["s_waitcnt lgkmcnt(0)"] + srd(24, 40, 41, WS_SIZE) + srd(8, 4, 5, 4 * MB) + srd(28, 38, 39, 2048)
    P += ["s_lshl_b32 s45, s43, 11", "s_add_u32 s45, s45, s44", f"s_add_u32 s45, s45, {WS_Q}",
          f"s_add_u32 s46, s44, {WS_K}", f"s_add_u32 s47, s44, {WS_V}"]
    if "rot" in EXP: P += ["s_bfe_u32 s58, s2, 0x30003", "s_lshl_b32 s58, s58, 14"]
    else: P += ["s_mov_b32 s58, 0"]
    P += ["s_add_u32 s59, s46, s58"]
    for i in range(4):
        P += [f"buffer_load_dwordx4 {vr(16+4*i,4)}, v{VL16}, s[24:27], s45 offen offset:{1024*i}"]
    for i in range(4):
        P += [f"buffer_load_dwordx4 {vr(KF[0]+4*i,4)}, v{VL16}, s[24:27], s59 offen offset:{1024*i}"]
    P += ["s_lshl_b32 s51, s3, 10", "s_add_u32 s61, s58, s51", "s_add_u32 s60, s61, 2048", "s_and_b32 s60, s60, 0x1ffff",
          "s_add_u32 s48, s46, s60", "s_add_u32 s49, s47, s61", "s_mov_b32 s50, s51"]
    def dma():
        return [["s_mov_b32 m0, s50", f"buffer_load_dwordx4 v{VL16}, s[24:27], s48 offen lds"],
                ["s_add_u32 m0, s50, 4096", f"buffer_load_dwordx4 v{VL16}, s[24:27], s49 offen lds"]]
    def dma_adv():
        return ["s_add_u32 s60, s60, 4096", "s_and_b32 s60, s60, 0x1ffff", "s_add_u32 s61, s61, 4096", "s_and_b32 s61, s61, 0x1ffff",
                "s_add_u32 s48, s46, s60", "s_add_u32 s49, s47, s61", f"s_add_u32 s50, s50, {STG}",
                f"s_and_b32 s50, s50, {NST*STG-1}"]
    for t in range(NST - 1):
        for a, b in dma(): P += [a, "s_nop 0", b]
        P += dma_adv()
    GX = 192
    P += ["s_lshl_b32 s62, s2, 3", "s_lshl_b32 s45, s3, 1", "s_add_u32 s62, s62, s45", "s_lshl_b32 s45, s62, 11",
          f"v_lshlrev_b32 v{T0}, 5, v0"]
    P += [f"buffer_load_dwordx4 v[{GX}:{GX+3}], v{T0}, s[8:11], s45 offen",
          f"buffer_load_dwordx4 v[{GX+4}:{GX+7}], v{T0}, s[8:11], s45 offen offset:16",
          f"buffer_load_dwordx4 v[{GX+8}:{GX+11}], v{T0}, s[8:11], s45 offen offset:2048",
          f"buffer_load_dwordx4 v[{GX+12}:{GX+15}], v{T0}, s[8:11], s45 offen offset:2064",
          f"buffer_load_dwordx4 v[{GX+16}:{GX+19}], v{T0}, s[28:31], 0 offen",
          f"buffer_load_dwordx4 v[{GX+20}:{GX+23}], v{T0}, s[28:31], 0 offen offset:16"]
    for r in list(range(80, 120)) + list(range(Pk["B"], Pk["B"] + 8)) + list(range(VF[0], VF[0] + 16)):
        P += [f"v_mov_b32 v{r}, 0"]
    P += [f"v_bfe_u32 v{T0}, v0, 2, 1", f"v_bfe_u32 v{T1}, v0, 4, 1", f"v_cmp_eq_u32 vcc, v{T0}, v{T1}",
          f"v_mov_b32 v{T2}, 0x3f803f80", "s_nop 0", f"v_cndmask_b32 v{ONES}, 0, v{T2}, vcc"]
    for i in range(1, 4): P += [f"v_mov_b32 v{ONES+i}, v{ONES}"]
    P += [f"v_mov_b32 v{VRD}, v{VL16}", "s_mov_b32 s52, 0", "s_mov_b32 s53, 0", "s_mov_b32 s63, 0x3f803f80"]
    P += [f"s_waitcnt vmcnt({2*(NST-1)+6})"]
    for X in "AB":
        P += [mfma32(S[X], KF[0], Q[X], "0"), mfma32(S[X], KF[0] + 4, Q[X] + 4),
              mfma32(CN[X], KF[1], Q[X], "0"), mfma32(CN[X], KF[1] + 4, Q[X] + 4)]
    P += ["s_nop 15"]
    for X in "AB":
        m = T0 if X == "A" else T1
        P += [f"v_max3_f32 v{m}, v{S[X]}, v{S[X]+1}, v{S[X]+2}"]
        vals = [S[X] + i for i in range(3, 16)] + [CN[X] + i for i in range(16)]
        for i in range(0, 28, 2):
            P += [f"v_max3_f32 v{m}, v{m}, v{vals[i]}, v{vals[i+1]}"]
        P += [f"v_max_f32 v{m}, v{m}, v{vals[28]}"]
    P += [f"v_mov_b32 v{T2}, v{T0}", f"v_mov_b32 v{T3}, v{T1}", "s_nop 1",
          f"v_permlane32_swap_b32 v{T0}, v{T2}", f"v_permlane32_swap_b32 v{T1}, v{T3}",
          f"v_max_f32 v{T0}, v{T0}, v{T2}", f"v_max_f32 v{T1}, v{T1}, v{T3}",
          f"s_mov_b32 s54, {hex(f32bits(-ATT_OFF))}",
          f"v_sub_f32 v{T0}, s54, v{T0}", f"v_sub_f32 v{T1}, s54, v{T1}"]
    for i in range(16):
        P += [f"v_mov_b32 v{CN['A']+i}, v{T0}", f"v_mov_b32 v{CN['B']+i}, v{T1}"]
    P += ["s_nop 1", mfma32(S["A"], KF[0], Q["A"], CN["A"]), mfma32(S["A"], KF[0] + 4, Q["A"] + 4)]
    P += stamp(1)
    def slot(X, kset_qk, vset_pv, rd):
        Y = "B" if X == "A" else "A"
        mf = [mfma32(S[Y], KF[kset_qk], Q[Y], CN[Y]), mfma32(S[Y], KF[kset_qk] + 4, Q[Y] + 4),
              mfma32(O[Y], VF[vset_pv], Pk[Y]), mfma16(L[Y], ONES, Pk[Y]),
              mfma32(O[Y], VF[vset_pv] + 4, Pk[Y] + 4), mfma16(L[Y], ONES, Pk[Y] + 4)]
        if "a16" in EXP:
            def two(d, a, b): return [mfma16(d, a, b), mfma16(d + 4, a, b)]
            def twoc(d, a, b, c): return [f"v_mfma_f32_16x16x32_bf16 {vr(d,4)}, {vr(a,4)}, {vr(b,4)}, {vr(c,4)}", f"v_mfma_f32_16x16x32_bf16 {vr(d+4,4)}, {vr(a,4)}, {vr(b+4,4)}, {vr(c,4)}"]
            mf = [twoc(S[Y], KF[kset_qk], Q[Y], CN[Y]), twoc(S[Y] + 8, KF[kset_qk] + 4, Q[Y], CN[Y]),
                  two(O[Y], VF[vset_pv], Pk[Y]), [mfma16(L[Y], ONES, Pk[Y])],
                  two(O[Y] + 8, VF[vset_pv] + 4, Pk[Y] + 4), [mfma16(L[Y], ONES, Pk[Y] + 4)]]
        e = [f"v_exp_f32 v{S[X]+i}, v{S[X]+i}" for i in range(16)]
        if "noexp" in EXP: e = [f"v_mov_b32 v{S[X]+i}, v{S[X]+i}" for i in range(16)]
        c = [f"v_cvt_pk_bf16_f32 v{Pk[X]+j}, v{S[X]+2*j}, v{S[X]+2*j+1}" for j in range(8)]
        va = e[0:3] + [c[0]] + e[3:5] + [c[1]] + e[5:7] + [c[2]] + e[7:9] + [c[3]] + e[9:11] + [c[4]] + e[11:13] + [c[5]] + e[13:16] + [c[6], c[7]]
        o = []
        if "ldot" in EXP:
            mf = [mf[0], mf[1], mf[2], mf[4]]
            dots = [f"v_dot2c_f32_bf16 v{L[Y]+(j%4)}, s63, v{Pk[Y]+j}" for j in range(8)]
            for i in range(4):
                o += [mf[i]]
                if i < 2: o += rd[2*i:2*i+2]
                o += va[6*i:6*i+3] + dots[2*i:2*i+1] + va[6*i+3:6*i+6] + dots[2*i+1:2*i+2]
            return o
        if "ladd" in EXP:
            mf = [mf[0], mf[1], mf[2], mf[4]]
            adds = [f"v_add_f32 v{L[X]+(i%4)}, v{L[X]+(i%4)}, v{S[X]+i}" for i in range(16)]
            va2 = []
            ai = 0
            for k_, ins in enumerate(va):
                va2.append(ins)
                if ins.startswith("v_cvt"):
                    va2 += adds[ai:ai+2]; ai += 2
            for i in range(4):
                o += [mf[i]]
                if i < 2: o += rd[2*i:2*i+2]
                o += va2[10*i:10*i+10]
            return o
        for i in range(6):
            if isinstance(mf[i], list):
                o += [mf[i][0]] + va[4*i:4*i+2]
                if len(mf[i]) > 1: o += [mf[i][1]]
                if i < 2: o += rd[2*i:2*i+2]
                o += va[4*i+2:4*i+4]
                continue
            o += [mf[i]]
            if i < 2: o += rd[2*i:2*i+2]
            o += va[4*i:4*i+4]
        return o
    def rds(kb_par, half):
        return [f"ds_read_b128 {vr(KF[1-kb_par],4)}, v{VRD} offset:{half*2048}",
                f"ds_read_b128 {vr(KF[1-kb_par]+4,4)}, v{VRD} offset:{half*2048+1024}",
                f"ds_read_b128 {vr(VF[kb_par],4)}, v{VRD} offset:{4096+half*2048}",
                f"ds_read_b128 {vr(VF[kb_par]+4,4)}, v{VRD} offset:{4096+half*2048+1024}"]
    B = [f"s_waitcnt vmcnt({2*(NST-2)})", "s_barrier"]
    d = dma()
    B += [d[0][0], "s_nop 0", d[0][1], d[1][0], "s_nop 0", d[1][1]] + dma_adv()
    B += slot("A", 0, 1, rds(0, 0))
    B += ["s_waitcnt lgkmcnt(0)"]
    B += slot("B", 1, 0, [])
    B += slot("A", 1, 0, rds(1, 1))
    B += ["s_waitcnt lgkmcnt(0)"]
    B += [f"s_add_u32 s53, s53, {STG}", f"s_and_b32 s53, s53, {NST*STG-1}", f"v_add_u32 v{VRD}, s53, v{VL16}"]
    B += slot("B", 0, 1, [])
    tail = ["s_add_u32 s52, s52, 1", "s_cmp_lt_u32 s52, 32", f"s_cbranch_scc1 {N}_loop"]
    E = stamp(2)
    if "ldot" in EXP:
        E += ["s_nop 1", mfma32(O["B"], VF[1], Pk["B"]), mfma32(O["B"], VF[1] + 4, Pk["B"] + 4)]
        E += [f"v_dot2c_f32_bf16 v{L['B']+(j%4)}, s63, v{Pk['B']+j}" for j in range(8)] + ["s_nop 3"]
        for X in "AB":
            E += [f"v_add_f32 v{L[X]}, v{L[X]}, v{L[X]+1}", f"v_add_f32 v{L[X]+2}, v{L[X]+2}, v{L[X]+3}", f"v_add_f32 v{L[X]}, v{L[X]}, v{L[X]+2}",
                  f"v_mov_b32 v{T1}, v{L[X]}", "s_nop 1", f"v_permlane32_swap_b32 v{L[X]}, v{T1}", f"v_add_f32 v{L[X]}, v{L[X]}, v{T1}"]
        E += ["s_nop 7"]
    else:
        E += ["s_nop 1", mfma32(O["B"], VF[1], Pk["B"]), mfma16(L["B"], ONES, Pk["B"]),
              mfma32(O["B"], VF[1] + 4, Pk["B"] + 4), mfma16(L["B"], ONES, Pk["B"] + 4), "s_nop 15"]
    E += [f"s_mov_b32 s54, {hex(f32bits(ATT_LMAX))}",
          f"v_cmp_gt_f32 vcc, s54, v{L['A']}", f"v_cmp_gt_f32 s[56:57], s54, v{L['B']}", "s_nop 1",
          "s_and_b64 vcc, vcc, s[56:57]", "s_cmp_eq_u64 vcc, exec", f"s_cbranch_scc0 {N}_fallback"]
    E2 = [f"{N}_final:"]
    E2 += ["s_lshl_b32 s45, s43, 16", "s_lshl_b32 s46, s42, 11", "s_add_u32 s45, s45, s46", f"s_add_u32 s45, s45, {WS_O}"]
    for X in "AB":
        E2 += [f"v_rcp_f32 v{T0}, v{L[X]}", "s_nop 0"]
        for i in range(16):
            E2 += [f"v_mul_f32 v{O[X]+i}, v{O[X]+i}, v{T0}"]
        for j in range(8):
            E2 += [f"v_cvt_pk_bf16_f32 v{S[X]+j}, v{O[X]+2*j}, v{O[X]+2*j+1}"]
        for t in range(2):
            E2 += [f"buffer_store_dwordx4 {vr(S[X]+4*t,4)}, v{VL16}, s[24:27], s45 offen offset:{1024*t}"]
        E2 += ["s_add_u32 s45, s45, 65536"]
    A0, A1 = 64, 65
    E2 += ["s_waitcnt vmcnt(4)", f"v_mov_b32 v{A0}, 0", f"v_mov_b32 v{A1}, 0"]
    for i in range(8):
        w = GX + 16 + i
        E2 += [f"v_lshlrev_b32 v66, 16, v{w}", f"v_and_b32 v67, 0xffff0000, v{w}"]
        for r, a in ((0, A0), (1, A1)):
            x = GX + 8 * r + i
            E2 += [f"v_lshlrev_b32 v68, 16, v{x}", f"v_and_b32 v69, 0xffff0000, v{x}",
                  "v_mul_f32 v68, v68, v66", "v_mul_f32 v69, v69, v67",
                  "v_cvt_pk_bf16_f32 v70, v68, v69",
                  "v_lshlrev_b32 v68, 16, v70", "v_and_b32 v69, 0xffff0000, v70",
                  f"v_add_f32 v{a}, v{a}, v68", f"v_add_f32 v{a}, v{a}, v69"]
    for off in (0x041F, 0x081F, 0x101F, 0x201F, 0x401F):
        E2 += [f"ds_swizzle_b32 v66, v{A0} offset:{off}", f"ds_swizzle_b32 v67, v{A1} offset:{off}",
              "s_waitcnt lgkmcnt(0)", f"v_add_f32 v{A0}, v{A0}, v66", f"v_add_f32 v{A1}, v{A1}, v67"]
    E2 += ["s_nop 0", f"v_readlane_b32 s55, v{A0}, 32", f"v_readlane_b32 s56, v{A1}, 32", "s_nop 1",
          f"v_add_f32 v{A0}, s55, v{A0}", f"v_add_f32 v{A1}, s56, v{A1}",
          "v_cmp_eq_u32 vcc, 1, v0", "s_nop 1", f"v_cndmask_b32 v{A0}, v{A0}, v{A1}, vcc",
          f"v_cvt_pk_bf16_f32 v{A0}, v{A0}, v{A0}", f"v_lshlrev_b32 v{A0}, 16, v{A0}",
          f"v_mul_f32 v{A0}, {hex(f32bits(-LOG2E))}, v{A0}", f"v_exp_f32 v{A0}, v{A0}", "s_nop 0",
          f"v_add_f32 v{A0}, 1.0, v{A0}", f"v_rcp_f32 v{A0}, v{A0}", "s_nop 0",
          f"v_cvt_pk_bf16_f32 v{A0}, v{A0}, v{A0}", f"v_lshlrev_b32 v{VG['A']}, 16, v{A0}"]
    E2 += [f"v_lshlrev_b32 v{T0}, 2, v0", "s_lshl_b32 s45, s62, 2", f"s_add_u32 s45, s45, {WS_G}",
           "v_cmp_gt_u32 vcc, 2, v0", "s_and_saveexec_b64 s[58:59], vcc",
           f"buffer_store_dword v{VG['A']}, v{T0}, s[24:27], s45 offen", "s_mov_b64 exec, s[58:59]"]
    E2 += stamp(3) + ["s_waitcnt vmcnt(0)"] + stamp(4) + stamp_dump(5, 9, 1)
    E2 += [f"{N}_done:", "s_endpgm"]
    F = [f"{N}_fallback:", "s_waitcnt vmcnt(0)"]
    M = {"A": 9, "B": 10}; AL = 11
    for X in "AB":
        F += [f"v_mov_b32 v{M[X]}, 0xff7fffff", f"v_mov_b32 v{L[X]}, 0"]
        for i in range(16): F += [f"v_mov_b32 v{O[X]+i}, 0"]
    F += [f"s_add_u32 s46, s44, {WS_K}", f"s_add_u32 s47, s44, {WS_V}", "s_mov_b32 s52, 0"]
    FB = []
    FB += [f"buffer_load_dwordx4 {vr(KF[0],4)}, v{VL16}, s[24:27], s46 offen",
           f"buffer_load_dwordx4 {vr(KF[0]+4,4)}, v{VL16}, s[24:27], s46 offen offset:1024",
           f"buffer_load_dwordx4 {vr(VF[0],4)}, v{VL16}, s[24:27], s47 offen",
           f"buffer_load_dwordx4 {vr(VF[0]+4,4)}, v{VL16}, s[24:27], s47 offen offset:1024",
           "s_waitcnt vmcnt(0)"]
    for X in "AB":
        FB += [mfma32(S[X], KF[0], Q[X], "0"), mfma32(S[X], KF[0] + 4, Q[X] + 4), "s_nop 15"]
        FB += [f"v_max3_f32 v{T0}, v{S[X]}, v{S[X]+1}, v{M[X]}"]
        for i in range(2, 16, 2): FB += [f"v_max3_f32 v{T0}, v{T0}, v{S[X]+i}, v{S[X]+i+1}"]
        FB += [f"v_mov_b32 v{T1}, v{T0}", "s_nop 1", f"v_permlane32_swap_b32 v{T0}, v{T1}", f"v_max_f32 v{T0}, v{T0}, v{T1}",
               f"v_sub_f32 v{AL}, v{M[X]}, v{T0}", f"v_exp_f32 v{AL}, v{AL}", f"v_mov_b32 v{M[X]}, v{T0}",
               f"v_mul_f32 v{L[X]}, v{L[X]}, v{AL}"]
        for i in range(16):
            FB += [f"v_sub_f32 v{S[X]+i}, v{S[X]+i}, v{T0}", f"v_exp_f32 v{S[X]+i}, v{S[X]+i}", f"v_mul_f32 v{O[X]+i}, v{O[X]+i}, v{AL}"]
        for j in range(8):
            FB += [f"v_cvt_pk_bf16_f32 v{Pk[X]+j}, v{S[X]+2*j}, v{S[X]+2*j+1}",
                   f"v_lshlrev_b32 v{T1}, 16, v{Pk[X]+j}", f"v_and_b32 v{T2}, 0xffff0000, v{Pk[X]+j}",
                   f"v_add_f32 v{L[X]}, v{L[X]}, v{T1}", f"v_add_f32 v{L[X]}, v{L[X]}, v{T2}"]
        FB += ["s_nop 1", mfma32(O[X], VF[0], Pk[X]), mfma32(O[X], VF[0] + 4, Pk[X] + 4)]
    FB += ["s_nop 15", "s_add_u32 s46, s46, 2048", "s_add_u32 s47, s47, 2048", "s_add_u32 s52, s52, 1", "s_cmp_lt_u32 s52, 64",
           f"s_cbranch_scc1 {N}_fbloop"]
    FE = []
    for X in "AB":
        FE += [f"v_mov_b32 v{T1}, v{L[X]}", "s_nop 1", f"v_permlane32_swap_b32 v{L[X]}, v{T1}", f"v_add_f32 v{L[X]}, v{L[X]}, v{T1}"]
    FE += [f"s_branch {N}_final"]
    text = (header(N) if not merged else []) + P + [f"{N}_loop:"] + B + tail + E + E2 + F + [f"{N}_fbloop:"] + FB + FE
    errs = check_trace(P + B + tail + B + tail + E + E2, N)
    errs += check_trace(P + B + tail + E + F + FB + FB + FE + E2, N + "_fb")
    return N, text, desc(N, 216), errs, (256, 256, NST * STG)


def mix(rd, dd):
    out = []
    for i, r in enumerate(rd):
        if i < len(dd): out += [dd[i][0], r, dd[i][1]] if dd[i][0] else [r, dd[i][1]]
        else: out += [r]
    for j in range(len(rd), len(dd)):
        out += ([dd[j][0], "s_nop 0"] if dd[j][0] else []) + [dd[j][1]]
    return out

def kloop(N, nkt, nst, ndma, dma, dma_adv, reads, mfmas, rd_adv, cnt_sreg, npre=1, late=0, mid=[]):
    pre = [f"s_waitcnt vmcnt({ndma*(nst-2-late)})", "s_barrier"] + reads(0, 0) + [f"s_mov_b32 s{cnt_sreg}, 0"]
    for i in range(late):
        pre += mix([], dma()) + dma_adv()
    def body(do_dma, last, inflight):
        o = []
        d = dma() if do_dma else []
        h = (len(d) + 1) // 2
        o += ["s_waitcnt lgkmcnt(0)"]
        o += spread(mfmas(0, 0), mix(reads(1, 1), d[:h]))
        o += ["s_waitcnt lgkmcnt(0)"]
        o += spread(mfmas(1, 1), mix(reads(0, 2), d[h:]) + (dma_adv() if do_dma else []))
        o += ["s_waitcnt lgkmcnt(0)"]
        o += spread(mfmas(0, 2), reads(1, 3) + ([] if last else rd_adv()))
        o += ["s_waitcnt lgkmcnt(0)"]
        m = mfmas(1, 3)
        if last:
            o += m
        else:
            o += m[:npre] + [f"s_waitcnt vmcnt({inflight*ndma})", "s_barrier"] + spread(m[npre:], reads(0, 0))
        return o
    nmain = nkt - (nst - 1)
    B = body(True, False, nst - 2)
    tail = [f"s_add_u32 s{cnt_sreg}, s{cnt_sreg}, 1", f"s_cmp_lt_u32 s{cnt_sreg}, {nmain}", f"s_cbranch_scc1 {N}_loop"]
    rest = []
    for i in range(nst - 1):
        last = (i == nst - 2)
        rest += body(False, last, nst - 3 - i if not last else 0)
    text = [f"{N}_loop:"] + B + tail + mid + rest
    trace = B + tail + B + tail + mid + rest
    return pre, text, trace

def gen_ygemm(merged=False):
    N = "ygemm_kernel" if not merged else "mix_kernel_y"
    NST = 4; STG = 32768; L_B = 16384
    LB0 = 32768 if merged else 0
    ACC = 64
    def acc(i, j): return ACC + (i * 2 + j) * 16
    def fr(s, i): return 32 + s * 16 + i * 4
    VL16 = 1; VB = [2, 3, 4, 5]; AA0 = 6; BA0 = [7, 8, 9, 10]; AA = 11; BA = [12, 13, 14, 15]
    T0, T1, T2, T3 = 16, 17, 18, 19
    P = []
    if not merged:
        P += ["s_cmp_ge_u32 s2, 256", f"s_cbranch_scc1 {N}_done"]
        P += ["v_lshrrev_b32 v1, 6, v0", "v_and_b32 v0, 63, v0", "v_readfirstlane_b32 s3, v1"]
    P += stamp(0)
    P += ["s_and_b32 s42, s2, 1",
          "s_load_dwordx4 s[4:7], s[0:1], 8", "s_load_dwordx2 s[40:41], s[0:1], 88"]
    P += ["s_bfe_u32 s44, s2, 0x10001", "s_lshl_b32 s44, s44, 2", "s_bfe_u32 s45, s2, 0x20003", "s_add_u32 s44, s44, s45",
          "s_bfe_u32 s45, s2, 0x10002", "s_lshl_b32 s45, s45, 3", "s_lshr_b32 s46, s2, 5", "s_add_u32 s45, s45, s46"]
    P += [f"v_lshlrev_b32 v{VL16}, 4, v0"]
    P += [f"v_lshrrev_b32 v{T0}, 3, v0", f"v_and_b32 v{T1}, 7, v0", f"v_lshrrev_b32 v{T2}, 4, v0",
          "s_lshl_b32 s46, s45, 7", "s_lshl_b32 s47, s3, 5", "s_add_u32 s46, s46, s47",
          f"v_add_u32 v{T3}, s46, v{T0}", f"v_lshlrev_b32 v{T3}, 12, v{T3}",
          f"v_xor_b32 v{VB[0]}, v{T1}, v{T2}", f"v_lshlrev_b32 v{VB[0]}, 4, v{VB[0]}", f"v_add_u32 v{VB[0]}, v{VB[0]}, v{T3}"]
    for q in range(1, 4):
        if q % 2: P += [f"v_xor_b32 v{VB[q]}, 64, v{VB[0]}", f"v_add_u32 v{VB[q]}, {q*8*4096}, v{VB[q]}"]
        else: P += [f"v_add_u32 v{VB[q]}, {q*8*4096}, v{VB[0]}"]
    P += ["s_and_b32 s46, s3, 1", "s_lshl_b32 s46, s46, 13", f"s_add_u32 s46, s46, {LB0}", f"v_add_u32 v{AA0}, s46, v{VL16}",
          "s_lshr_b32 s46, s3, 1", "s_lshl_b32 s46, s46, 13", f"s_add_u32 s46, s46, {L_B + LB0}"]
    P += [f"v_lshrrev_b32 v{T0}, 5, v0", f"v_lshrrev_b32 v{T1}, 1, v0", f"v_and_b32 v{T1}, 7, v{T1}",
          f"v_xor_b32 v{T0}, v{T0}, v{T1}", f"v_and_b32 v{T1}, 31, v0", f"v_lshlrev_b32 v{T1}, 7, v{T1}",
          f"v_add_u32 v{T1}, s46, v{T1}"]
    for ks in range(4):
        P += [f"v_xor_b32 v{T2}, {2*ks}, v{T0}", f"v_lshlrev_b32 v{T2}, 4, v{T2}", f"v_add_u32 v{BA0[ks]}, v{T2}, v{T1}",
              f"v_mov_b32 v{BA[ks]}, v{BA0[ks]}"]
    P += [f"v_mov_b32 v{AA}, v{AA0}"]
    P += ["s_waitcnt lgkmcnt(0)", "s_cmp_eq_u32 s42, 0", "s_cselect_b32 s4, s4, s6", "s_cselect_b32 s5, s5, s7"] + srd(8, 4, 5, 8 * MB) + srd(24, 40, 41, WS_SIZE)
    P += ["s_lshl_b32 s47, s44, 2", "s_add_u32 s47, s47, s3", "s_lshl_b32 s47, s47, 17",
          f"s_mul_i32 s46, s42, {4*MB}", "s_add_u32 s47, s47, s46",
          "s_mov_b32 s48, 0", "s_lshl_b32 s50, s3, 12", "s_mov_b32 s49, s50", "s_mov_b32 s51, 0", "s_mov_b32 s57, s47"]
    if "yrot1" in EXP or "yrot2" in EXP:
        P += ["s_lshr_b32 s48, s2, 5", f"s_lshl_b32 s48, s48, {8 if 'yrot2' in EXP else 7}", "s_lshl_b32 s56, s48, 5", "s_add_u32 s47, s57, s56"]
    if "rot" in EXP:
        P += ["s_lshr_b32 s48, s2, 5", "s_lshl_b32 s48, s48, 2", "s_bfe_u32 s56, s2, 0x20003", "s_lshl_b32 s56, s56, 3",
              "s_add_u32 s48, s48, s56", "s_and_b32 s48, s48, 31", "s_lshl_b32 s48, s48, 7",
              "s_lshl_b32 s56, s48, 5", "s_add_u32 s47, s57, s56"]
    def dma():
        o = [[f"s_add_u32 m0, s49, {LB0}", f"buffer_load_dwordx4 v{VL16}, s[24:27], s47 offen lds"]]
        for u in range(1, 4):
            o.append([None, f"buffer_load_dwordx4 v{VL16}, s[24:27], s47 offen offset:{1024*u} lds"])
        for q in range(4):
            o.append([f"s_add_u32 m0, s49, {LB0 + L_B + 1024*q}", f"buffer_load_dwordx4 v{VB[q]}, s[8:11], s48 offen lds"])
        if "noydma" in EXP: o = [[a_, "s_nop 0"] for a_, b_ in o]
        return o
    def dma_adv():
        return ["s_add_u32 s48, s48, 128", "s_and_b32 s48, s48, 0xfff", "s_lshl_b32 s56, s48, 5", "s_add_u32 s47, s57, s56",
                f"s_add_u32 s49, s49, {STG}", f"s_and_b32 s49, s49, {NST*STG-1}"]
    LATE = 0 if "late0" in EXP else (2 if "late2" in EXP else 1)
    for t in range(NST - 1 - LATE):
        P += mix([], dma()) + dma_adv()
    for r in range(ACC, ACC + 64): P += [f"v_mov_b32 v{r}, 0"]
    def reads(s_, ks):
        if "noyrd" in EXP: return ["s_nop 0"] * 4
        return [f"ds_read_b128 {vr(fr(s_,0),4)}, v{AA} offset:{ks*1024}",
                f"ds_read_b128 {vr(fr(s_,2),4)}, v{BA[ks]}",
                f"ds_read_b128 {vr(fr(s_,3),4)}, v{BA[ks]} offset:4096",
                f"ds_read_b128 {vr(fr(s_,1),4)}, v{AA} offset:{4096+ks*1024}"]
    def mfmas(s_, ks=0):
        if "noy" in EXP: return ["s_nop 0"] * 4
        if "y16" in EXP:
            o = []
            for (i, j) in ((0, 0), (0, 1), (1, 0), (1, 1)):
                o += [mfma16(acc(i, j) + 8 * s_, fr(s_, i), fr(s_, 2 + j)), mfma16(acc(i, j) + 8 * s_ + 4, fr(s_, i), fr(s_, 2 + j))]
            return o
        return [mfma32(acc(0, 0), fr(s_, 0), fr(s_, 2)), mfma32(acc(0, 1), fr(s_, 0), fr(s_, 3)),
                mfma32(acc(1, 0), fr(s_, 1), fr(s_, 2)), mfma32(acc(1, 1), fr(s_, 1), fr(s_, 3))]
    def rd_adv():
        o = [f"s_add_u32 s51, s51, {STG}", f"s_and_b32 s51, s51, {NST*STG-1}", f"v_add_u32 v{AA}, s51, v{AA0}"]
        for i in range(4): o += [f"v_add_u32 v{BA[i]}, s51, v{BA0[i]}"]
        return o
    P += stamp(1)
    pre, ktext, ktrace = kloop(N, 32, NST, 8, dma, dma_adv, reads, mfmas, rd_adv, 52, late=LATE)
    E = ["s_nop 15"] + stamp(2)
    E += ["s_lshl_b32 s46, s44, 2", "s_and_b32 s47, s3, 1", "s_lshl_b32 s47, s47, 1", "s_add_u32 s46, s46, s47", "s_lshl_b32 s46, s46, 17",
          "s_lshl_b32 s47, s45, 2", "s_lshr_b32 s48, s3, 1", "s_lshl_b32 s48, s48, 1", "s_add_u32 s47, s47, s48", "s_lshl_b32 s47, s47, 11",
          "s_add_u32 s46, s46, s47", f"s_mul_i32 s47, s42, {4*MB}", "s_add_u32 s46, s46, s47", f"s_add_u32 s46, s46, {WS_Y1}"]
    pk = 32
    for i in range(2):
        for j in range(2):
            a = acc(i, j)
            for r in range(8): E += [f"v_cvt_pk_bf16_f32 v{pk+r}, v{a+2*r}, v{a+2*r+1}"]
            for t in range(2):
                E += [f"buffer_store_dwordx4 {vr(pk+4*t,4)}, v{VL16}, s[24:27], s46 offen offset:{j*2048+t*1024}"]
            pk = 32 + (pk - 32 + 8) % 32
        E += ["s_add_u32 s46, s46, 131072"]
    E += stamp(3) + ["s_waitcnt vmcnt(0)"] * STAMPS + stamp(4) + stamp_dump(5, 9, 2, 128 if merged else 0)
    E += [f"{N}_done:", "s_endpgm"]
    text = (header(N) if not merged else []) + P + pre + ktext + E
    errs = check_trace(P + pre + ktrace + E, N)
    return N, text, desc(N, 128), errs, (256, 256, NST * STG)

def gen_ygemm16(merged=False):
    N = "ygemm_kernel" if not merged else "mix_kernel_y"
    NST = 4; STG = 32768; L_B = 16384
    LB0 = 32768 if merged else 0
    ACC = 72
    def acc(i, j): return ACC + (i * 4 + j) * 4
    def fa(s, i): return 24 + s * 8 + i * 4
    def fb(s, j): return 40 + s * 16 + j * 4
    VL16 = 1; VB = [2, 3, 4, 5]; AA0 = 6; BA0 = [7, 8]; AA = 11; BA = [12, 13]; VY = 14
    T0, T1, T2, T3 = 16, 17, 18, 19
    P = []
    if not merged:
        P += ["s_cmp_ge_u32 s2, 256", f"s_cbranch_scc1 {N}_done"]
        P += ["v_lshrrev_b32 v1, 6, v0", "v_and_b32 v0, 63, v0", "v_readfirstlane_b32 s3, v1"]
    P += stamp(0)
    P += ["s_and_b32 s42, s2, 1",
          "s_load_dwordx4 s[4:7], s[0:1], 8", "s_load_dwordx2 s[40:41], s[0:1], 88"]
    P += ["s_bfe_u32 s44, s2, 0x10001", "s_lshl_b32 s44, s44, 2", "s_bfe_u32 s45, s2, 0x20003", "s_add_u32 s44, s44, s45",
          "s_bfe_u32 s45, s2, 0x10002", "s_lshl_b32 s45, s45, 3", "s_lshr_b32 s46, s2, 5", "s_add_u32 s45, s45, s46"]
    P += [f"v_lshlrev_b32 v{VL16}, 4, v0"]
    P += [f"v_lshrrev_b32 v{T0}, 3, v0", f"v_and_b32 v{T1}, 7, v0", f"v_lshrrev_b32 v{T2}, 4, v0",
          "s_lshl_b32 s46, s45, 7", "s_lshl_b32 s47, s3, 5", "s_add_u32 s46, s46, s47",
          f"v_add_u32 v{T3}, s46, v{T0}", f"v_lshlrev_b32 v{T3}, 12, v{T3}",
          f"v_xor_b32 v{VB[0]}, v{T1}, v{T2}", f"v_lshlrev_b32 v{VB[0]}, 4, v{VB[0]}", f"v_add_u32 v{VB[0]}, v{VB[0]}, v{T3}"]
    for q in range(1, 4):
        if q % 2: P += [f"v_xor_b32 v{VB[q]}, 64, v{VB[0]}", f"v_add_u32 v{VB[q]}, {q*8*4096}, v{VB[q]}"]
        else: P += [f"v_add_u32 v{VB[q]}, {q*8*4096}, v{VB[0]}"]
    P += [f"v_and_b32 v{T0}, 15, v0", f"v_lshrrev_b32 v{T1}, 4, v0",
          f"v_and_b32 v{T2}, 1, v{T1}", f"v_lshlrev_b32 v{T2}, 5, v{T2}", f"v_add_u32 v{T2}, v{T2}, v{T0}", f"v_lshlrev_b32 v{T2}, 4, v{T2}",
          f"v_lshrrev_b32 v{T3}, 1, v{T1}",
          f"v_lshlrev_b32 v{VY}, 3, v{T3}", f"v_add_u32 v{VY}, v{VY}, v{T2}",
          f"v_lshlrev_b32 v{T3}, 10, v{T3}", f"v_add_u32 v{T2}, v{T2}, v{T3}",
          "s_and_b32 s46, s3, 1", "s_lshl_b32 s46, s46, 13", f"s_add_u32 s46, s46, {LB0}", f"v_add_u32 v{AA0}, s46, v{T2}",
          "s_lshr_b32 s46, s3, 1", "s_lshl_b32 s46, s46, 13", f"s_add_u32 s46, s46, {L_B + LB0}",
          f"v_lshrrev_b32 v{T2}, 1, v{T0}", f"v_xor_b32 v{T2}, v{T2}, v{T1}",
          f"v_lshlrev_b32 v{T3}, 7, v{T0}", f"v_add_u32 v{T3}, s46, v{T3}"]
    for kk in range(2):
        P += [f"v_xor_b32 v{T0}, {4*kk}, v{T2}", f"v_lshlrev_b32 v{T0}, 4, v{T0}", f"v_add_u32 v{BA0[kk]}, v{T0}, v{T3}",
              f"v_mov_b32 v{BA[kk]}, v{BA0[kk]}"]
    P += [f"v_mov_b32 v{AA}, v{AA0}"]
    P += ["s_waitcnt lgkmcnt(0)", "s_cmp_eq_u32 s42, 0", "s_cselect_b32 s4, s4, s6", "s_cselect_b32 s5, s5, s7"] + srd(8, 4, 5, 8 * MB) + srd(24, 40, 41, WS_SIZE)
    P += ["s_lshl_b32 s47, s44, 2", "s_add_u32 s47, s47, s3", "s_lshl_b32 s47, s47, 17",
          f"s_mul_i32 s46, s42, {4*MB}", "s_add_u32 s47, s47, s46",
          "s_mov_b32 s48, 0", "s_lshl_b32 s50, s3, 12", "s_mov_b32 s49, s50", "s_mov_b32 s51, 0", "s_mov_b32 s57, s47"]
    if "yrot1" in EXP or "yrot2" in EXP:
        P += ["s_lshr_b32 s48, s2, 5", f"s_lshl_b32 s48, s48, {8 if 'yrot2' in EXP else 7}", "s_lshl_b32 s56, s48, 5", "s_add_u32 s47, s57, s56"]
    if "rot" in EXP:
        P += ["s_lshr_b32 s48, s2, 5", "s_lshl_b32 s48, s48, 2", "s_bfe_u32 s56, s2, 0x20003", "s_lshl_b32 s56, s56, 3",
              "s_add_u32 s48, s48, s56", "s_and_b32 s48, s48, 31", "s_lshl_b32 s48, s48, 7",
              "s_lshl_b32 s56, s48, 5", "s_add_u32 s47, s57, s56"]
    def dma():
        o = [[f"s_add_u32 m0, s49, {LB0}", f"buffer_load_dwordx4 v{VL16}, s[24:27], s47 offen lds"]]
        for u in range(1, 4):
            o.append([None, f"buffer_load_dwordx4 v{VL16}, s[24:27], s47 offen offset:{1024*u} lds"])
        for q in range(4):
            o.append([f"s_add_u32 m0, s49, {LB0 + L_B + 1024*q}", f"buffer_load_dwordx4 v{VB[q]}, s[8:11], s48 offen lds"])
        if "noydma" in EXP: o = [[a_, "s_nop 0"] for a_, b_ in o]
        return o
    def dma_adv():
        return ["s_add_u32 s48, s48, 128", "s_and_b32 s48, s48, 0xfff", "s_lshl_b32 s56, s48, 5", "s_add_u32 s47, s57, s56",
                f"s_add_u32 s49, s49, {STG}", f"s_and_b32 s49, s49, {NST*STG-1}"]
    LATE = 0 if "late0" in EXP else (2 if "late2" in EXP else 1)
    for t in range(NST - 1 - LATE):
        P += mix([], dma()) + dma_adv()
    for r in range(ACC, ACC + 64): P += [f"v_mov_b32 v{r}, 0"]
    def reads(s_, ks):
        kk, eh = ks >> 1, ks & 1
        o = [f"ds_read_b128 {vr(fa(s_,0),4)}, v{AA} offset:{eh*4096+kk*2048}"]
        if eh == 0:
            o += [f"ds_read_b128 {vr(fb(kk,j),4)}, v{BA[kk]} offset:{j*2048}" for j in range(4)]
        o += [f"ds_read_b128 {vr(fa(s_,1),4)}, v{AA} offset:{eh*4096+kk*2048+256}"]
        return o
    def mfmas(s_, ks=0):
        kk, eh = ks >> 1, ks & 1
        return [mfma16(acc(2 * eh + i, j), fa(s_, i), fb(kk, j)) for i in range(2) for j in range(4)]
    def rd_adv():
        o = [f"s_add_u32 s51, s51, {STG}", f"s_and_b32 s51, s51, {NST*STG-1}", f"v_add_u32 v{AA}, s51, v{AA0}"]
        for i in range(2): o += [f"v_add_u32 v{BA[i]}, s51, v{BA0[i]}"]
        return o
    P += stamp(1)
    pre, ktext, ktrace = kloop(N, 32, NST, 8, dma, dma_adv, reads, mfmas, rd_adv, 52, npre=2, late=LATE)
    E = ["s_nop 15"] + stamp(2)
    E += ["s_lshl_b32 s46, s44, 2", "s_and_b32 s47, s3, 1", "s_lshl_b32 s47, s47, 1", "s_add_u32 s46, s46, s47", "s_lshl_b32 s46, s46, 17",
          "s_lshl_b32 s47, s45, 2", "s_lshr_b32 s48, s3, 1", "s_lshl_b32 s48, s48, 1", "s_add_u32 s47, s47, s48", "s_lshl_b32 s47, s47, 11",
          "s_add_u32 s46, s46, s47", f"s_mul_i32 s47, s42, {4*MB}", "s_add_u32 s46, s46, s47", f"s_add_u32 s46, s46, {WS_Y1}"]
    pk = 24
    for i in range(4):
        for j in range(4):
            a = acc(i, j)
            E += [f"v_cvt_pk_bf16_f32 v{pk}, v{a}, v{a+1}", f"v_cvt_pk_bf16_f32 v{pk+1}, v{a+2}, v{a+3}",
                  f"buffer_store_dwordx2 {vr(pk,2)}, v{VY}, s[24:27], s46 offen offset:{(i&1)*1024 + (j&1)*256 + (j>>1)*2048}"]
            pk = 24 + (pk - 24 + 2) % 32
        if i == 1: E += ["s_add_u32 s46, s46, 131072"]
    E += stamp(3) + ["s_waitcnt vmcnt(0)"] * STAMPS + stamp(4) + stamp_dump(5, 9, 2, 128 if merged else 0)
    E += [f"{N}_done:", "s_endpgm"]
    text = (header(N) if not merged else []) + P + pre + ktext + E
    errs = check_trace(P + pre + ktrace + E, N)
    return N, text, desc(N, 136), errs, (256, 256, NST * STG)


def mfma16c(d, a, b, c):
    cs = c if isinstance(c, str) else vr(c, 4)
    return f"v_mfma_f32_16x16x32_bf16 {vr(d,4)}, {vr(a,4)}, {vr(b,4)}, {cs}"

def gen_attn16():
    N = "mix_kernel_a"
    NST = 4; STG = 8192
    def Q(qb): return 16 + 4 * qb
    S = {"A": 32, "B": 48}
    Pk = {"A": 64, "B": 72}
    def O(qb, db=0): return 80 + 8 * qb + 4 * db
    def L(qb): return 112 + 4 * qb
    def CN(qb): return 128 + 4 * qb
    KF = [144, 152]; VF = [160, 168]; ONES = 176
    QB0 = {"A": 0, "B": 2}
    VL16 = 1; VRD = 2; VG = 3; VPAT = 4; T0, T1, T2, T3 = 5, 6, 7, 8; VO = 9
    P = []
    P += stamp(0)
    P += ["s_load_dwordx2 s[40:41], s[0:1], 88", "s_load_dwordx2 s[4:5], s[0:1], 0", "s_load_dwordx2 s[38:39], s[0:1], 64"]
    P += ["s_and_b32 s42, s2, 7", "s_lshr_b32 s43, s2, 3", "s_lshl_b32 s42, s42, 2", "s_lshr_b32 s44, s43, 3",
          "s_add_u32 s42, s42, s44", "s_and_b32 s43, s43, 7",
          "s_lshl_b32 s43, s43, 3", "s_lshl_b32 s44, s3, 1", "s_add_u32 s43, s43, s44",
          "s_lshl_b32 s44, s42, 17"]
    P += [f"v_lshlrev_b32 v{VL16}, 4, v0", f"v_and_b32 v{T0}, 15, v0", f"v_bfe_u32 v{T1}, v0, 4, 1", f"v_lshlrev_b32 v{T1}, 5, v{T1}",
          f"v_add_u32 v{T0}, v{T0}, v{T1}", f"v_lshlrev_b32 v{T0}, 4, v{T0}", f"v_lshrrev_b32 v{T1}, 5, v0",
          f"v_lshlrev_b32 v{T2}, 10, v{T1}", f"v_add_u32 v{VPAT}, v{T0}, v{T2}", f"v_lshlrev_b32 v{T2}, 3, v{T1}", f"v_add_u32 v{VO}, v{T0}, v{T2}"]
    P += ["s_waitcnt lgkmcnt(0)"] + srd(24, 40, 41, WS_SIZE) + srd(8, 4, 5, 4 * MB) + srd(28, 38, 39, 2048)
    P += ["s_lshl_b32 s45, s43, 11", "s_add_u32 s45, s45, s44", f"s_add_u32 s45, s45, {WS_Q}",
          f"s_add_u32 s46, s44, {WS_K}", f"s_add_u32 s47, s44, {WS_V}"]
    for qb in range(4):
        P += [f"buffer_load_dwordx4 {vr(Q(qb),4)}, v{VPAT}, s[24:27], s45 offen offset:{(qb&1)*256 + (qb>>1)*2048}"]
    for i in range(4):
        P += [f"buffer_load_dwordx4 {vr(KF[0]+4*i,4)}, v{VPAT}, s[24:27], s46 offen offset:{(i&1)*256 + (i>>1)*2048}"]
    P += ["s_lshl_b32 s51, s3, 10", "s_mov_b32 s61, s51", "s_add_u32 s60, s61, 2048",
          "s_add_u32 s48, s46, s60", "s_add_u32 s49, s47, s61", "s_mov_b32 s50, s51"]
    def dma():
        return [["s_mov_b32 m0, s50", f"buffer_load_dwordx4 v{VL16}, s[24:27], s48 offen lds"],
                ["s_add_u32 m0, s50, 4096", f"buffer_load_dwordx4 v{VL16}, s[24:27], s49 offen lds"]]
    def dma_adv():
        return ["s_add_u32 s60, s60, 4096", "s_and_b32 s60, s60, 0x1ffff", "s_add_u32 s61, s61, 4096", "s_and_b32 s61, s61, 0x1ffff",
                "s_add_u32 s48, s46, s60", "s_add_u32 s49, s47, s61", f"s_add_u32 s50, s50, {STG}",
                f"s_and_b32 s50, s50, {NST*STG-1}"]
    for t in range(NST - 1):
        for a, b in dma(): P += [a, "s_nop 0", b]
        P += dma_adv()
    GX = 192
    P += ["s_lshl_b32 s62, s2, 3", "s_lshl_b32 s45, s3, 1", "s_add_u32 s62, s62, s45", "s_lshl_b32 s45, s62, 11",
          f"v_lshlrev_b32 v{T0}, 5, v0"]
    P += [f"buffer_load_dwordx4 v[{GX}:{GX+3}], v{T0}, s[8:11], s45 offen",
          f"buffer_load_dwordx4 v[{GX+4}:{GX+7}], v{T0}, s[8:11], s45 offen offset:16",
          f"buffer_load_dwordx4 v[{GX+8}:{GX+11}], v{T0}, s[8:11], s45 offen offset:2048",
          f"buffer_load_dwordx4 v[{GX+12}:{GX+15}], v{T0}, s[8:11], s45 offen offset:2064",
          f"buffer_load_dwordx4 v[{GX+16}:{GX+19}], v{T0}, s[28:31], 0 offen",
          f"buffer_load_dwordx4 v[{GX+20}:{GX+23}], v{T0}, s[28:31], 0 offen offset:16"]
    for r in list(range(112, 128)) + list(range(Pk["B"], Pk["B"] + 8)) + list(range(VF[0], VF[0] + 16)):
        P += [f"v_mov_b32 v{r}, 0"]
    for i in range(4): P += [f"v_mov_b32 v{ONES+i}, 0x3f803f80"]
    P += [f"v_mov_b32 v{VRD}, v{VPAT}", "s_mov_b32 s52, 0", "s_mov_b32 s53, 0"]
    P += [f"s_waitcnt vmcnt({2*(NST-1)+6})"]
    def TM(qb): return (32 + 16 * qb) if qb < 2 else (80 + 16 * (qb - 2))
    for qb in range(4):
        for i in range(4):
            P += [mfma16c(TM(qb) + 4 * i, KF[0] + 4 * i, Q(qb), "0")]
    P += ["s_nop 7"]
    MX = [10, 11, 12, 13]
    for qb in range(4):
        t = TM(qb); m = MX[qb]
        P += [f"v_max3_f32 v{m}, v{t}, v{t+1}, v{t+2}"]
        for i in range(3, 15, 2): P += [f"v_max3_f32 v{m}, v{m}, v{t+i}, v{t+i+1}"]
        P += [f"v_max_f32 v{m}, v{m}, v{t+15}"]
    for qb in range(4): P += [f"ds_swizzle_b32 v{T0+qb}, v{MX[qb]} offset:0x401F"]
    P += ["s_waitcnt lgkmcnt(0)"]
    for qb in range(4): P += [f"v_max_f32 v{MX[qb]}, v{MX[qb]}, v{T0+qb}"]
    for qb in range(4): P += [f"v_mov_b32 v{T0+qb}, v{MX[qb]}"]
    P += ["s_nop 1"]
    for qb in range(4): P += [f"v_permlane32_swap_b32 v{MX[qb]}, v{T0+qb}"]
    P += [f"s_mov_b32 s54, {hex(f32bits(-ATT_OFF))}"]
    for qb in range(4):
        P += [f"v_max_f32 v{MX[qb]}, v{MX[qb]}, v{T0+qb}", f"v_sub_f32 v{MX[qb]}, s54, v{MX[qb]}"]
        for i in range(4): P += [f"v_mov_b32 v{CN(qb)+i}, v{MX[qb]}"]
    for r in range(80, 112): P += [f"v_mov_b32 v{r}, 0"]
    def qk(Y, kset):
        return [mfma16c(S[Y] + (qi * 2 + kb) * 4, KF[kset] + 4 * kb, Q(QB0[Y] + qi), CN(QB0[Y] + qi)) for qi in range(2) for kb in range(2)]
    def pv(Y, vset):
        o = []
        for qi in range(2):
            qb = QB0[Y] + qi
            o += [mfma16(O(qb, 0), VF[vset], Pk[Y] + 4 * qi), mfma16(O(qb, 1), VF[vset] + 4, Pk[Y] + 4 * qi), mfma16(L(qb), ONES, Pk[Y] + 4 * qi)]
        return o
    P += qk("A", 0) + ["s_nop 7"]
    P += stamp(1)
    def slot(X, kset_qk, vset_pv, rd, extra=[]):
        Y = "B" if X == "A" else "A"
        mf = qk(Y, kset_qk) + pv(Y, vset_pv)
        e = [f"v_exp_f32 v{S[X]+i}, v{S[X]+i}" for i in range(16)]
        c = [f"v_cvt_pk_bf16_f32 v{Pk[X]+j}, v{S[X]+2*j}, v{S[X]+2*j+1}" for j in range(8)]
        va = e[0:3] + [c[0]] + e[3:5] + [c[1]] + e[5:7] + [c[2]] + e[7:9] + [c[3]] + e[9:11] + [c[4]] + e[11:13] + [c[5]] + e[13:16] + [c[6], c[7]]
        cnt = [2, 2, 3, 2, 3, 2, 3, 2, 3, 2]
        o = []; vi = 0
        for i in range(10):
            o += [mf[i]]
            if i < 4 and rd: o += [rd[i]]
            if i < len(extra): o += extra[i][:1]
            o += va[vi:vi + cnt[i]]; vi += cnt[i]
            if i < len(extra): o += extra[i][1:]
        assert vi == 24
        return o
    def rds(kb_par, half):
        return [f"ds_read_b128 {vr(KF[1-kb_par],4)}, v{VRD} offset:{half*2048}",
                f"ds_read_b128 {vr(KF[1-kb_par]+4,4)}, v{VRD} offset:{half*2048+256}",
                f"ds_read_b128 {vr(VF[kb_par],4)}, v{VRD} offset:{4096+half*2048}",
                f"ds_read_b128 {vr(VF[kb_par]+4,4)}, v{VRD} offset:{4096+half*2048+256}"]
    B = [f"s_waitcnt vmcnt({2*(NST-2)})", "s_barrier"]
    d = dma()
    if "newtop" not in EXP:
        B += [d[0][0], "s_nop 0", d[0][1], d[1][0], "s_nop 0", d[1][1]] + dma_adv()
        B += slot("A", 0, 1, rds(0, 0))
        B += ["s_waitcnt lgkmcnt(0)"]
        B += slot("B", 1, 0, [])
    else:
        adv = dma_adv()
        B += slot("A", 0, 1, rds(0, 0), [[], [], [], [], d[0], d[1]])
        B += ["s_waitcnt lgkmcnt(0)"]
        B += slot("B", 1, 0, [], [adv[0:2], adv[2:4], adv[4:6], adv[6:8]])
    B += slot("A", 1, 0, rds(1, 1))
    B += ["s_waitcnt lgkmcnt(0)"]
    B += slot("B", 0, 1, [], [[f"s_add_u32 s53, s53, {STG}", f"s_and_b32 s53, s53, {NST*STG-1}"], [f"v_add_u32 v{VRD}, s53, v{VPAT}"]])
    tail = ["s_add_u32 s52, s52, 1", "s_cmp_lt_u32 s52, 32", f"s_cbranch_scc1 {N}_loop"]
    E = stamp(2)
    E += ["s_nop 1"] + pv("B", 1) + ["s_nop 7"]
    E += [f"s_mov_b32 s54, {hex(f32bits(ATT_LMAX))}",
          f"v_max3_f32 v{T0}, v{L(0)}, v{L(1)}, v{L(2)}", f"v_cmp_gt_f32 vcc, s54, v{T0}", f"v_cmp_gt_f32 s[56:57], s54, v{L(3)}",
          f"v_cmp_o_f32 s[58:59], v{L(0)}, v{L(1)}", f"v_cmp_o_f32 s[64:65], v{L(2)}, v{L(3)}", "s_nop 1",
          "s_and_b64 vcc, vcc, s[56:57]", "s_and_b64 vcc, vcc, s[58:59]", "s_and_b64 vcc, vcc, s[64:65]",
          "s_cmp_eq_u64 vcc, exec", f"s_cbranch_scc0 {N}_fallback"]
    E2 = [f"{N}_final:"]
    E2 += ["s_lshl_b32 s45, s43, 16", "s_lshl_b32 s46, s42, 11", "s_add_u32 s45, s45, s46", f"s_add_u32 s45, s45, {WS_O}"]
    for qb in range(4):
        E2 += [f"v_rcp_f32 v{T0}, v{L(qb)}", "s_nop 0"]
        for i in range(8): E2 += [f"v_mul_f32 v{O(qb)+i}, v{O(qb)+i}, v{T0}"]
        for db in range(2):
            pk = 32 + qb * 4 + db * 2
            E2 += [f"v_cvt_pk_bf16_f32 v{pk}, v{O(qb,db)}, v{O(qb,db)+1}", f"v_cvt_pk_bf16_f32 v{pk+1}, v{O(qb,db)+2}, v{O(qb,db)+3}",
                   f"buffer_store_dwordx2 {vr(pk,2)}, v{VO}, s[24:27], s45 offen offset:{(qb&1)*256 + db*1024}"]
        if qb == 1: E2 += ["s_add_u32 s45, s45, 65536"]
    A0, A1 = 64, 65
    E2 += ["s_waitcnt vmcnt(8)", f"v_mov_b32 v{A0}, 0", f"v_mov_b32 v{A1}, 0"]
    for i in range(8):
        w = GX + 16 + i
        E2 += [f"v_lshlrev_b32 v66, 16, v{w}", f"v_and_b32 v67, 0xffff0000, v{w}"]
        for r, a in ((0, A0), (1, A1)):
            x = GX + 8 * r + i
            E2 += [f"v_lshlrev_b32 v68, 16, v{x}", f"v_and_b32 v69, 0xffff0000, v{x}",
                  "v_mul_f32 v68, v68, v66", "v_mul_f32 v69, v69, v67",
                  "v_cvt_pk_bf16_f32 v70, v68, v69",
                  "v_lshlrev_b32 v68, 16, v70", "v_and_b32 v69, 0xffff0000, v70",
                  f"v_add_f32 v{a}, v{a}, v68", f"v_add_f32 v{a}, v{a}, v69"]
    for off in (0x041F, 0x081F, 0x101F, 0x201F, 0x401F):
        E2 += [f"ds_swizzle_b32 v66, v{A0} offset:{off}", f"ds_swizzle_b32 v67, v{A1} offset:{off}",
              "s_waitcnt lgkmcnt(0)", f"v_add_f32 v{A0}, v{A0}, v66", f"v_add_f32 v{A1}, v{A1}, v67"]
    E2 += ["s_nop 0", f"v_readlane_b32 s55, v{A0}, 32", f"v_readlane_b32 s56, v{A1}, 32", "s_nop 1",
          f"v_add_f32 v{A0}, s55, v{A0}", f"v_add_f32 v{A1}, s56, v{A1}",
          "v_cmp_eq_u32 vcc, 1, v0", "s_nop 1", f"v_cndmask_b32 v{A0}, v{A0}, v{A1}, vcc",
          f"v_cvt_pk_bf16_f32 v{A0}, v{A0}, v{A0}", f"v_lshlrev_b32 v{A0}, 16, v{A0}",
          f"v_mul_f32 v{A0}, {hex(f32bits(-LOG2E))}, v{A0}", f"v_exp_f32 v{A0}, v{A0}", "s_nop 0",
          f"v_add_f32 v{A0}, 1.0, v{A0}", f"v_rcp_f32 v{A0}, v{A0}", "s_nop 0",
          f"v_cvt_pk_bf16_f32 v{A0}, v{A0}, v{A0}", f"v_lshlrev_b32 v{VG}, 16, v{A0}"]
    E2 += [f"v_lshlrev_b32 v{T0}, 2, v0", "s_lshl_b32 s45, s62, 2", f"s_add_u32 s45, s45, {WS_G}",
           "v_cmp_gt_u32 vcc, 2, v0", "s_and_saveexec_b64 s[58:59], vcc",
           f"buffer_store_dword v{VG}, v{T0}, s[24:27], s45 offen", "s_mov_b64 exec, s[58:59]"]
    E2 += stamp(3) + ["s_waitcnt vmcnt(0)"] + stamp(4) + stamp_dump(5, 9, 1)
    E2 += [f"{N}_done:", "s_endpgm"]
    F = [f"{N}_fallback:", "s_waitcnt vmcnt(0)"]
    AL = 14
    for qb in range(4):
        F += [f"v_mov_b32 v{MX[qb]}, 0xff7fffff", f"v_mov_b32 v{L(qb)}, 0"]
        for i in range(8): F += [f"v_mov_b32 v{O(qb)+i}, 0"]
    F += [f"s_add_u32 s46, s44, {WS_K}", f"s_add_u32 s47, s44, {WS_V}", "s_mov_b32 s52, 0"]
    FB = [f"buffer_load_dwordx4 {vr(KF[0],4)}, v{VPAT}, s[24:27], s46 offen",
          f"buffer_load_dwordx4 {vr(KF[0]+4,4)}, v{VPAT}, s[24:27], s46 offen offset:256",
          f"buffer_load_dwordx4 {vr(VF[0],4)}, v{VPAT}, s[24:27], s47 offen",
          f"buffer_load_dwordx4 {vr(VF[0]+4,4)}, v{VPAT}, s[24:27], s47 offen offset:256",
          "s_waitcnt vmcnt(0)"]
    for qb in range(4):
        s0 = 32; p0 = 64
        FB += [mfma16c(s0, KF[0], Q(qb), "0"), mfma16c(s0 + 4, KF[0] + 4, Q(qb), "0"), "s_nop 7"]
        FB += [f"v_max3_f32 v{T0}, v{s0}, v{s0+1}, v{MX[qb]}", f"v_max3_f32 v{T0}, v{T0}, v{s0+2}, v{s0+3}",
               f"v_max3_f32 v{T0}, v{T0}, v{s0+4}, v{s0+5}", f"v_max3_f32 v{T0}, v{T0}, v{s0+6}, v{s0+7}",
               f"ds_swizzle_b32 v{T1}, v{T0} offset:0x401F", "s_waitcnt lgkmcnt(0)", f"v_max_f32 v{T0}, v{T0}, v{T1}",
               f"v_mov_b32 v{T1}, v{T0}", "s_nop 1", f"v_permlane32_swap_b32 v{T0}, v{T1}", f"v_max_f32 v{T0}, v{T0}, v{T1}",
               f"v_sub_f32 v{AL}, v{MX[qb]}, v{T0}", f"v_exp_f32 v{AL}, v{AL}", f"v_mov_b32 v{MX[qb]}, v{T0}",
               f"v_mul_f32 v{L(qb)}, v{L(qb)}, v{AL}"]
        for i in range(8):
            FB += [f"v_sub_f32 v{s0+i}, v{s0+i}, v{T0}", f"v_exp_f32 v{s0+i}, v{s0+i}", f"v_mul_f32 v{O(qb)+i}, v{O(qb)+i}, v{AL}"]
        for j in range(4):
            FB += [f"v_cvt_pk_bf16_f32 v{p0+j}, v{s0+2*j}, v{s0+2*j+1}",
                   f"v_lshlrev_b32 v{T1}, 16, v{p0+j}", f"v_and_b32 v{T2}, 0xffff0000, v{p0+j}",
                   f"v_add_f32 v{L(qb)}, v{L(qb)}, v{T1}", f"v_add_f32 v{L(qb)}, v{L(qb)}, v{T2}"]
        FB += ["s_nop 1", mfma16(O(qb, 0), VF[0], p0), mfma16(O(qb, 1), VF[0] + 4, p0), "s_nop 7"]
    FB += ["s_add_u32 s46, s46, 2048", "s_add_u32 s47, s47, 2048", "s_add_u32 s52, s52, 1", "s_cmp_lt_u32 s52, 64",
           f"s_cbranch_scc1 {N}_fbloop"]
    FE = []
    for qb in range(4):
        FE += [f"ds_swizzle_b32 v{T1}, v{L(qb)} offset:0x401F", "s_waitcnt lgkmcnt(0)", f"v_add_f32 v{L(qb)}, v{L(qb)}, v{T1}",
               f"v_mov_b32 v{T1}, v{L(qb)}", "s_nop 1", f"v_permlane32_swap_b32 v{L(qb)}, v{T1}", f"v_add_f32 v{L(qb)}, v{L(qb)}, v{T1}"]
    FE += [f"s_branch {N}_final"]
    text = P + [f"{N}_loop:"] + B + tail + E + E2 + F + [f"{N}_fbloop:"] + FB + FE
    errs = check_trace(P + B + tail + B + tail + E + E2, N)
    errs += check_trace(P + B + tail + E + F + FB + FB + FE + E2, N + "_fb")
    return N, text, desc(N, 216), errs, (256, 256, NST * STG)

def gen_mix():
    N = "mix_kernel"
    _, ta, _, ea, _ = gen_attn(True) if "a32" in EXP else gen_attn16()
    _, ty, _, ey, _ = gen_ygemm(True) if "y32" in EXP else gen_ygemm16(True)
    H = header(N) + ["s_cmp_ge_u32 s2, 256", "s_cbranch_scc1 mix_kernel_a_done",
         "v_lshrrev_b32 v1, 6, v0", "v_and_b32 v0, 63, v0", "v_readfirstlane_b32 s3, v1", "s_nop 3",
         "s_cmp_ge_u32 s3, 4", "s_cbranch_scc1 mix_kernel_ystart"]
    text = H + (["s_setprio 1"] if "prioa" in EXP else []) + ta + ["mix_kernel_ystart:", "s_sub_u32 s3, s3, 4"] + (["s_setprio 1"] if "prioy" in EXP else []) + ty
    return N, text, desc(N, 216), ea + ey, (256, 512, 163840)

def gen_out():
    N = "out_kernel"
    NST = 4 if "o4" in EXP else 6; STG = 24576; L_B = 8192
    ACC = 64
    def acc(i): return ACC + i * 16
    def fr(s, i): return 32 + s * 12 + i * 4
    def fr2(s, ks, i): return 128 + s * 48 + ks * 12 + i * 4
    VL16 = 1; VW = [2, 3]; WA0 = 4; BA0 = 5; WA = 6; BA = 7; VG = 8; VO = 9; WB0 = 10; WB = 11
    T0, T1, T2, T3 = 16, 17, 18, 19
    Y = 96
    P = ["s_cmp_ge_u32 s2, 256", f"s_cbranch_scc1 {N}_done"]
    P += stamp(0)
    P += ["s_load_dwordx2 s[4:5], s[0:1], 56", "s_load_dwordx2 s[6:7], s[0:1], 72", "s_load_dwordx2 s[40:41], s[0:1], 88"]
    P += ["v_lshrrev_b32 v1, 6, v0", "v_and_b32 v0, 63, v0", "v_readfirstlane_b32 s3, v1"]
    P += ["s_and_b32 s45, s2, 3", "s_lshl_b32 s45, s45, 2", "s_bfe_u32 s46, s2, 0x20003", "s_add_u32 s45, s45, s46",
          "s_bfe_u32 s44, s2, 0x10002", "s_lshl_b32 s44, s44, 3", "s_lshr_b32 s46, s2, 5", "s_add_u32 s44, s44, s46",
          "s_lshl_b32 s43, s45, 2", "s_add_u32 s43, s43, s3"]
    P += [f"v_lshlrev_b32 v{VL16}, 4, v0"]
    P += [f"v_lshrrev_b32 v{T3}, 3, v0", "s_lshl_b32 s46, s3, 4", f"v_add_u32 v{T3}, s46, v{T3}", f"v_lshlrev_b32 v{T3}, 11, v{T3}",
          f"v_bfe_u32 v{T0}, v0, 4, 1", f"v_lshlrev_b32 v{T0}, 2, v{T0}", f"v_and_b32 v{T1}, 7, v0", f"v_xor_b32 v{T0}, v{T0}, v{T1}",
          f"v_lshlrev_b32 v{VW[0]}, 4, v{T0}", f"v_add_u32 v{VW[0]}, v{VW[0]}, v{T3}",
          "s_lshl_b32 s46, s44, 7", f"v_add_u32 v{VW[0]}, s46, v{VW[0]}", f"v_add_u32 v{VW[1]}, {8*2048}, v{VW[0]}"]
    P += [f"v_lshrrev_b32 v{T0}, 5, v0", f"v_lshlrev_b32 v{T0}, 2, v{T0}", f"v_bfe_u32 v{T1}, v0, 2, 2",
          f"v_add_u32 v{T0}, v{T0}, v{T1}", f"v_lshlrev_b32 v{T0}, 7, v{T0}",
          f"v_bfe_u32 v{T1}, v0, 3, 1", f"v_lshlrev_b32 v{T1}, 6, v{T1}", f"v_add_u32 v{T0}, v{T0}, v{T1}",
          f"v_bfe_u32 v{T1}, v0, 4, 1", f"v_lshlrev_b32 v{T1}, 5, v{T1}", f"v_add_u32 v{T0}, v{T0}, v{T1}",
          f"v_and_b32 v{T1}, 3, v0", f"v_lshlrev_b32 v{T1}, 3, v{T1}", f"v_add_u32 v{WA0}, v{T0}, v{T1}",
          f"v_xor_b32 v{WB0}, 64, v{WA0}",
          "s_lshl_b32 s50, s3, 12", f"s_add_u32 s46, s50, {L_B}", f"v_add_u32 v{BA0}, s46, v{VL16}",
          f"v_mov_b32 v{WA}, v{WA0}", f"v_mov_b32 v{WB}, v{WB0}", f"v_mov_b32 v{BA}, v{BA0}"]
    P += [f"v_and_b32 v{T0}, 31, v0", "s_lshl_b32 s46, s43, 5", f"v_add_u32 v{T1}, s46, v{T0}", f"v_lshlrev_b32 v{VO}, 11, v{T1}",
          f"v_lshrrev_b32 v{T2}, 5, v0", f"v_lshlrev_b32 v{T2}, 4, v{T2}", f"v_add_u32 v{VO}, v{VO}, v{T2}",
          "s_lshl_b32 s46, s44, 7", f"v_add_u32 v{VO}, s46, v{VO}", f"v_lshlrev_b32 v{T1}, 2, v{T1}"]
    P += ["s_waitcnt lgkmcnt(0)"] + stamp(5) + srd(8, 4, 5, 2 * MB) + srd(12, 6, 7, 4 * MB) + srd(24, 40, 41, WS_SIZE)
    P += ["s_lshl_b32 s47, s43, 16", f"s_add_u32 s47, s47, {WS_O}", "s_mov_b32 s48, 0", "s_mov_b32 s49, 0",
          "s_lshl_b32 s53, s3, 11", "s_mov_b32 s51, 0"]
    def dma():
        o = [["s_add_u32 m0, s49, s53", f"buffer_load_dwordx4 v{VW[0]}, s[8:11], s48 offen lds"],
             ["s_add_u32 m0, m0, 1024", f"buffer_load_dwordx4 v{VW[1]}, s[8:11], s48 offen lds"],
             ["s_add_u32 m0, s49, s54", f"buffer_load_dwordx4 v{VL16}, s[24:27], s47 offen lds"]]
        for u in range(1, 4):
            o.append([None, f"buffer_load_dwordx4 v{VL16}, s[24:27], s47 offen offset:{1024*u} lds"])
        if "nowo" in EXP:
            o[0][1] = f"buffer_load_dwordx4 v{VL16}, s[24:27], s47 offen lds"
            o[1][1] = f"buffer_load_dwordx4 v{VL16}, s[24:27], s47 offen lds"
        if "noo" in EXP:
            for u in range(2, 6): o[u][1] = f"buffer_load_dwordx4 v{VW[0]}, s[8:11], s48 offen lds"
        return o
    def dma_adv():
        if "norot3" not in EXP:
            return ["s_add_u32 s56, s56, 4096", "s_and_b32 s56, s56, 0xffff", "s_add_u32 s47, s57, s56", "s_lshl_b32 s48, s56, 5",
                    f"s_add_u32 s49, s49, {STG}", f"s_cmp_ge_u32 s49, {NST*STG}", "s_cselect_b32 s49, 0, s49"]
        return ["s_add_u32 s47, s47, 4096", f"s_add_u32 s48, s48, {64*2048}", f"s_add_u32 s49, s49, {STG}",
                f"s_cmp_ge_u32 s49, {NST*STG}", "s_cselect_b32 s49, 0, s49"]
    P += [f"s_add_u32 s54, s50, {L_B}"]
    if "norot3" not in EXP:
        P += ["s_lshr_b32 s56, s2, 5", "s_lshl_b32 s56, s56, 1", "s_bfe_u32 s57, s2, 0x20003", "s_lshl_b32 s57, s57, 2",
              "s_add_u32 s56, s56, s57", "s_and_b32 s56, s56, 15", "s_lshl_b32 s56, s56, 12",
              "s_mov_b32 s57, s47", "s_add_u32 s47, s57, s56", "s_lshl_b32 s48, s56, 5"]
    YL = []
    YL += ["s_lshl_b32 s46, s44, 18", "s_lshl_b32 s55, s43, 11", "s_add_u32 s46, s46, s55", f"s_add_u32 s46, s46, {WS_Y1}"]
    for i in range(2):
        for p in range(2):
            YL += [f"s_add_u32 s55, s46, {i*131072 + p*4*MB}"]
            for t in range(2):
                YL += [f"buffer_load_dwordx4 {vr(Y+(i*2+p)*8+4*t,4)}, v{VL16}, s[24:27], s55 offen offset:{1024*t}"]
    YL += [f"s_mov_b32 s55, {WS_G}", f"buffer_load_dword v{VG}, v{T1}, s[24:27], s55 offen"]
    if "yearly" in EXP: P += YL
    P += stamp(6)
    for t in range(NST - 1 if "k3old" in EXP else NST):
        P += mix([], dma()) + dma_adv()
    P += stamp(7)
    if "ylate" in EXP: P += YL
    for r in range(ACC, ACC + 32): P += [f"v_mov_b32 v{r}, 0"]
    def reads(s_, ks):
        return [f"ds_read_b128 {vr(fr(s_,2),4)}, v{BA} offset:{ks*1024}",
                f"ds_read_b64_tr_b16 {vr(fr(s_,0),2)}, v{WA} offset:{ks*2048}",
                f"ds_read_b64_tr_b16 {vr(fr(s_,0)+2,2)}, v{WA} offset:{ks*2048+1024}",
                f"ds_read_b64_tr_b16 {vr(fr(s_,1),2)}, v{WB} offset:{ks*2048}",
                f"ds_read_b64_tr_b16 {vr(fr(s_,1)+2,2)}, v{WB} offset:{ks*2048+1024}"]
    def mfmas(s_, ks=0):
        if "nomf" in EXP: return ["s_nop 0", "s_nop 0"]
        return [mfma32(acc(0), fr(s_, 0), fr(s_, 2)), mfma32(acc(1), fr(s_, 1), fr(s_, 2))]
    def rd_adv():
        return [f"s_add_u32 s51, s51, {STG}", f"s_cmp_ge_u32 s51, {NST*STG}", "s_cselect_b32 s51, 0, s51",
                f"v_add_u32 v{WA}, s51, v{WA0}", f"v_add_u32 v{WB}, s51, v{WB0}", f"v_add_u32 v{BA}, s51, v{BA0}"]
    P += stamp(1)
    if "k3old" in EXP:
        pre, ktext, ktrace = kloop(N, 16, NST, 6, dma, dma_adv, reads, mfmas, rd_adv, 52, mid=(YL if ("yearly" not in EXP and "ylate" not in EXP) else []))
    else:
        def reads2(s_):
            o = []
            for ks in range(4):
                o += [f"ds_read_b128 {vr(fr2(s_,ks,2),4)}, v{BA} offset:{ks*1024}",
                      f"ds_read_b64_tr_b16 {vr(fr2(s_,ks,0),2)}, v{WA} offset:{ks*2048}",
                      f"ds_read_b64_tr_b16 {vr(fr2(s_,ks,0)+2,2)}, v{WA} offset:{ks*2048+1024}",
                      f"ds_read_b64_tr_b16 {vr(fr2(s_,ks,1),2)}, v{WB} offset:{ks*2048}",
                      f"ds_read_b64_tr_b16 {vr(fr2(s_,ks,1)+2,2)}, v{WB} offset:{ks*2048+1024}"]
            return o
        def mfmas2(s_):
            o = []
            for ks in range(4):
                o += [mfma32(acc(0), fr2(s_, ks, 0), fr2(s_, ks, 2)), mfma32(acc(1), fr2(s_, ks, 1), fr2(s_, ks, 2))]
            return o
        pre = [f"s_waitcnt vmcnt({6*(NST-1)})", "s_barrier"] + reads2(0) + rd_adv() + ["s_mov_b32 s52, 0"]
        def it(s_, do_dma, allowed, last, extra=[]):
            o = [f"s_waitcnt vmcnt({allowed}) lgkmcnt(0)"]
            if not last: o += ["s_barrier"]
            fill = (mix(reads2(1 - s_), dma() if do_dma else []) + (dma_adv() if do_dma else []) + rd_adv()) if not last else []
            return o + extra + spread(mfmas2(s_), fill)
        nmain = 16 - NST
        assert nmain % 2 == 0
        Bm = it(0, True, 6 * (NST - 2), False) + it(1, True, 6 * (NST - 2), False)
        tl = [f"s_add_u32 s52, s52, 1", f"s_cmp_lt_u32 s52, {nmain//2}", f"s_cbranch_scc1 {N}_loop"]
        rest = []
        for tt_ in range(nmain, 16):
            allowed = max(0, 15 - (tt_ + 1)) * 6 + (9 if tt_ > nmain else 0)
            rest += it(tt_ & 1, False, allowed, tt_ == 15, YL if tt_ == nmain else [])
        ktext = [f"{N}_loop:"] + Bm + tl + rest
        ktrace = Bm + tl + Bm + tl + rest
    E = ["s_nop 15", "s_waitcnt vmcnt(0)"] + stamp(2)
    E += [f"v_sub_f32 v20, 1.0, v{VG}", "v_cvt_pk_bf16_f32 v20, v20, v20", "v_lshlrev_b32 v20, 16, v20"]
    pk = 32
    for i in range(2):
        a = acc(i)
        for r in range(16): E += [f"v_mul_f32 v{a+r}, v20, v{a+r}"]
        for r in range(8):
            y1 = Y + (i * 2) * 8 + r; y2 = Y + (i * 2 + 1) * 8 + r
            E += [f"v_lshlrev_b32 v{T0}, 16, v{y1}", f"v_lshlrev_b32 v{T1}, 16, v{y2}", f"v_sub_f32 v{T0}, v{T0}, v{T1}",
                  f"v_and_b32 v{T2}, 0xffff0000, v{y1}", f"v_and_b32 v{T3}, 0xffff0000, v{y2}", f"v_sub_f32 v{T2}, v{T2}, v{T3}",
                  f"v_fmac_f32 v{a+2*r}, v{VG}, v{T0}", f"v_fmac_f32 v{a+2*r+1}, v{VG}, v{T2}",
                  f"v_cvt_pk_bf16_f32 v{pk+r}, v{a+2*r}, v{a+2*r+1}"]
        E += ["s_nop 1"]
        for t in range(2):
            E += [f"v_permlane32_swap_b32 v{pk+4*t}, v{pk+4*t+2}", f"v_permlane32_swap_b32 v{pk+4*t+1}, v{pk+4*t+3}"]
        for t in range(2):
            E += [f"buffer_store_dwordx4 {vr(pk+4*t,4)}, v{VO}, s[12:15], 0 offen offset:{i*64+t*32}"]
        pk += 8
    E += stamp(3) + ["s_waitcnt vmcnt(0)"] * STAMPS + stamp(4) + stamp_dump(8, 9, 3)
    E += [f"{N}_done:", "s_endpgm"]
    text = header(N) + P + pre + ktext + E
    errs = check_trace(P + pre + ktrace + E, N)
    return N, text, desc(N, 224), errs, (256, 256, NST * STG)

def build(kernels, path):
    hdr = open("gated_mix__spectral_fnet__softmax_full_mha__prompt.s.ref").read().split("; Override launch")[0]
    out = hdr
    for (N, text, d, errs, (g, b, lds)) in kernels:
        out += f"; @launch kernel={N} grid=({g},1,1) block=({b},1,1) lds={lds}\n"
    out += '.amdgcn_target "amdgcn-amd-amdhsa--gfx950"\n.text\n'
    seen = set()
    for (N, text, d, errs, _) in kernels:
        if N in seen: continue
        seen.add(N)
        for e in errs: print("HAZARD", e)
        for l in text:
            out += (l if (l.endswith(":") or l.startswith(".")) else "    " + l) + "\n"
    out += '.section .rodata,"a"\n'
    seen = set()
    for (N, text, d, errs, _) in kernels:
        if N in seen: continue
        seen.add(N)
        out += d
    if "st_plain" not in EXP and not any(e.startswith("st_") for e in EXP): EXP.add("st_nt"); EXP.add("sto_nt")
    for fl in ("sc1", "sc0 sc1", "nt", "sc0"):
        if "st_" + fl.replace(" ", "_") in EXP:
            import re as _re
            out = _re.sub(r"(buffer_store_dwordx[24] [^\n]*s\[24:27\][^\n]*)", lambda m: m.group(1) + " " + fl, out)
    for fl in ("sc1", "nt"):
        if "sto_" + fl in EXP:
            import re as _re
            out = _re.sub(r"(buffer_store_dwordx[24] [^\n]*s\[12:15\][^\n]*)", lambda m: m.group(1) + " " + fl, out)
    open(path, "w").write(out)

if __name__ == "__main__":
    if len(sys.argv) > 2 and sys.argv[2] == "stamps": STAMPS = True
    for a in sys.argv[3:]: EXP.add(a)
    ks = [gen_proj(), gen_mix(), gen_out()]
    build(ks, sys.argv[1] if len(sys.argv) > 1 else "k.s")
```

```python
import sys, struct
from asmlib import *

MB = 1 << 20
WS_AT, WS_BT, WS_Q, WS_K, WS_V, WS_O, WS_Y1, WS_Y2, WS_G = [i * 4 * MB for i in range(9)]
WS_SIZE = 40 * MB
LOG2E = 1.4426950408889634
QSCALE = (32 ** -0.5) * LOG2E

def f32bits(x):
    return struct.unpack("<I", struct.pack("<f", x))[0]

def srd(base, lo, hi, size):
    return [f"s_mov_b32 s{base}, s{lo}", f"s_mov_b32 s{base+1}, s{hi}",
            f"s_mov_b32 s{base+2}, {size}", f"s_mov_b32 s{base+3}, 0x00020000"]

def desc(name, nv, ns=102):
    acc = (nv + 3) // 4 * 4
    return f"""
.p2align 6
.amdhsa_kernel {name}
  .amdhsa_next_free_vgpr {nv}
  .amdhsa_next_free_sgpr {ns}
  .amdhsa_accum_offset {acc}
  .amdhsa_group_segment_fixed_size 0
  .amdhsa_kernarg_size 96
  .amdhsa_user_sgpr_count 2
  .amdhsa_user_sgpr_kernarg_segment_ptr 1
  .amdhsa_system_sgpr_workgroup_id_x 1
.end_amdhsa_kernel
"""

def mfma32(d, a, b, c=None):
    cs = vr(d, 16) if c is None else (str(c) if isinstance(c, str) else vr(c, 16))
    return f"v_mfma_f32_32x32x16_bf16 {vr(d,16)}, {vr(a,4)}, {vr(b,4)}, {cs}"
def mfma16(d, a, b):
    return f"v_mfma_f32_16x16x32_bf16 {vr(d,4)}, {vr(a,4)}, {vr(b,4)}, {vr(d,4)}"

STAMPS = False
EXP = set()
def stamp(i):
    if not STAMPS: return []
    return ([f"s_memrealtime s[68:69]"] if i == 0 else [f"s_memrealtime s[100:101]"]) + [f"s_memtime s[{70+2*i}:{71+2*i}]", "s_waitcnt lgkmcnt(0)"] + ([] if i == 0 else [f"s_sub_u32 s{71+2*i}, s100, s68"])
def stamp_dump(n, wgsel=0, slot=0, dbgoff=0):
    if not STAMPS: return []
    o = ["s_load_dwordx2 s[90:91], s[0:1], 80", "s_waitcnt lgkmcnt(0)",
         "s_mov_b32 s92, s90", "s_mov_b32 s93, s91", "s_mov_b32 s94, 256", "s_mov_b32 s95, 0x00020000",
         "s_mov_b64 exec, 1", f"s_mov_b32 s96, {dbgoff}", "s_cmp_lg_u32 s3, 0", "s_cselect_b32 s96, 0x1000, s96"]
    o += [f"s_cmp_lg_u32 s2, {wgsel}", "s_cselect_b32 s96, 0x1000, s96"]
    o += ["s_memrealtime s[98:99]", "s_load_dwordx2 s[60:61], s[0:1], 88", "s_waitcnt lgkmcnt(0)",
          "s_mov_b32 s62, 0x10000000", "s_mov_b32 s63, 0x00020000",
          "s_lshl_b32 s97, s2, 4", f"s_add_u32 s97, s97, {64*MB + slot*65536}",
          "v_mov_b32 v4, s68", "v_mov_b32 v5, s69", "v_mov_b32 v6, s98", "v_mov_b32 v7, s99", "v_mov_b32 v2, 0",
          "buffer_store_dwordx4 v[4:7], v2, s[60:63], s97 offen"]
    for i in range(n):
        o += [f"s_sub_u32 s97, s{70+2*i}, s70", "v_mov_b32 v1, s97", f"v_mov_b32 v2, {4*i}",
              "buffer_store_dword v1, v2, s[92:95], s96 offen"]
    o += ["s_cmp_lg_u32 s3, 0", "s_cselect_b32 s96, 0x1000, s96"]
    for i in range(1, n):
        o += [f"v_mov_b32 v1, s{71+2*i}", f"v_mov_b32 v2, {4*i + 32}", "buffer_store_dword v1, v2, s[92:95], s96 offen"]
    return o

def code_prefetch(nbytes, va, vd):
    if "cpf" not in EXP: return []
    o = ["s_getpc_b64 s[98:99]", f"v_mbcnt_lo_u32_b32 v{va}, -1, 0", f"v_mbcnt_hi_u32_b32 v{va}, -1, v{va}",
         f"v_lshlrev_b32 v{va}, 6, v{va}", f"v_mov_b32 v{va+1}, s99", f"v_add_co_u32 v{va}, vcc, s98, v{va}", "s_nop 1",
         f"v_addc_co_u32 v{va+1}, vcc, 0, v{va+1}, vcc"]
    n = (nbytes + 4095) // 4096
    for i in range(n):
        o += [f"global_load_dword v{vd+i}, v[{va}:{va+1}], off"]
        if i < n - 1:
            o += [f"v_add_co_u32 v{va}, vcc, 0x1000, v{va}", "s_nop 1", f"v_addc_co_u32 v{va+1}, vcc, 0, v{va+1}, vcc"]
    return o

def header(name):
    return [f".globl {name}", ".p2align 8", f".type {name},@function", f"{name}:"]

def gen_proj():
    N = "proj_kernel"
    STG = 53248
    L_HR, L_HI, L_W = 32768, 36864, 40960
    ACC = 96
    def acc(b, c): return ACC + (b * 5 + c) * 16
    def fr(s, i): return 32 + s * 28 + i * 4
    VX = list(range(1, 9)); VH = 9; VW = [10, 88, 89]
    XA0 = [11, 12, 13, 14]; HA0 = [15, 16, 17, 18]; WA0 = 19
    XA = [20, 21, 22, 23]; HA = [24, 25, 26, 27]; WA = 28
    VL16 = 29
    VG = 90
    T0, T1, T2, T3 = 30, 31, 92, 93
    P = []
    P += [f"s_cmp_ge_u32 s2, 256", f"s_cbranch_scc1 {N}_done"]
    P += stamp(0) + code_prefetch(5400, 94, 90)
    P += ["s_load_dwordx2 s[4:5], s[0:1], 0", "s_load_dwordx4 s[32:35], s[0:1], 24",
          "s_load_dwordx2 s[36:37], s[0:1], 48",
          "s_load_dwordx2 s[40:41], s[0:1], 88"]
    P += ["v_lshrrev_b32 v1, 6, v0", "v_and_b32 v0, 63, v0", "v_readfirstlane_b32 s3, v1"]
    P += ["s_and_b32 s42, s2, 7", "s_lshr_b32 s43, s2, 3",
          "s_and_b32 s44, s42, 1", "s_lshl_b32 s44, s44, 2", "s_and_b32 s45, s43, 3", "s_add_u32 s44, s44, s45",
          "s_lshr_b32 s42, s42, 1", "s_lshl_b32 s42, s42, 3", "s_lshr_b32 s43, s43, 2", "s_add_u32 s43, s43, s42"]
    P += ["s_mov_b32 s42, s44"]
    P += ["s_lshl_b32 s44, s42, 8", "s_lshl_b32 s45, s3, 6", "s_add_u32 s44, s44, s45",
          "s_lshl_b32 s50, s3, 13", "s_lshl_b32 s51, s3, 10"]
    P += [f"v_lshrrev_b32 v{T0}, 3, v0", f"v_and_b32 v{T1}, 7, v0", f"v_lshrrev_b32 v{T2}, 4, v0",
          f"v_lshlrev_b32 v{VL16}, 4, v0"]
    P += [f"v_add_u32 v{T3}, s44, v{T0}", f"v_lshlrev_b32 v{T3}, 11, v{T3}",
          f"v_xor_b32 v{VX[0]}, v{T1}, v{T2}", f"v_lshlrev_b32 v{VX[0]}, 4, v{VX[0]}",
          f"v_add_u32 v{VX[0]}, v{VX[0]}, v{T3}"]
    for q in range(1, 8):
        if q % 2 == 1:
            P += [f"v_xor_b32 v{VX[q]}, 64, v{VX[0]}", f"v_add_u32 v{VX[q]}, {q*8*2048}, v{VX[q]}"]
        else:
            P += [f"v_add_u32 v{VX[q]}, {q*8*2048}, v{VX[0]}"]
    P += ["s_lshl_b32 s45, s43, 5", "s_lshl_b32 s46, s3, 3", "s_add_u32 s45, s45, s46",
          f"v_add_u32 v{T3}, s45, v{T0}", f"v_lshlrev_b32 v{T3}, 11, v{T3}",
          "s_lshl_b32 s46, s3, 2", f"v_add_u32 v{VH}, s46, v{T2}", f"v_and_b32 v{VH}, 7, v{VH}",
          f"v_xor_b32 v{VH}, v{VH}, v{T1}", f"v_lshlrev_b32 v{VH}, 4, v{VH}", f"v_add_u32 v{VH}, v{VH}, v{T3}"]
    P += [f"v_lshrrev_b32 v{T3}, 2, v0", "s_lshl_b32 s46, s3, 4", f"v_add_u32 v{T3}, s46, v{T3}",
          "s_movk_i32 s46, 6144", f"v_mul_lo_u32 v{T3}, v{T3}, s46",
          f"v_and_b32 v{VW[0]}, 3, v0", f"v_lshlrev_b32 v{VW[0]}, 4, v{VW[0]}", f"v_add_u32 v{VW[0]}, v{VW[0]}, v{T3}",
          "s_lshl_b32 s46, s43, 6", f"v_add_u32 v{VW[0]}, s46, v{VW[0]}",
          f"v_add_u32 v{VW[1]}, 2048, v{VW[0]}", f"v_add_u32 v{VW[2]}, 4096, v{VW[0]}"]
    P += ["s_waitcnt lgkmcnt(0)"]
    P += srd(8, 4, 5, 4 * MB) + srd(12, 32, 33, 2 * MB) + srd(16, 34, 35, 2 * MB) + srd(20, 36, 37, 6 * MB)
    def dma():
        out = []
        for q in range(8):
            out.append([f"s_add_u32 m0, s53, {1024*q}", f"buffer_load_dwordx4 v{VX[q]}, s[8:11], s45 offen lds"])
        out.append([f"s_add_u32 m0, s54, {L_HR}", f"buffer_load_dwordx4 v{VH}, s[12:15], s45 offen lds"])
        out.append([f"s_add_u32 m0, s54, {L_HI}", f"buffer_load_dwordx4 v{VH}, s[16:19], s45 offen lds"])
        for c in range(3):
            out.append([f"s_add_u32 m0, s54, {L_W + 4096*c}", f"buffer_load_dwordx4 v{VW[c]}, s[20:23], s46 offen lds"])
        return out
    def dma_adv():
        return ["s_add_u32 s47, s47, %d" % STG, "s_cmp_ge_u32 s47, %d" % (3 * STG), "s_cselect_b32 s47, 0, s47",
                "s_add_u32 s53, s47, s50", "s_add_u32 s54, s47, s51",
                "s_add_u32 s45, s45, 128", "s_and_b32 s45, s45, 0x7ff", "s_mul_i32 s46, s45, 3072"]
    P += ["s_mov_b32 s47, 0", "s_mov_b32 s45, 0", "s_mov_b32 s46, 0", "s_mov_b32 s53, s50", "s_mov_b32 s54, s51"]
    for a_, b_ in dma():
        P += [a_, "s_nop 0", b_]
    P += dma_adv()
    P += stamp(1)
    F = []
    F += srd(24, 40, 41, WS_SIZE)
    F += [f"v_lshrrev_b32 v{T0}, 5, v0", f"v_lshrrev_b32 v{T1}, 1, v0", f"v_and_b32 v{T1}, 7, v{T1}",
          f"v_xor_b32 v{T0}, v{T0}, v{T1}",
          f"v_and_b32 v{T1}, 31, v0", f"v_lshlrev_b32 v{T1}, 7, v{T1}"]
    for ks in range(4):
        F += [f"v_xor_b32 v{T2}, {2*ks}, v{T0}", f"v_lshlrev_b32 v{T2}, 4, v{T2}", f"v_add_u32 v{T2}, v{T2}, v{T1}",
              f"v_add_u32 v{XA0[ks]}, s50, v{T2}", f"v_add_u32 v{HA0[ks]}, {L_HR}, v{T2}"]
    F += [f"v_lshrrev_b32 v{T0}, 5, v0", f"v_lshlrev_b32 v{T0}, 3, v{T0}", f"v_bfe_u32 v{T1}, v0, 2, 2",
          f"v_add_u32 v{T0}, v{T0}, v{T1}", f"v_lshlrev_b32 v{T0}, 6, v{T0}",
          f"v_bfe_u32 v{T1}, v0, 4, 1", f"v_lshlrev_b32 v{T1}, 5, v{T1}", f"v_add_u32 v{T0}, v{T0}, v{T1}",
          f"v_and_b32 v{T1}, 3, v0", f"v_lshlrev_b32 v{T1}, 3, v{T1}", f"v_add_u32 v{T0}, v{T0}, v{T1}",
          f"v_add_u32 v{WA0}, {L_W}, v{T0}"]
    for i in range(4):
        F += [f"v_mov_b32 v{XA[i]}, v{XA0[i]}", f"v_mov_b32 v{HA[i]}, v{HA0[i]}"]
    F += [f"v_mov_b32 v{WA}, v{WA0}", "s_mov_b32 s48, 0", "s_mov_b32 s49, 0"]
    for r in range(ACC, ACC + 160):
        F += [f"v_mov_b32 v{r}, 0"]
    d1 = dma()
    per = (len(F) + len(d1) - 1) // len(d1)
    for i, (a_, b_) in enumerate(d1):
        chunk = F[i * per:(i + 1) * per]
        P += [a_] + chunk[:1] + [b_] + chunk[1:]
    P += dma_adv()
    def reads(s, ks):
        return [f"ds_read_b128 {vr(fr(s,0),4)}, v{XA[ks]}",
                f"ds_read_b128 {vr(fr(s,2),4)}, v{HA[ks]}",
                f"ds_read_b128 {vr(fr(s,3),4)}, v{HA[ks]} offset:4096",
                f"ds_read_b64_tr_b16 {vr(fr(s,4),2)}, v{WA} offset:{ks*1024}",
                f"ds_read_b64_tr_b16 {vr(fr(s,4)+2,2)}, v{WA} offset:{ks*1024+256}",
                f"ds_read_b64_tr_b16 {vr(fr(s,5),2)}, v{WA} offset:{4096+ks*1024}",
                f"ds_read_b64_tr_b16 {vr(fr(s,5)+2,2)}, v{WA} offset:{4096+ks*1024+256}",
                f"ds_read_b64_tr_b16 {vr(fr(s,6),2)}, v{WA} offset:{8192+ks*1024}",
                f"ds_read_b64_tr_b16 {vr(fr(s,6)+2,2)}, v{WA} offset:{8192+ks*1024+256}",
                f"ds_read_b128 {vr(fr(s,1),4)}, v{XA[ks]} offset:4096"]
    def mfmas(s):
        out = []
        for b in range(2):
            X = fr(s, b)
            if "p16" in EXP:
                for c in range(5):
                    out += [mfma16(acc(b, c) + 8 * s, X, fr(s, 2 + c)), mfma16(acc(b, c) + 8 * s + 4, X, fr(s, 2 + c))]
                continue
            out += [mfma32(acc(b, 0), X, fr(s, 2)), mfma32(acc(b, 1), X, fr(s, 3)),
                    mfma32(acc(b, 2), fr(s, 4), X), mfma32(acc(b, 3), fr(s, 5), X),
                    mfma32(acc(b, 4), X, fr(s, 6))]
        return out
    def rd_adv():
        o = ["s_add_u32 s48, s48, %d" % STG, "s_cmp_ge_u32 s48, %d" % (3 * STG), "s_cselect_b32 s48, 0, s48"]
        for i in range(4):
            o += [f"v_add_u32 v{XA[i]}, s48, v{XA0[i]}", f"v_add_u32 v{HA[i]}, s48, v{HA0[i]}"]
        o += [f"v_add_u32 v{WA}, s48, v{WA0}"]
        return o
    P += stamp(2) + stamp(3)
    P += ["s_waitcnt vmcnt(13)", "s_barrier"] + stamp(4) + reads(0, 0)
    def body(do_dma, last):
        o = []
        d = dma() if do_dma else []
        def mix(rd, dd):
            out = []
            for i, r in enumerate(rd):
                if i < len(dd): out += [dd[i][0], r, dd[i][1]]
                else: out += [r]
            return out
        def mix2(rd, dd):
            out = []; di = 0
            for i, r in enumerate(rd):
                if i % 2 == 1 and di < len(dd): out += [dd[di][0], r, dd[di][1]]; di += 1
                else: out += [r]
            assert di == len(dd)
            return out
        if "k1d3" in EXP:
            o += ["s_waitcnt lgkmcnt(0)"]
            o += spread(mfmas(0), mix2(reads(1, 1), d[:5]))
            o += ["s_waitcnt lgkmcnt(0)"]
            o += spread(mfmas(1), mix2(reads(0, 2), d[5:9]))
            o += ["s_waitcnt lgkmcnt(0)"]
            o += spread(mfmas(0), mix2(reads(1, 3), d[9:]) + (dma_adv() if do_dma else []) + ([] if last else rd_adv()))
        else:
            o += ["s_waitcnt lgkmcnt(0)"]
            o += spread(mfmas(0), mix(reads(1, 1), d[:7]))
            o += ["s_waitcnt lgkmcnt(0)"]
            o += spread(mfmas(1), mix(reads(0, 2), d[7:]) + (dma_adv() if do_dma else []))
            o += ["s_waitcnt lgkmcnt(0)"]
            o += spread(mfmas(0), reads(1, 3) + ([] if last else rd_adv()))
        o += ["s_waitcnt lgkmcnt(0)"]
        m = mfmas(1)
        if last:
            o += m
        else:
            np_ = 1 if "k1n1" in EXP else (3 if "k1n3" in EXP else 2)
            o += m[:np_] + [f"s_waitcnt vmcnt({13 if do_dma else 0})", "s_barrier"] + spread(m[np_:], reads(0, 0))
        return o
    B = body(True, False)
    loop_tail = ["s_add_u32 s49, s49, 1", "s_cmp_lt_u32 s49, 14", f"s_cbranch_scc1 {N}_loop"]
    B14 = body(False, False)
    B15 = body(False, True)
    def blk_epi(b, c, pk, sreg):
        a = acc(b, c); o = []
        if c == 2:
            for r in range(16): o += [f"v_mul_f32 v{a+r}, s57, v{a+r}"]
        for r in range(8):
            src = r if (c != 4 or "a32" in EXP) else [0, 1, 4, 5, 2, 3, 6, 7][r]
            o += [f"v_cvt_pk_bf16_f32 v{pk+r}, v{a+2*src}, v{a+2*src+1}"]
        if c < 2:
            o += ["s_nop 1"]
            for t in range(2):
                o += [f"v_permlane32_swap_b32 v{pk+4*t}, v{pk+4*t+2}", f"v_permlane32_swap_b32 v{pk+4*t+1}, v{pk+4*t+3}"]
        for t in range(2):
            o += [f"buffer_store_dwordx4 {vr(pk+4*t,4)}, v{VL16}, s[24:27], s{sreg} offen offset:{(2*b+t)*1024}"]
        return o
    ADDR = ["s_lshl_b32 s45, s43, 17", "s_lshl_b32 s46, s42, 14", "s_add_u32 s45, s45, s46",
            "s_lshl_b32 s46, s3, 12", "s_add_u32 s45, s45, s46", f"s_mov_b32 s57, {hex(f32bits(QSCALE))}", "s_mov_b32 s46, s45"]
    if "newlast" in EXP:
        def reads1(s_, ks, rb):
            r = reads(s_, ks)
            return [f"ds_read_b128 {vr(fr(s_,rb),4)}, v{XA[ks]} offset:{4096*rb}"] + r[1:9]
        def mf1(s_, rb): return mfmas(s_)[5 * rb:5 * rb + 5]
        epi0 = []
        for c in range(5):
            epi0 += blk_epi(0, c, 2 + 8 * (c & 1), 45) + [f"s_add_u32 s45, s45, {4*MB}"]
        B15 = []
        for p in range(2):
            for ks in range(4):
                st = (p * 4 + ks) & 1
                B15 += ["s_waitcnt lgkmcnt(0)"]
                nxt = reads1(1 - st, ks + 1, p) if ks < 3 else (reads1(1 - st, 0, 1) if p == 0 else [])
                fill = list(nxt)
                if p == 0 and ks == 0: fill += ADDR
                if p == 1:
                    n = len(epi0)
                    lo = [0, 0, n // 3, 2 * n // 3][ks] if ks > 0 else 0
                    hi = [0, n // 3, 2 * n // 3, n][ks]
                    fill += epi0[lo:hi]
                B15 += spread(mf1(st, p), fill)
        E = stamp(5) + ["s_nop 11"]
        pk = 32
        for c in range(5):
            E += blk_epi(1, c, pk, 46) + [f"s_add_u32 s46, s46, {4*MB}"]
            pk = 32 + (pk - 32 + 8) % 56
    else:
        E = stamp(5) + ["s_nop 7"] + ADDR
        pk = 32
        for c in range(5):
            for b in range(2):
                E += blk_epi(b, c, pk, 45)
                pk = 32 + (pk - 32 + 8) % 56
            E += [f"s_add_u32 s45, s45, {4*MB}"]
    E += stamp(6) + ["s_waitcnt vmcnt(0)"] * STAMPS + stamp(7) + stamp_dump(8, 9)
    E += [f"{N}_done:", "s_endpgm"]
    text = header(N) + P + [f"{N}_loop:"] + B + loop_tail + B14 + B15 + E
    trace = P + B + loop_tail + B + loop_tail + B14 + B15 + E
    errs = check_trace(trace, N)
    return N, text, desc(N, 256), errs, (256, 256, 3 * STG)


ATT_OFF = 40.0
ATT_LMAX = 2.0 ** 60
def gen_attn(merged=False):
    N = "attn_kernel" if not merged else "mix_kernel_a"
    NST = 4; STG = 8192
    Q = {"A": 16, "B": 24}
    S = {"A": 32, "B": 48}
    Pk = {"A": 64, "B": 72}
    O = {"A": 80, "B": 96}
    L = {"A": 112, "B": 116}
    CN = {"A": 120, "B": 136}
    KF = [152, 160]
    VF = [168, 176]
    ONES = 184
    VL16 = 1; VRD = 2; VG = {"A": 3, "B": 4}; T0, T1, T2, T3 = 5, 6, 7, 8
    P = []
    if not merged:
        P += ["s_cmp_ge_u32 s2, 256", f"s_cbranch_scc1 {N}_done"]
        P += ["v_lshrrev_b32 v1, 6, v0", "v_and_b32 v0, 63, v0", "v_readfirstlane_b32 s3, v1"]
    P += stamp(0)
    P += ["s_load_dwordx2 s[40:41], s[0:1], 88", "s_load_dwordx2 s[4:5], s[0:1], 0", "s_load_dwordx2 s[38:39], s[0:1], 64"]
    P += ["s_and_b32 s42, s2, 7", "s_lshr_b32 s43, s2, 3", "s_lshl_b32 s42, s42, 2", "s_lshr_b32 s44, s43, 3",
          "s_add_u32 s42, s42, s44",
          "s_and_b32 s43, s43, 7",
          "s_lshl_b32 s43, s43, 3", "s_lshl_b32 s44, s3, 1", "s_add_u32 s43, s43, s44",
          "s_lshl_b32 s44, s42, 17"]
    P += [f"v_lshlrev_b32 v{VL16}, 4, v0"]
    P += ["s_waitcnt lgkmcnt(0)"] + srd(24, 40, 41, WS_SIZE) + srd(8, 4, 5, 4 * MB) + srd(28, 38, 39, 2048)
    P += ["s_lshl_b32 s45, s43, 11", "s_add_u32 s45, s45, s44", f"s_add_u32 s45, s45, {WS_Q}",
          f"s_add_u32 s46, s44, {WS_K}", f"s_add_u32 s47, s44, {WS_V}"]
    if "rot" in EXP: P += ["s_bfe_u32 s58, s2, 0x30003", "s_lshl_b32 s58, s58, 14"]
    else: P += ["s_mov_b32 s58, 0"]
    P += ["s_add_u32 s59, s46, s58"]
    for i in range(4):
        P += [f"buffer_load_dwordx4 {vr(16+4*i,4)}, v{VL16}, s[24:27], s45 offen offset:{1024*i}"]
    for i in range(4):
        P += [f"buffer_load_dwordx4 {vr(KF[0]+4*i,4)}, v{VL16}, s[24:27], s59 offen offset:{1024*i}"]
    P += ["s_lshl_b32 s51, s3, 10", "s_add_u32 s61, s58, s51", "s_add_u32 s60, s61, 2048", "s_and_b32 s60, s60, 0x1ffff",
          "s_add_u32 s48, s46, s60", "s_add_u32 s49, s47, s61", "s_mov_b32 s50, s51"]
    def dma():
        return [["s_mov_b32 m0, s50", f"buffer_load_dwordx4 v{VL16}, s[24:27], s48 offen lds"],
                ["s_add_u32 m0, s50, 4096", f"buffer_load_dwordx4 v{VL16}, s[24:27], s49 offen lds"]]
    def dma_adv():
        return ["s_add_u32 s60, s60, 4096", "s_and_b32 s60, s60, 0x1ffff", "s_add_u32 s61, s61, 4096", "s_and_b32 s61, s61, 0x1ffff",
                "s_add_u32 s48, s46, s60", "s_add_u32 s49, s47, s61", f"s_add_u32 s50, s50, {STG}",
                f"s_and_b32 s50, s50, {NST*STG-1}"]
    for t in range(NST - 1):
        for a, b in dma(): P += [a, "s_nop 0", b]
        P += dma_adv()
    GX = 192
    P += ["s_lshl_b32 s62, s2, 3", "s_lshl_b32 s45, s3, 1", "s_add_u32 s62, s62, s45", "s_lshl_b32 s45, s62, 11",
          f"v_lshlrev_b32 v{T0}, 5, v0"]
    P += [f"buffer_load_dwordx4 v[{GX}:{GX+3}], v{T0}, s[8:11], s45 offen",
          f"buffer_load_dwordx4 v[{GX+4}:{GX+7}], v{T0}, s[8:11], s45 offen offset:16",
          f"buffer_load_dwordx4 v[{GX+8}:{GX+11}], v{T0}, s[8:11], s45 offen offset:2048",
          f"buffer_load_dwordx4 v[{GX+12}:{GX+15}], v{T0}, s[8:11], s45 offen offset:2064",
          f"buffer_load_dwordx4 v[{GX+16}:{GX+19}], v{T0}, s[28:31], 0 offen",
          f"buffer_load_dwordx4 v[{GX+20}:{GX+23}], v{T0}, s[28:31], 0 offen offset:16"]
    for r in list(range(80, 120)) + list(range(Pk["B"], Pk["B"] + 8)) + list(range(VF[0], VF[0] + 16)):
        P += [f"v_mov_b32 v{r}, 0"]
    P += [f"v_bfe_u32 v{T0}, v0, 2, 1", f"v_bfe_u32 v{T1}, v0, 4, 1", f"v_cmp_eq_u32 vcc, v{T0}, v{T1}",
          f"v_mov_b32 v{T2}, 0x3f803f80", "s_nop 0", f"v_cndmask_b32 v{ONES}, 0, v{T2}, vcc"]
    for i in range(1, 4): P += [f"v_mov_b32 v{ONES+i}, v{ONES}"]
    P += [f"v_mov_b32 v{VRD}, v{VL16}", "s_mov_b32 s52, 0", "s_mov_b32 s53, 0", "s_mov_b32 s63, 0x3f803f80"]
    P += [f"s_waitcnt vmcnt({2*(NST-1)+6})"]
    for X in "AB":
        P += [mfma32(S[X], KF[0], Q[X], "0"), mfma32(S[X], KF[0] + 4, Q[X] + 4),
              mfma32(CN[X], KF[1], Q[X], "0"), mfma32(CN[X], KF[1] + 4, Q[X] + 4)]
    P += ["s_nop 15"]
    for X in "AB":
        m = T0 if X == "A" else T1
        P += [f"v_max3_f32 v{m}, v{S[X]}, v{S[X]+1}, v{S[X]+2}"]
        vals = [S[X] + i for i in range(3, 16)] + [CN[X] + i for i in range(16)]
        for i in range(0, 28, 2):
            P += [f"v_max3_f32 v{m}, v{m}, v{vals[i]}, v{vals[i+1]}"]
        P += [f"v_max_f32 v{m}, v{m}, v{vals[28]}"]
    P += [f"v_mov_b32 v{T2}, v{T0}", f"v_mov_b32 v{T3}, v{T1}", "s_nop 1",
          f"v_permlane32_swap_b32 v{T0}, v{T2}", f"v_permlane32_swap_b32 v{T1}, v{T3}",
          f"v_max_f32 v{T0}, v{T0}, v{T2}", f"v_max_f32 v{T1}, v{T1}, v{T3}",
          f"s_mov_b32 s54, {hex(f32bits(-ATT_OFF))}",
          f"v_sub_f32 v{T0}, s54, v{T0}", f"v_sub_f32 v{T1}, s54, v{T1}"]
    for i in range(16):
        P += [f"v_mov_b32 v{CN['A']+i}, v{T0}", f"v_mov_b32 v{CN['B']+i}, v{T1}"]
    P += ["s_nop 1", mfma32(S["A"], KF[0], Q["A"], CN["A"]), mfma32(S["A"], KF[0] + 4, Q["A"] + 4)]
    P += stamp(1)
    def slot(X, kset_qk, vset_pv, rd):
        Y = "B" if X == "A" else "A"
        mf = [mfma32(S[Y], KF[kset_qk], Q[Y], CN[Y]), mfma32(S[Y], KF[kset_qk] + 4, Q[Y] + 4),
              mfma32(O[Y], VF[vset_pv], Pk[Y]), mfma16(L[Y], ONES, Pk[Y]),
              mfma32(O[Y], VF[vset_pv] + 4, Pk[Y] + 4), mfma16(L[Y], ONES, Pk[Y] + 4)]
        if "a16" in EXP:
            def two(d, a, b): return [mfma16(d, a, b), mfma16(d + 4, a, b)]
            def twoc(d, a, b, c): return [f"v_mfma_f32_16x16x32_bf16 {vr(d,4)}, {vr(a,4)}, {vr(b,4)}, {vr(c,4)}", f"v_mfma_f32_16x16x32_bf16 {vr(d+4,4)}, {vr(a,4)}, {vr(b+4,4)}, {vr(c,4)}"]
            mf = [twoc(S[Y], KF[kset_qk], Q[Y], CN[Y]), twoc(S[Y] + 8, KF[kset_qk] + 4, Q[Y], CN[Y]),
                  two(O[Y], VF[vset_pv], Pk[Y]), [mfma16(L[Y], ONES, Pk[Y])],
                  two(O[Y] + 8, VF[vset_pv] + 4, Pk[Y] + 4), [mfma16(L[Y], ONES, Pk[Y] + 4)]]
        e = [f"v_exp_f32 v{S[X]+i}, v{S[X]+i}" for i in range(16)]
        if "noexp" in EXP: e = [f"v_mov_b32 v{S[X]+i}, v{S[X]+i}" for i in range(16)]
        c = [f"v_cvt_pk_bf16_f32 v{Pk[X]+j}, v{S[X]+2*j}, v{S[X]+2*j+1}" for j in range(8)]
        va = e[0:3] + [c[0]] + e[3:5] + [c[1]] + e[5:7] + [c[2]] + e[7:9] + [c[3]] + e[9:11] + [c[4]] + e[11:13] + [c[5]] + e[13:16] + [c[6], c[7]]
        o = []
        if "ldot" in EXP:
            mf = [mf[0], mf[1], mf[2], mf[4]]
            dots = [f"v_dot2c_f32_bf16 v{L[Y]+(j%4)}, s63, v{Pk[Y]+j}" for j in range(8)]
            for i in range(4):
                o += [mf[i]]
                if i < 2: o += rd[2*i:2*i+2]
                o += va[6*i:6*i+3] + dots[2*i:2*i+1] + va[6*i+3:6*i+6] + dots[2*i+1:2*i+2]
            return o
        if "ladd" in EXP:
            mf = [mf[0], mf[1], mf[2], mf[4]]
            adds = [f"v_add_f32 v{L[X]+(i%4)}, v{L[X]+(i%4)}, v{S[X]+i}" for i in range(16)]
            va2 = []
            ai = 0
            for k_, ins in enumerate(va):
                va2.append(ins)
                if ins.startswith("v_cvt"):
                    va2 += adds[ai:ai+2]; ai += 2
            for i in range(4):
                o += [mf[i]]
                if i < 2: o += rd[2*i:2*i+2]
                o += va2[10*i:10*i+10]
            return o
        for i in range(6):
            if isinstance(mf[i], list):
                o += [mf[i][0]] + va[4*i:4*i+2]
                if len(mf[i]) > 1: o += [mf[i][1]]
                if i < 2: o += rd[2*i:2*i+2]
                o += va[4*i+2:4*i+4]
                continue
            o += [mf[i]]
            if i < 2: o += rd[2*i:2*i+2]
            o += va[4*i:4*i+4]
        return o
    def rds(kb_par, half):
        return [f"ds_read_b128 {vr(KF[1-kb_par],4)}, v{VRD} offset:{half*2048}",
                f"ds_read_b128 {vr(KF[1-kb_par]+4,4)}, v{VRD} offset:{half*2048+1024}",
                f"ds_read_b128 {vr(VF[kb_par],4)}, v{VRD} offset:{4096+half*2048}",
                f"ds_read_b128 {vr(VF[kb_par]+4,4)}, v{VRD} offset:{4096+half*2048+1024}"]
    B = [f"s_waitcnt vmcnt({2*(NST-2)})", "s_barrier"]
    d = dma()
    B += [d[0][0], "s_nop 0", d[0][1], d[1][0], "s_nop 0", d[1][1]] + dma_adv()
    B += slot("A", 0, 1, rds(0, 0))
    B += ["s_waitcnt lgkmcnt(0)"]
    B += slot("B", 1, 0, [])
    B += slot("A", 1, 0, rds(1, 1))
    B += ["s_waitcnt lgkmcnt(0)"]
    B += [f"s_add_u32 s53, s53, {STG}", f"s_and_b32 s53, s53, {NST*STG-1}", f"v_add_u32 v{VRD}, s53, v{VL16}"]
    B += slot("B", 0, 1, [])
    tail = ["s_add_u32 s52, s52, 1", "s_cmp_lt_u32 s52, 32", f"s_cbranch_scc1 {N}_loop"]
    E = stamp(2)
    if "ldot" in EXP:
        E += ["s_nop 1", mfma32(O["B"], VF[1], Pk["B"]), mfma32(O["B"], VF[1] + 4, Pk["B"] + 4)]
        E += [f"v_dot2c_f32_bf16 v{L['B']+(j%4)}, s63, v{Pk['B']+j}" for j in range(8)] + ["s_nop 3"]
        for X in "AB":
            E += [f"v_add_f32 v{L[X]}, v{L[X]}, v{L[X]+1}", f"v_add_f32 v{L[X]+2}, v{L[X]+2}, v{L[X]+3}", f"v_add_f32 v{L[X]}, v{L[X]}, v{L[X]+2}",
                  f"v_mov_b32 v{T1}, v{L[X]}", "s_nop 1", f"v_permlane32_swap_b32 v{L[X]}, v{T1}", f"v_add_f32 v{L[X]}, v{L[X]}, v{T1}"]
        E += ["s_nop 7"]
    else:
        E += ["s_nop 1", mfma32(O["B"], VF[1], Pk["B"]), mfma16(L["B"], ONES, Pk["B"]),
              mfma32(O["B"], VF[1] + 4, Pk["B"] + 4), mfma16(L["B"], ONES, Pk["B"] + 4), "s_nop 15"]
    E += [f"s_mov_b32 s54, {hex(f32bits(ATT_LMAX))}",
          f"v_cmp_gt_f32 vcc, s54, v{L['A']}", f"v_cmp_gt_f32 s[56:57], s54, v{L['B']}", "s_nop 1",
          "s_and_b64 vcc, vcc, s[56:57]", "s_cmp_eq_u64 vcc, exec", f"s_cbranch_scc0 {N}_fallback"]
    E2 = [f"{N}_final:"]
    E2 += ["s_lshl_b32 s45, s43, 16", "s_lshl_b32 s46, s42, 11", "s_add_u32 s45, s45, s46", f"s_add_u32 s45, s45, {WS_O}"]
    for X in "AB":
        E2 += [f"v_rcp_f32 v{T0}, v{L[X]}", "s_nop 0"]
        for i in range(16):
            E2 += [f"v_mul_f32 v{O[X]+i}, v{O[X]+i}, v{T0}"]
        for j in range(8):
            E2 += [f"v_cvt_pk_bf16_f32 v{S[X]+j}, v{O[X]+2*j}, v{O[X]+2*j+1}"]
        for t in range(2):
            E2 += [f"buffer_store_dwordx4 {vr(S[X]+4*t,4)}, v{VL16}, s[24:27], s45 offen offset:{1024*t}"]
        E2 += ["s_add_u32 s45, s45, 65536"]
    A0, A1 = 64, 65
    E2 += ["s_waitcnt vmcnt(4)", f"v_mov_b32 v{A0}, 0", f"v_mov_b32 v{A1}, 0"]
    for i in range(8):
        w = GX + 16 + i
        E2 += [f"v_lshlrev_b32 v66, 16, v{w}", f"v_and_b32 v67, 0xffff0000, v{w}"]
        for r, a in ((0, A0), (1, A1)):
            x = GX + 8 * r + i
            E2 += [f"v_lshlrev_b32 v68, 16, v{x}", f"v_and_b32 v69, 0xffff0000, v{x}",
                  "v_mul_f32 v68, v68, v66", "v_mul_f32 v69, v69, v67",
                  "v_cvt_pk_bf16_f32 v70, v68, v69",
                  "v_lshlrev_b32 v68, 16, v70", "v_and_b32 v69, 0xffff0000, v70",
                  f"v_add_f32 v{a}, v{a}, v68", f"v_add_f32 v{a}, v{a}, v69"]
    for off in (0x041F, 0x081F, 0x101F, 0x201F, 0x401F):
        E2 += [f"ds_swizzle_b32 v66, v{A0} offset:{off}", f"ds_swizzle_b32 v67, v{A1} offset:{off}",
              "s_waitcnt lgkmcnt(0)", f"v_add_f32 v{A0}, v{A0}, v66", f"v_add_f32 v{A1}, v{A1}, v67"]
    E2 += ["s_nop 0", f"v_readlane_b32 s55, v{A0}, 32", f"v_readlane_b32 s56, v{A1}, 32", "s_nop 1",
          f"v_add_f32 v{A0}, s55, v{A0}", f"v_add_f32 v{A1}, s56, v{A1}",
          "v_cmp_eq_u32 vcc, 1, v0", "s_nop 1", f"v_cndmask_b32 v{A0}, v{A0}, v{A1}, vcc",
          f"v_cvt_pk_bf16_f32 v{A0}, v{A0}, v{A0}", f"v_lshlrev_b32 v{A0}, 16, v{A0}",
          f"v_mul_f32 v{A0}, {hex(f32bits(-LOG2E))}, v{A0}", f"v_exp_f32 v{A0}, v{A0}", "s_nop 0",
          f"v_add_f32 v{A0}, 1.0, v{A0}", f"v_rcp_f32 v{A0}, v{A0}", "s_nop 0",
          f"v_cvt_pk_bf16_f32 v{A0}, v{A0}, v{A0}", f"v_lshlrev_b32 v{VG['A']}, 16, v{A0}"]
    E2 += [f"v_lshlrev_b32 v{T0}, 2, v0", "s_lshl_b32 s45, s62, 2", f"s_add_u32 s45, s45, {WS_G}",
           "v_cmp_gt_u32 vcc, 2, v0", "s_and_saveexec_b64 s[58:59], vcc",
           f"buffer_store_dword v{VG['A']}, v{T0}, s[24:27], s45 offen", "s_mov_b64 exec, s[58:59]"]
    E2 += stamp(3) + ["s_waitcnt vmcnt(0)"] + stamp(4) + stamp_dump(5, 9, 1)
    E2 += [f"{N}_done:", "s_endpgm"]
    F = [f"{N}_fallback:", "s_waitcnt vmcnt(0)"]
    M = {"A": 9, "B": 10}; AL = 11
    for X in "AB":
        F += [f"v_mov_b32 v{M[X]}, 0xff7fffff", f"v_mov_b32 v{L[X]}, 0"]
        for i in range(16): F += [f"v_mov_b32 v{O[X]+i}, 0"]
    F += [f"s_add_u32 s46, s44, {WS_K}", f"s_add_u32 s47, s44, {WS_V}", "s_mov_b32 s52, 0"]
    FB = []
    FB += [f"buffer_load_dwordx4 {vr(KF[0],4)}, v{VL16}, s[24:27], s46 offen",
           f"buffer_load_dwordx4 {vr(KF[0]+4,4)}, v{VL16}, s[24:27], s46 offen offset:1024",
           f"buffer_load_dwordx4 {vr(VF[0],4)}, v{VL16}, s[24:27], s47 offen",
           f"buffer_load_dwordx4 {vr(VF[0]+4,4)}, v{VL16}, s[24:27], s47 offen offset:1024",
           "s_waitcnt vmcnt(0)"]
    for X in "AB":
        FB += [mfma32(S[X], KF[0], Q[X], "0"), mfma32(S[X], KF[0] + 4, Q[X] + 4), "s_nop 15"]
        FB += [f"v_max3_f32 v{T0}, v{S[X]}, v{S[X]+1}, v{M[X]}"]
        for i in range(2, 16, 2): FB += [f"v_max3_f32 v{T0}, v{T0}, v{S[X]+i}, v{S[X]+i+1}"]
        FB += [f"v_mov_b32 v{T1}, v{T0}", "s_nop 1", f"v_permlane32_swap_b32 v{T0}, v{T1}", f"v_max_f32 v{T0}, v{T0}, v{T1}",
               f"v_sub_f32 v{AL}, v{M[X]}, v{T0}", f"v_exp_f32 v{AL}, v{AL}", f"v_mov_b32 v{M[X]}, v{T0}",
               f"v_mul_f32 v{L[X]}, v{L[X]}, v{AL}"]
        for i in range(16):
            FB += [f"v_sub_f32 v{S[X]+i}, v{S[X]+i}, v{T0}", f"v_exp_f32 v{S[X]+i}, v{S[X]+i}", f"v_mul_f32 v{O[X]+i}, v{O[X]+i}, v{AL}"]
        for j in range(8):
            FB += [f"v_cvt_pk_bf16_f32 v{Pk[X]+j}, v{S[X]+2*j}, v{S[X]+2*j+1}",
                   f"v_lshlrev_b32 v{T1}, 16, v{Pk[X]+j}", f"v_and_b32 v{T2}, 0xffff0000, v{Pk[X]+j}",
                   f"v_add_f32 v{L[X]}, v{L[X]}, v{T1}", f"v_add_f32 v{L[X]}, v{L[X]}, v{T2}"]
        FB += ["s_nop 1", mfma32(O[X], VF[0], Pk[X]), mfma32(O[X], VF[0] + 4, Pk[X] + 4)]
    FB += ["s_nop 15", "s_add_u32 s46, s46, 2048", "s_add_u32 s47, s47, 2048", "s_add_u32 s52, s52, 1", "s_cmp_lt_u32 s52, 64",
           f"s_cbranch_scc1 {N}_fbloop"]
    FE = []
    for X in "AB":
        FE += [f"v_mov_b32 v{T1}, v{L[X]}", "s_nop 1", f"v_permlane32_swap_b32 v{L[X]}, v{T1}", f"v_add_f32 v{L[X]}, v{L[X]}, v{T1}"]
    FE += [f"s_branch {N}_final"]
    text = (header(N) if not merged else []) + P + [f"{N}_loop:"] + B + tail + E + E2 + F + [f"{N}_fbloop:"] + FB + FE
    errs = check_trace(P + B + tail + B + tail + E + E2, N)
    errs += check_trace(P + B + tail + E + F + FB + FB + FE + E2, N + "_fb")
    return N, text, desc(N, 216), errs, (256, 256, NST * STG)


def mix(rd, dd):
    out = []
    for i, r in enumerate(rd):
        if i < len(dd): out += [dd[i][0], r, dd[i][1]] if dd[i][0] else [r, dd[i][1]]
        else: out += [r]
    for j in range(len(rd), len(dd)):
        out += ([dd[j][0], "s_nop 0"] if dd[j][0] else []) + [dd[j][1]]
    return out

def kloop(N, nkt, nst, ndma, dma, dma_adv, reads, mfmas, rd_adv, cnt_sreg, npre=1, late=0, mid=[]):
    pre = [f"s_waitcnt vmcnt({ndma*(nst-2-late)})", "s_barrier"] + reads(0, 0) + [f"s_mov_b32 s{cnt_sreg}, 0"]
    for i in range(late):
        pre += mix([], dma()) + dma_adv()
    def body(do_dma, last, inflight):
        o = []
        d = dma() if do_dma else []
        h = (len(d) + 1) // 2
        o += ["s_waitcnt lgkmcnt(0)"]
        o += spread(mfmas(0, 0), mix(reads(1, 1), d[:h]))
        o += ["s_waitcnt lgkmcnt(0)"]
        o += spread(mfmas(1, 1), mix(reads(0, 2), d[h:]) + (dma_adv() if do_dma else []))
        o += ["s_waitcnt lgkmcnt(0)"]
        o += spread(mfmas(0, 2), reads(1, 3) + ([] if last else rd_adv()))
        o += ["s_waitcnt lgkmcnt(0)"]
        m = mfmas(1, 3)
        if last:
            o += m
        else:
            o += m[:npre] + [f"s_waitcnt vmcnt({inflight*ndma})", "s_barrier"] + spread(m[npre:], reads(0, 0))
        return o
    nmain = nkt - (nst - 1)
    B = body(True, False, nst - 2)
    tail = [f"s_add_u32 s{cnt_sreg}, s{cnt_sreg}, 1", f"s_cmp_lt_u32 s{cnt_sreg}, {nmain}", f"s_cbranch_scc1 {N}_loop"]
    rest = []
    for i in range(nst - 1):
        last = (i == nst - 2)
        rest += body(False, last, nst - 3 - i if not last else 0)
    text = [f"{N}_loop:"] + B + tail + mid + rest
    trace = B + tail + B + tail + mid + rest
    return pre, text, trace

def gen_ygemm(merged=False):
    N = "ygemm_kernel" if not merged else "mix_kernel_y"
    NST = 4; STG = 32768; L_B = 16384
    LB0 = 32768 if merged else 0
    ACC = 64
    def acc(i, j): return ACC + (i * 2 + j) * 16
    def fr(s, i): return 32 + s * 16 + i * 4
    VL16 = 1; VB = [2, 3, 4, 5]; AA0 = 6; BA0 = [7, 8, 9, 10]; AA = 11; BA = [12, 13, 14, 15]
    T0, T1, T2, T3 = 16, 17, 18, 19
    P = []
    if not merged:
        P += ["s_cmp_ge_u32 s2, 256", f"s_cbranch_scc1 {N}_done"]
        P += ["v_lshrrev_b32 v1, 6, v0", "v_and_b32 v0, 63, v0", "v_readfirstlane_b32 s3, v1"]
    P += stamp(0)
    P += ["s_and_b32 s42, s2, 1",
          "s_load_dwordx4 s[4:7], s[0:1], 8", "s_load_dwordx2 s[40:41], s[0:1], 88"]
    P += ["s_bfe_u32 s44, s2, 0x10001", "s_lshl_b32 s44, s44, 2", "s_bfe_u32 s45, s2, 0x20003", "s_add_u32 s44, s44, s45",
          "s_bfe_u32 s45, s2, 0x10002", "s_lshl_b32 s45, s45, 3", "s_lshr_b32 s46, s2, 5", "s_add_u32 s45, s45, s46"]
    P += [f"v_lshlrev_b32 v{VL16}, 4, v0"]
    P += [f"v_lshrrev_b32 v{T0}, 3, v0", f"v_and_b32 v{T1}, 7, v0", f"v_lshrrev_b32 v{T2}, 4, v0",
          "s_lshl_b32 s46, s45, 7", "s_lshl_b32 s47, s3, 5", "s_add_u32 s46, s46, s47",
          f"v_add_u32 v{T3}, s46, v{T0}", f"v_lshlrev_b32 v{T3}, 12, v{T3}",
          f"v_xor_b32 v{VB[0]}, v{T1}, v{T2}", f"v_lshlrev_b32 v{VB[0]}, 4, v{VB[0]}", f"v_add_u32 v{VB[0]}, v{VB[0]}, v{T3}"]
    for q in range(1, 4):
        if q % 2: P += [f"v_xor_b32 v{VB[q]}, 64, v{VB[0]}", f"v_add_u32 v{VB[q]}, {q*8*4096}, v{VB[q]}"]
        else: P += [f"v_add_u32 v{VB[q]}, {q*8*4096}, v{VB[0]}"]
    P += ["s_and_b32 s46, s3, 1", "s_lshl_b32 s46, s46, 13", f"s_add_u32 s46, s46, {LB0}", f"v_add_u32 v{AA0}, s46, v{VL16}",
          "s_lshr_b32 s46, s3, 1", "s_lshl_b32 s46, s46, 13", f"s_add_u32 s46, s46, {L_B + LB0}"]
    P += [f"v_lshrrev_b32 v{T0}, 5, v0", f"v_lshrrev_b32 v{T1}, 1, v0", f"v_and_b32 v{T1}, 7, v{T1}",
          f"v_xor_b32 v{T0}, v{T0}, v{T1}", f"v_and_b32 v{T1}, 31, v0", f"v_lshlrev_b32 v{T1}, 7, v{T1}",
          f"v_add_u32 v{T1}, s46, v{T1}"]
    for ks in range(4):
        P += [f"v_xor_b32 v{T2}, {2*ks}, v{T0}", f"v_lshlrev_b32 v{T2}, 4, v{T2}", f"v_add_u32 v{BA0[ks]}, v{T2}, v{T1}",
              f"v_mov_b32 v{BA[ks]}, v{BA0[ks]}"]
    P += [f"v_mov_b32 v{AA}, v{AA0}"]
    P += ["s_waitcnt lgkmcnt(0)", "s_cmp_eq_u32 s42, 0", "s_cselect_b32 s4, s4, s6", "s_cselect_b32 s5, s5, s7"] + srd(8, 4, 5, 8 * MB) + srd(24, 40, 41, WS_SIZE)
    P += ["s_lshl_b32 s47, s44, 2", "s_add_u32 s47, s47, s3", "s_lshl_b32 s47, s47, 17",
          f"s_mul_i32 s46, s42, {4*MB}", "s_add_u32 s47, s47, s46",
          "s_mov_b32 s48, 0", "s_lshl_b32 s50, s3, 12", "s_mov_b32 s49, s50", "s_mov_b32 s51, 0", "s_mov_b32 s57, s47"]
    if "yrot1" in EXP or "yrot2" in EXP:
        P += ["s_lshr_b32 s48, s2, 5", f"s_lshl_b32 s48, s48, {8 if 'yrot2' in EXP else 7}", "s_lshl_b32 s56, s48, 5", "s_add_u32 s47, s57, s56"]
    if "rot" in EXP:
        P += ["s_lshr_b32 s48, s2, 5", "s_lshl_b32 s48, s48, 2", "s_bfe_u32 s56, s2, 0x20003", "s_lshl_b32 s56, s56, 3",
              "s_add_u32 s48, s48, s56", "s_and_b32 s48, s48, 31", "s_lshl_b32 s48, s48, 7",
              "s_lshl_b32 s56, s48, 5", "s_add_u32 s47, s57, s56"]
    def dma():
        o = [[f"s_add_u32 m0, s49, {LB0}", f"buffer_load_dwordx4 v{VL16}, s[24:27], s47 offen lds"]]
        for u in range(1, 4):
            o.append([None, f"buffer_load_dwordx4 v{VL16}, s[24:27], s47 offen offset:{1024*u} lds"])
        for q in range(4):
            o.append([f"s_add_u32 m0, s49, {LB0 + L_B + 1024*q}", f"buffer_load_dwordx4 v{VB[q]}, s[8:11], s48 offen lds"])
        if "noydma" in EXP: o = [[a_, "s_nop 0"] for a_, b_ in o]
        return o
    def dma_adv():
        return ["s_add_u32 s48, s48, 128", "s_and_b32 s48, s48, 0xfff", "s_lshl_b32 s56, s48, 5", "s_add_u32 s47, s57, s56",
                f"s_add_u32 s49, s49, {STG}", f"s_and_b32 s49, s49, {NST*STG-1}"]
    LATE = 0 if "late0" in EXP else (2 if "late2" in EXP else 1)
    for t in range(NST - 1 - LATE):
        P += mix([], dma()) + dma_adv()
    for r in range(ACC, ACC + 64): P += [f"v_mov_b32 v{r}, 0"]
    def reads(s_, ks):
        if "noyrd" in EXP: return ["s_nop 0"] * 4
        return [f"ds_read_b128 {vr(fr(s_,0),4)}, v{AA} offset:{ks*1024}",
                f"ds_read_b128 {vr(fr(s_,2),4)}, v{BA[ks]}",
                f"ds_read_b128 {vr(fr(s_,3),4)}, v{BA[ks]} offset:4096",
                f"ds_read_b128 {vr(fr(s_,1),4)}, v{AA} offset:{4096+ks*1024}"]
    def mfmas(s_, ks=0):
        if "noy" in EXP: return ["s_nop 0"] * 4
        if "y16" in EXP:
            o = []
            for (i, j) in ((0, 0), (0, 1), (1, 0), (1, 1)):
                o += [mfma16(acc(i, j) + 8 * s_, fr(s_, i), fr(s_, 2 + j)), mfma16(acc(i, j) + 8 * s_ + 4, fr(s_, i), fr(s_, 2 + j))]
            return o
        return [mfma32(acc(0, 0), fr(s_, 0), fr(s_, 2)), mfma32(acc(0, 1), fr(s_, 0), fr(s_, 3)),
                mfma32(acc(1, 0), fr(s_, 1), fr(s_, 2)), mfma32(acc(1, 1), fr(s_, 1), fr(s_, 3))]
    def rd_adv():
        o = [f"s_add_u32 s51, s51, {STG}", f"s_and_b32 s51, s51, {NST*STG-1}", f"v_add_u32 v{AA}, s51, v{AA0}"]
        for i in range(4): o += [f"v_add_u32 v{BA[i]}, s51, v{BA0[i]}"]
        return o
    P += stamp(1)
    pre, ktext, ktrace = kloop(N, 32, NST, 8, dma, dma_adv, reads, mfmas, rd_adv, 52, late=LATE)
    E = ["s_nop 15"] + stamp(2)
    E += ["s_lshl_b32 s46, s44, 2", "s_and_b32 s47, s3, 1", "s_lshl_b32 s47, s47, 1", "s_add_u32 s46, s46, s47", "s_lshl_b32 s46, s46, 17",
          "s_lshl_b32 s47, s45, 2", "s_lshr_b32 s48, s3, 1", "s_lshl_b32 s48, s48, 1", "s_add_u32 s47, s47, s48", "s_lshl_b32 s47, s47, 11",
          "s_add_u32 s46, s46, s47", f"s_mul_i32 s47, s42, {4*MB}", "s_add_u32 s46, s46, s47", f"s_add_u32 s46, s46, {WS_Y1}"]
    pk = 32
    for i in range(2):
        for j in range(2):
            a = acc(i, j)
            for r in range(8): E += [f"v_cvt_pk_bf16_f32 v{pk+r}, v{a+2*r}, v{a+2*r+1}"]
            for t in range(2):
                E += [f"buffer_store_dwordx4 {vr(pk+4*t,4)}, v{VL16}, s[24:27], s46 offen offset:{j*2048+t*1024}"]
            pk = 32 + (pk - 32 + 8) % 32
        E += ["s_add_u32 s46, s46, 131072"]
    E += stamp(3) + ["s_waitcnt vmcnt(0)"] * STAMPS + stamp(4) + stamp_dump(5, 9, 2, 128 if merged else 0)
    E += [f"{N}_done:", "s_endpgm"]
    text = (header(N) if not merged else []) + P + pre + ktext + E
    errs = check_trace(P + pre + ktrace + E, N)
    return N, text, desc(N, 128), errs, (256, 256, NST * STG)

def gen_ygemm16(merged=False):
    N = "ygemm_kernel" if not merged else "mix_kernel_y"
    NST = 4; STG = 32768; L_B = 16384
    LB0 = 32768 if merged else 0
    ACC = 72
    def acc(i, j): return ACC + (i * 4 + j) * 4
    def fa(s, i): return 24 + s * 8 + i * 4
    def fb(s, j): return 40 + s * 16 + j * 4
    VL16 = 1; VB = [2, 3, 4, 5]; AA0 = 6; BA0 = [7, 8]; AA = 11; BA = [12, 13]; VY = 14
    T0, T1, T2, T3 = 16, 17, 18, 19
    P = []
    if not merged:
        P += ["s_cmp_ge_u32 s2, 256", f"s_cbranch_scc1 {N}_done"]
        P += ["v_lshrrev_b32 v1, 6, v0", "v_and_b32 v0, 63, v0", "v_readfirstlane_b32 s3, v1"]
    P += stamp(0)
    P += ["s_and_b32 s42, s2, 1",
          "s_load_dwordx4 s[4:7], s[0:1], 8", "s_load_dwordx2 s[40:41], s[0:1], 88"]
    P += ["s_bfe_u32 s44, s2, 0x10001", "s_lshl_b32 s44, s44, 2", "s_bfe_u32 s45, s2, 0x20003", "s_add_u32 s44, s44, s45",
          "s_bfe_u32 s45, s2, 0x10002", "s_lshl_b32 s45, s45, 3", "s_lshr_b32 s46, s2, 5", "s_add_u32 s45, s45, s46"]
    P += [f"v_lshlrev_b32 v{VL16}, 4, v0"]
    P += [f"v_lshrrev_b32 v{T0}, 3, v0", f"v_and_b32 v{T1}, 7, v0", f"v_lshrrev_b32 v{T2}, 4, v0",
          "s_lshl_b32 s46, s45, 7", "s_lshl_b32 s47, s3, 5", "s_add_u32 s46, s46, s47",
          f"v_add_u32 v{T3}, s46, v{T0}", f"v_lshlrev_b32 v{T3}, 12, v{T3}",
          f"v_xor_b32 v{VB[0]}, v{T1}, v{T2}", f"v_lshlrev_b32 v{VB[0]}, 4, v{VB[0]}", f"v_add_u32 v{VB[0]}, v{VB[0]}, v{T3}"]
    for q in range(1, 4):
        if q % 2: P += [f"v_xor_b32 v{VB[q]}, 64, v{VB[0]}", f"v_add_u32 v{VB[q]}, {q*8*4096}, v{VB[q]}"]
        else: P += [f"v_add_u32 v{VB[q]}, {q*8*4096}, v{VB[0]}"]
    P += [f"v_and_b32 v{T0}, 15, v0", f"v_lshrrev_b32 v{T1}, 4, v0",
          f"v_and_b32 v{T2}, 1, v{T1}", f"v_lshlrev_b32 v{T2}, 5, v{T2}", f"v_add_u32 v{T2}, v{T2}, v{T0}", f"v_lshlrev_b32 v{T2}, 4, v{T2}",
          f"v_lshrrev_b32 v{T3}, 1, v{T1}",
          f"v_lshlrev_b32 v{VY}, 3, v{T3}", f"v_add_u32 v{VY}, v{VY}, v{T2}",
          f"v_lshlrev_b32 v{T3}, 10, v{T3}", f"v_add_u32 v{T2}, v{T2}, v{T3}",
          "s_and_b32 s46, s3, 1", "s_lshl_b32 s46, s46, 13", f"s_add_u32 s46, s46, {LB0}", f"v_add_u32 v{AA0}, s46, v{T2}",
          "s_lshr_b32 s46, s3, 1", "s_lshl_b32 s46, s46, 13", f"s_add_u32 s46, s46, {L_B + LB0}",
          f"v_lshrrev_b32 v{T2}, 1, v{T0}", f"v_xor_b32 v{T2}, v{T2}, v{T1}",
          f"v_lshlrev_b32 v{T3}, 7, v{T0}", f"v_add_u32 v{T3}, s46, v{T3}"]
    for kk in range(2):
        P += [f"v_xor_b32 v{T0}, {4*kk}, v{T2}", f"v_lshlrev_b32 v{T0}, 4, v{T0}", f"v_add_u32 v{BA0[kk]}, v{T0}, v{T3}",
              f"v_mov_b32 v{BA[kk]}, v{BA0[kk]}"]
    P += [f"v_mov_b32 v{AA}, v{AA0}"]
    P += ["s_waitcnt lgkmcnt(0)", "s_cmp_eq_u32 s42, 0", "s_cselect_b32 s4, s4, s6", "s_cselect_b32 s5, s5, s7"] + srd(8, 4, 5, 8 * MB) + srd(24, 40, 41, WS_SIZE)
    P += ["s_lshl_b32 s47, s44, 2", "s_add_u32 s47, s47, s3", "s_lshl_b32 s47, s47, 17",
          f"s_mul_i32 s46, s42, {4*MB}", "s_add_u32 s47, s47, s46",
          "s_mov_b32 s48, 0", "s_lshl_b32 s50, s3, 12", "s_mov_b32 s49, s50", "s_mov_b32 s51, 0", "s_mov_b32 s57, s47"]
    if "yrot1" in EXP or "yrot2" in EXP:
        P += ["s_lshr_b32 s48, s2, 5", f"s_lshl_b32 s48, s48, {8 if 'yrot2' in EXP else 7}", "s_lshl_b32 s56, s48, 5", "s_add_u32 s47, s57, s56"]
    if "rot" in EXP:
        P += ["s_lshr_b32 s48, s2, 5", "s_lshl_b32 s48, s48, 2", "s_bfe_u32 s56, s2, 0x20003", "s_lshl_b32 s56, s56, 3",
              "s_add_u32 s48, s48, s56", "s_and_b32 s48, s48, 31", "s_lshl_b32 s48, s48, 7",
              "s_lshl_b32 s56, s48, 5", "s_add_u32 s47, s57, s56"]
    def dma():
        o = [[f"s_add_u32 m0, s49, {LB0}", f"buffer_load_dwordx4 v{VL16}, s[24:27], s47 offen lds"]]
        for u in range(1, 4):
            o.append([None, f"buffer_load_dwordx4 v{VL16}, s[24:27], s47 offen offset:{1024*u} lds"])
        for q in range(4):
            o.append([f"s_add_u32 m0, s49, {LB0 + L_B + 1024*q}", f"buffer_load_dwordx4 v{VB[q]}, s[8:11], s48 offen lds"])
        if "noydma" in EXP: o = [[a_, "s_nop 0"] for a_, b_ in o]
        return o
    def dma_adv():
        return ["s_add_u32 s48, s48, 128", "s_and_b32 s48, s48, 0xfff", "s_lshl_b32 s56, s48, 5", "s_add_u32 s47, s57, s56",
                f"s_add_u32 s49, s49, {STG}", f"s_and_b32 s49, s49, {NST*STG-1}"]
    LATE = 0 if "late0" in EXP else (2 if "late2" in EXP else 1)
    for t in range(NST - 1 - LATE):
        P += mix([], dma()) + dma_adv()
    for r in range(ACC, ACC + 64): P += [f"v_mov_b32 v{r}, 0"]
    def reads(s_, ks):
        kk, eh = ks >> 1, ks & 1
        o = [f"ds_read_b128 {vr(fa(s_,0),4)}, v{AA} offset:{eh*4096+kk*2048}"]
        if eh == 0:
            o += [f"ds_read_b128 {vr(fb(kk,j),4)}, v{BA[kk]} offset:{j*2048}" for j in range(4)]
        o += [f"ds_read_b128 {vr(fa(s_,1),4)}, v{AA} offset:{eh*4096+kk*2048+256}"]
        return o
    def mfmas(s_, ks=0):
        kk, eh = ks >> 1, ks & 1
        return [mfma16(acc(2 * eh + i, j), fa(s_, i), fb(kk, j)) for i in range(2) for j in range(4)]
    def rd_adv():
        o = [f"s_add_u32 s51, s51, {STG}", f"s_and_b32 s51, s51, {NST*STG-1}", f"v_add_u32 v{AA}, s51, v{AA0}"]
        for i in range(2): o += [f"v_add_u32 v{BA[i]}, s51, v{BA0[i]}"]
        return o
    P += stamp(1)
    pre, ktext, ktrace = kloop(N, 32, NST, 8, dma, dma_adv, reads, mfmas, rd_adv, 52, npre=2, late=LATE)
    E = ["s_nop 15"] + stamp(2)
    E += ["s_lshl_b32 s46, s44, 2", "s_and_b32 s47, s3, 1", "s_lshl_b32 s47, s47, 1", "s_add_u32 s46, s46, s47", "s_lshl_b32 s46, s46, 17",
          "s_lshl_b32 s47, s45, 2", "s_lshr_b32 s48, s3, 1", "s_lshl_b32 s48, s48, 1", "s_add_u32 s47, s47, s48", "s_lshl_b32 s47, s47, 11",
          "s_add_u32 s46, s46, s47", f"s_mul_i32 s47, s42, {4*MB}", "s_add_u32 s46, s46, s47", f"s_add_u32 s46, s46, {WS_Y1}"]
    pk = 24
    for i in range(4):
        for j in range(4):
            a = acc(i, j)
            E += [f"v_cvt_pk_bf16_f32 v{pk}, v{a}, v{a+1}", f"v_cvt_pk_bf16_f32 v{pk+1}, v{a+2}, v{a+3}",
                  f"buffer_store_dwordx2 {vr(pk,2)}, v{VY}, s[24:27], s46 offen offset:{(i&1)*1024 + (j&1)*256 + (j>>1)*2048}"]
            pk = 24 + (pk - 24 + 2) % 32
        if i == 1: E += ["s_add_u32 s46, s46, 131072"]
    E += stamp(3) + ["s_waitcnt vmcnt(0)"] * STAMPS + stamp(4) + stamp_dump(5, 9, 2, 128 if merged else 0)
    E += [f"{N}_done:", "s_endpgm"]
    text = (header(N) if not merged else []) + P + pre + ktext + E
    errs = check_trace(P + pre + ktrace + E, N)
    return N, text, desc(N, 136), errs, (256, 256, NST * STG)


def mfma16c(d, a, b, c):
    cs = c if isinstance(c, str) else vr(c, 4)
    return f"v_mfma_f32_16x16x32_bf16 {vr(d,4)}, {vr(a,4)}, {vr(b,4)}, {cs}"

def gen_attn16():
    N = "mix_kernel_a"
    NST = 4; STG = 8192
    def Q(qb): return 16 + 4 * qb
    S = {"A": 32, "B": 48}
    Pk = {"A": 64, "B": 72}
    def O(qb, db=0): return 80 + 8 * qb + 4 * db
    def L(qb): return 112 + 4 * qb
    def CN(qb): return 128 + 4 * qb
    KF = [144, 152]; VF = [160, 168]; ONES = 176
    QB0 = {"A": 0, "B": 2}
    VL16 = 1; VRD = 2; VG = 3; VPAT = 4; T0, T1, T2, T3 = 5, 6, 7, 8; VO = 9
    P = []
    P += stamp(0)
    P += ["s_load_dwordx2 s[40:41], s[0:1], 88", "s_load_dwordx2 s[4:5], s[0:1], 0", "s_load_dwordx2 s[38:39], s[0:1], 64"]
    P += ["s_and_b32 s42, s2, 7", "s_lshr_b32 s43, s2, 3", "s_lshl_b32 s42, s42, 2", "s_lshr_b32 s44, s43, 3",
          "s_add_u32 s42, s42, s44", "s_and_b32 s43, s43, 7",
          "s_lshl_b32 s43, s43, 3", "s_lshl_b32 s44, s3, 1", "s_add_u32 s43, s43, s44",
          "s_lshl_b32 s44, s42, 17"]
    P += [f"v_lshlrev_b32 v{VL16}, 4, v0", f"v_and_b32 v{T0}, 15, v0", f"v_bfe_u32 v{T1}, v0, 4, 1", f"v_lshlrev_b32 v{T1}, 5, v{T1}",
          f"v_add_u32 v{T0}, v{T0}, v{T1}", f"v_lshlrev_b32 v{T0}, 4, v{T0}", f"v_lshrrev_b32 v{T1}, 5, v0",
          f"v_lshlrev_b32 v{T2}, 10, v{T1}", f"v_add_u32 v{VPAT}, v{T0}, v{T2}", f"v_lshlrev_b32 v{T2}, 3, v{T1}", f"v_add_u32 v{VO}, v{T0}, v{T2}"]
    P += ["s_waitcnt lgkmcnt(0)"] + srd(24, 40, 41, WS_SIZE) + srd(8, 4, 5, 4 * MB) + srd(28, 38, 39, 2048)
    P += ["s_lshl_b32 s45, s43, 11", "s_add_u32 s45, s45, s44", f"s_add_u32 s45, s45, {WS_Q}",
          f"s_add_u32 s46, s44, {WS_K}", f"s_add_u32 s47, s44, {WS_V}"]
    for qb in range(4):
        P += [f"buffer_load_dwordx4 {vr(Q(qb),4)}, v{VPAT}, s[24:27], s45 offen offset:{(qb&1)*256 + (qb>>1)*2048}"]
    for i in range(4):
        P += [f"buffer_load_dwordx4 {vr(KF[0]+4*i,4)}, v{VPAT}, s[24:27], s46 offen offset:{(i&1)*256 + (i>>1)*2048}"]
    P += ["s_lshl_b32 s51, s3, 10", "s_mov_b32 s61, s51", "s_add_u32 s60, s61, 2048",
          "s_add_u32 s48, s46, s60", "s_add_u32 s49, s47, s61", "s_mov_b32 s50, s51"]
    def dma():
        return [["s_mov_b32 m0, s50", f"buffer_load_dwordx4 v{VL16}, s[24:27], s48 offen lds"],
                ["s_add_u32 m0, s50, 4096", f"buffer_load_dwordx4 v{VL16}, s[24:27], s49 offen lds"]]
    def dma_adv():
        return ["s_add_u32 s60, s60, 4096", "s_and_b32 s60, s60, 0x1ffff", "s_add_u32 s61, s61, 4096", "s_and_b32 s61, s61, 0x1ffff",
                "s_add_u32 s48, s46, s60", "s_add_u32 s49, s47, s61", f"s_add_u32 s50, s50, {STG}",
                f"s_and_b32 s50, s50, {NST*STG-1}"]
    for t in range(NST - 1):
        for a, b in dma(): P += [a, "s_nop 0", b]
        P += dma_adv()
    GX = 192
    P += ["s_lshl_b32 s62, s2, 3", "s_lshl_b32 s45, s3, 1", "s_add_u32 s62, s62, s45", "s_lshl_b32 s45, s62, 11",
          f"v_lshlrev_b32 v{T0}, 5, v0"]
    P += [f"buffer_load_dwordx4 v[{GX}:{GX+3}], v{T0}, s[8:11], s45 offen",
          f"buffer_load_dwordx4 v[{GX+4}:{GX+7}], v{T0}, s[8:11], s45 offen offset:16",
          f"buffer_load_dwordx4 v[{GX+8}:{GX+11}], v{T0}, s[8:11], s45 offen offset:2048",
          f"buffer_load_dwordx4 v[{GX+12}:{GX+15}], v{T0}, s[8:11], s45 offen offset:2064",
          f"buffer_load_dwordx4 v[{GX+16}:{GX+19}], v{T0}, s[28:31], 0 offen",
          f"buffer_load_dwordx4 v[{GX+20}:{GX+23}], v{T0}, s[28:31], 0 offen offset:16"]
    for r in list(range(112, 128)) + list(range(Pk["B"], Pk["B"] + 8)) + list(range(VF[0], VF[0] + 16)):
        P += [f"v_mov_b32 v{r}, 0"]
    for i in range(4): P += [f"v_mov_b32 v{ONES+i}, 0x3f803f80"]
    P += [f"v_mov_b32 v{VRD}, v{VPAT}", "s_mov_b32 s52, 0", "s_mov_b32 s53, 0"]
    P += [f"s_waitcnt vmcnt({2*(NST-1)+6})"]
    def TM(qb): return (32 + 16 * qb) if qb < 2 else (80 + 16 * (qb - 2))
    for qb in range(4):
        for i in range(4):
            P += [mfma16c(TM(qb) + 4 * i, KF[0] + 4 * i, Q(qb), "0")]
    P += ["s_nop 7"]
    MX = [10, 11, 12, 13]
    for qb in range(4):
        t = TM(qb); m = MX[qb]
        P += [f"v_max3_f32 v{m}, v{t}, v{t+1}, v{t+2}"]
        for i in range(3, 15, 2): P += [f"v_max3_f32 v{m}, v{m}, v{t+i}, v{t+i+1}"]
        P += [f"v_max_f32 v{m}, v{m}, v{t+15}"]
    for qb in range(4): P += [f"ds_swizzle_b32 v{T0+qb}, v{MX[qb]} offset:0x401F"]
    P += ["s_waitcnt lgkmcnt(0)"]
    for qb in range(4): P += [f"v_max_f32 v{MX[qb]}, v{MX[qb]}, v{T0+qb}"]
    for qb in range(4): P += [f"v_mov_b32 v{T0+qb}, v{MX[qb]}"]
    P += ["s_nop 1"]
    for qb in range(4): P += [f"v_permlane32_swap_b32 v{MX[qb]}, v{T0+qb}"]
    P += [f"s_mov_b32 s54, {hex(f32bits(-ATT_OFF))}"]
    for qb in range(4):
        P += [f"v_max_f32 v{MX[qb]}, v{MX[qb]}, v{T0+qb}", f"v_sub_f32 v{MX[qb]}, s54, v{MX[qb]}"]
        for i in range(4): P += [f"v_mov_b32 v{CN(qb)+i}, v{MX[qb]}"]
    for r in range(80, 112): P += [f"v_mov_b32 v{r}, 0"]
    def qk(Y, kset):
        return [mfma16c(S[Y] + (qi * 2 + kb) * 4, KF[kset] + 4 * kb, Q(QB0[Y] + qi), CN(QB0[Y] + qi)) for qi in range(2) for kb in range(2)]
    def pv(Y, vset):
        o = []
        for qi in range(2):
            qb = QB0[Y] + qi
            o += [mfma16(O(qb, 0), VF[vset], Pk[Y] + 4 * qi), mfma16(O(qb, 1), VF[vset] + 4, Pk[Y] + 4 * qi), mfma16(L(qb), ONES, Pk[Y] + 4 * qi)]
        return o
    P += qk("A", 0) + ["s_nop 7"]
    P += stamp(1)
    def slot(X, kset_qk, vset_pv, rd, extra=[]):
        Y = "B" if X == "A" else "A"
        mf = qk(Y, kset_qk) + pv(Y, vset_pv)
        e = [f"v_exp_f32 v{S[X]+i}, v{S[X]+i}" for i in range(16)]
        c = [f"v_cvt_pk_bf16_f32 v{Pk[X]+j}, v{S[X]+2*j}, v{S[X]+2*j+1}" for j in range(8)]
        va = e[0:3] + [c[0]] + e[3:5] + [c[1]] + e[5:7] + [c[2]] + e[7:9] + [c[3]] + e[9:11] + [c[4]] + e[11:13] + [c[5]] + e[13:16] + [c[6], c[7]]
        cnt = [2, 2, 3, 2, 3, 2, 3, 2, 3, 2]
        o = []; vi = 0
        for i in range(10):
            o += [mf[i]]
            if i < 4 and rd: o += [rd[i]]
            if i < len(extra): o += extra[i][:1]
            o += va[vi:vi + cnt[i]]; vi += cnt[i]
            if i < len(extra): o += extra[i][1:]
        assert vi == 24
        return o
    def rds(kb_par, half):
        return [f"ds_read_b128 {vr(KF[1-kb_par],4)}, v{VRD} offset:{half*2048}",
                f"ds_read_b128 {vr(KF[1-kb_par]+4,4)}, v{VRD} offset:{half*2048+256}",
                f"ds_read_b128 {vr(VF[kb_par],4)}, v{VRD} offset:{4096+half*2048}",
                f"ds_read_b128 {vr(VF[kb_par]+4,4)}, v{VRD} offset:{4096+half*2048+256}"]
    B = [f"s_waitcnt vmcnt({2*(NST-2)})", "s_barrier"]
    d = dma()
    if "newtop" not in EXP:
        B += [d[0][0], "s_nop 0", d[0][1], d[1][0], "s_nop 0", d[1][1]] + dma_adv()
        B += slot("A", 0, 1, rds(0, 0))
        B += ["s_waitcnt lgkmcnt(0)"]
        B += slot("B", 1, 0, [])
    else:
        adv = dma_adv()
        B += slot("A", 0, 1, rds(0, 0), [[], [], [], [], d[0], d[1]])
        B += ["s_waitcnt lgkmcnt(0)"]
        B += slot("B", 1, 0, [], [adv[0:2], adv[2:4], adv[4:6], adv[6:8]])
    B += slot("A", 1, 0, rds(1, 1))
    B += ["s_waitcnt lgkmcnt(0)"]
    B += slot("B", 0, 1, [], [[f"s_add_u32 s53, s53, {STG}", f"s_and_b32 s53, s53, {NST*STG-1}"], [f"v_add_u32 v{VRD}, s53, v{VPAT}"]])
    tail = ["s_add_u32 s52, s52, 1", "s_cmp_lt_u32 s52, 32", f"s_cbranch_scc1 {N}_loop"]
    E = stamp(2)
    E += ["s_nop 1"] + pv("B", 1) + ["s_nop 7"]
    E += [f"s_mov_b32 s54, {hex(f32bits(ATT_LMAX))}",
          f"v_max3_f32 v{T0}, v{L(0)}, v{L(1)}, v{L(2)}", f"v_cmp_gt_f32 vcc, s54, v{T0}", f"v_cmp_gt_f32 s[56:57], s54, v{L(3)}",
          f"v_cmp_o_f32 s[58:59], v{L(0)}, v{L(1)}", f"v_cmp_o_f32 s[64:65], v{L(2)}, v{L(3)}", "s_nop 1",
          "s_and_b64 vcc, vcc, s[56:57]", "s_and_b64 vcc, vcc, s[58:59]", "s_and_b64 vcc, vcc, s[64:65]",
          "s_cmp_eq_u64 vcc, exec", f"s_cbranch_scc0 {N}_fallback"]
    E2 = [f"{N}_final:"]
    E2 += ["s_lshl_b32 s45, s43, 16", "s_lshl_b32 s46, s42, 11", "s_add_u32 s45, s45, s46", f"s_add_u32 s45, s45, {WS_O}"]
    for qb in range(4):
        E2 += [f"v_rcp_f32 v{T0}, v{L(qb)}", "s_nop 0"]
        for i in range(8): E2 += [f"v_mul_f32 v{O(qb)+i}, v{O(qb)+i}, v{T0}"]
        for db in range(2):
            pk = 32 + qb * 4 + db * 2
            E2 += [f"v_cvt_pk_bf16_f32 v{pk}, v{O(qb,db)}, v{O(qb,db)+1}", f"v_cvt_pk_bf16_f32 v{pk+1}, v{O(qb,db)+2}, v{O(qb,db)+3}",
                   f"buffer_store_dwordx2 {vr(pk,2)}, v{VO}, s[24:27], s45 offen offset:{(qb&1)*256 + db*1024}"]
        if qb == 1: E2 += ["s_add_u32 s45, s45, 65536"]
    A0, A1 = 64, 65
    E2 += ["s_waitcnt vmcnt(8)", f"v_mov_b32 v{A0}, 0", f"v_mov_b32 v{A1}, 0"]
    for i in range(8):
        w = GX + 16 + i
        E2 += [f"v_lshlrev_b32 v66, 16, v{w}", f"v_and_b32 v67, 0xffff0000, v{w}"]
        for r, a in ((0, A0), (1, A1)):
            x = GX + 8 * r + i
            E2 += [f"v_lshlrev_b32 v68, 16, v{x}", f"v_and_b32 v69, 0xffff0000, v{x}",
                  "v_mul_f32 v68, v68, v66", "v_mul_f32 v69, v69, v67",
                  "v_cvt_pk_bf16_f32 v70, v68, v69",
                  "v_lshlrev_b32 v68, 16, v70", "v_and_b32 v69, 0xffff0000, v70",
                  f"v_add_f32 v{a}, v{a}, v68", f"v_add_f32 v{a}, v{a}, v69"]
    for off in (0x041F, 0x081F, 0x101F, 0x201F, 0x401F):
        E2 += [f"ds_swizzle_b32 v66, v{A0} offset:{off}", f"ds_swizzle_b32 v67, v{A1} offset:{off}",
              "s_waitcnt lgkmcnt(0)", f"v_add_f32 v{A0}, v{A0}, v66", f"v_add_f32 v{A1}, v{A1}, v67"]
    E2 += ["s_nop 0", f"v_readlane_b32 s55, v{A0}, 32", f"v_readlane_b32 s56, v{A1}, 32", "s_nop 1",
          f"v_add_f32 v{A0}, s55, v{A0}", f"v_add_f32 v{A1}, s56, v{A1}",
          "v_cmp_eq_u32 vcc, 1, v0", "s_nop 1", f"v_cndmask_b32 v{A0}, v{A0}, v{A1}, vcc",
          f"v_cvt_pk_bf16_f32 v{A0}, v{A0}, v{A0}", f"v_lshlrev_b32 v{A0}, 16, v{A0}",
          f"v_mul_f32 v{A0}, {hex(f32bits(-LOG2E))}, v{A0}", f"v_exp_f32 v{A0}, v{A0}", "s_nop 0",
          f"v_add_f32 v{A0}, 1.0, v{A0}", f"v_rcp_f32 v{A0}, v{A0}", "s_nop 0",
          f"v_cvt_pk_bf16_f32 v{A0}, v{A0}, v{A0}", f"v_lshlrev_b32 v{VG}, 16, v{A0}"]
    E2 += [f"v_lshlrev_b32 v{T0}, 2, v0", "s_lshl_b32 s45, s62, 2", f"s_add_u32 s45, s45, {WS_G}",
           "v_cmp_gt_u32 vcc, 2, v0", "s_and_saveexec_b64 s[58:59], vcc",
           f"buffer_store_dword v{VG}, v{T0}, s[24:27], s45 offen", "s_mov_b64 exec, s[58:59]"]
    E2 += stamp(3) + ["s_waitcnt vmcnt(0)"] + stamp(4) + stamp_dump(5, 9, 1)
    E2 += [f"{N}_done:", "s_endpgm"]
    F = [f"{N}_fallback:", "s_waitcnt vmcnt(0)"]
    AL = 14
    for qb in range(4):
        F += [f"v_mov_b32 v{MX[qb]}, 0xff7fffff", f"v_mov_b32 v{L(qb)}, 0"]
        for i in range(8): F += [f"v_mov_b32 v{O(qb)+i}, 0"]
    F += [f"s_add_u32 s46, s44, {WS_K}", f"s_add_u32 s47, s44, {WS_V}", "s_mov_b32 s52, 0"]
    FB = [f"buffer_load_dwordx4 {vr(KF[0],4)}, v{VPAT}, s[24:27], s46 offen",
          f"buffer_load_dwordx4 {vr(KF[0]+4,4)}, v{VPAT}, s[24:27], s46 offen offset:256",
          f"buffer_load_dwordx4 {vr(VF[0],4)}, v{VPAT}, s[24:27], s47 offen",
          f"buffer_load_dwordx4 {vr(VF[0]+4,4)}, v{VPAT}, s[24:27], s47 offen offset:256",
          "s_waitcnt vmcnt(0)"]
    for qb in range(4):
        s0 = 32; p0 = 64
        FB += [mfma16c(s0, KF[0], Q(qb), "0"), mfma16c(s0 + 4, KF[0] + 4, Q(qb), "0"), "s_nop 7"]
        FB += [f"v_max3_f32 v{T0}, v{s0}, v{s0+1}, v{MX[qb]}", f"v_max3_f32 v{T0}, v{T0}, v{s0+2}, v{s0+3}",
               f"v_max3_f32 v{T0}, v{T0}, v{s0+4}, v{s0+5}", f"v_max3_f32 v{T0}, v{T0}, v{s0+6}, v{s0+7}",
               f"ds_swizzle_b32 v{T1}, v{T0} offset:0x401F", "s_waitcnt lgkmcnt(0)", f"v_max_f32 v{T0}, v{T0}, v{T1}",
               f"v_mov_b32 v{T1}, v{T0}", "s_nop 1", f"v_permlane32_swap_b32 v{T0}, v{T1}", f"v_max_f32 v{T0}, v{T0}, v{T1}",
               f"v_sub_f32 v{AL}, v{MX[qb]}, v{T0}", f"v_exp_f32 v{AL}, v{AL}", f"v_mov_b32 v{MX[qb]}, v{T0}",
               f"v_mul_f32 v{L(qb)}, v{L(qb)}, v{AL}"]
        for i in range(8):
            FB += [f"v_sub_f32 v{s0+i}, v{s0+i}, v{T0}", f"v_exp_f32 v{s0+i}, v{s0+i}", f"v_mul_f32 v{O(qb)+i}, v{O(qb)+i}, v{AL}"]
        for j in range(4):
            FB += [f"v_cvt_pk_bf16_f32 v{p0+j}, v{s0+2*j}, v{s0+2*j+1}",
                   f"v_lshlrev_b32 v{T1}, 16, v{p0+j}", f"v_and_b32 v{T2}, 0xffff0000, v{p0+j}",
                   f"v_add_f32 v{L(qb)}, v{L(qb)}, v{T1}", f"v_add_f32 v{L(qb)}, v{L(qb)}, v{T2}"]
        FB += ["s_nop 1", mfma16(O(qb, 0), VF[0], p0), mfma16(O(qb, 1), VF[0] + 4, p0), "s_nop 7"]
    FB += ["s_add_u32 s46, s46, 2048", "s_add_u32 s47, s47, 2048", "s_add_u32 s52, s52, 1", "s_cmp_lt_u32 s52, 64",
           f"s_cbranch_scc1 {N}_fbloop"]
    FE = []
    for qb in range(4):
        FE += [f"ds_swizzle_b32 v{T1}, v{L(qb)} offset:0x401F", "s_waitcnt lgkmcnt(0)", f"v_add_f32 v{L(qb)}, v{L(qb)}, v{T1}",
               f"v_mov_b32 v{T1}, v{L(qb)}", "s_nop 1", f"v_permlane32_swap_b32 v{L(qb)}, v{T1}", f"v_add_f32 v{L(qb)}, v{L(qb)}, v{T1}"]
    FE += [f"s_branch {N}_final"]
    text = P + [f"{N}_loop:"] + B + tail + E + E2 + F + [f"{N}_fbloop:"] + FB + FE
    errs = check_trace(P + B + tail + B + tail + E + E2, N)
    errs += check_trace(P + B + tail + E + F + FB + FB + FE + E2, N + "_fb")
    return N, text, desc(N, 216), errs, (256, 256, NST * STG)

def gen_mix():
    N = "mix_kernel"
    _, ta, _, ea, _ = gen_attn(True) if "a32" in EXP else gen_attn16()
    _, ty, _, ey, _ = gen_ygemm(True) if "y32" in EXP else gen_ygemm16(True)
    H = header(N) + ["s_cmp_ge_u32 s2, 256", "s_cbranch_scc1 mix_kernel_a_done"] + code_prefetch(9500, 184, 186) + [
         "v_lshrrev_b32 v1, 6, v0", "v_and_b32 v0, 63, v0", "v_readfirstlane_b32 s3, v1", "s_nop 3",
         "s_cmp_ge_u32 s3, 4", "s_cbranch_scc1 mix_kernel_ystart"]
    text = H + (["s_setprio 1"] if "prioa" in EXP else []) + ta + ["mix_kernel_ystart:", "s_sub_u32 s3, s3, 4"] + (["s_setprio 1"] if "prioy" in EXP else []) + ty
    return N, text, desc(N, 216), ea + ey, (256, 512, 163840)

def gen_out():
    N = "out_kernel"
    NST = 4 if "o4" in EXP else 6; STG = 24576; L_B = 8192
    ACC = 64
    def acc(i): return ACC + i * 16
    def fr(s, i): return 32 + s * 12 + i * 4
    def fr2(s, ks, i): return 128 + s * 48 + ks * 12 + i * 4
    VL16 = 1; VW = [2, 3]; WA0 = 4; BA0 = 5; WA = 6; BA = 7; VG = 8; VO = 9; WB0 = 10; WB = 11
    T0, T1, T2, T3 = 16, 17, 18, 19
    Y = 96
    P = ["s_cmp_ge_u32 s2, 256", f"s_cbranch_scc1 {N}_done"]
    P += stamp(0) + code_prefetch(4000, 24, 26)
    P += ["s_load_dwordx2 s[4:5], s[0:1], 56", "s_load_dwordx2 s[6:7], s[0:1], 72", "s_load_dwordx2 s[40:41], s[0:1], 88"]
    P += ["v_lshrrev_b32 v1, 6, v0", "v_and_b32 v0, 63, v0", "v_readfirstlane_b32 s3, v1"]
    P += ["s_and_b32 s45, s2, 3", "s_lshl_b32 s45, s45, 2", "s_bfe_u32 s46, s2, 0x20003", "s_add_u32 s45, s45, s46",
          "s_bfe_u32 s44, s2, 0x10002", "s_lshl_b32 s44, s44, 3", "s_lshr_b32 s46, s2, 5", "s_add_u32 s44, s44, s46",
          "s_lshl_b32 s43, s45, 2", "s_add_u32 s43, s43, s3"]
    P += [f"v_lshlrev_b32 v{VL16}, 4, v0"]
    P += [f"v_lshrrev_b32 v{T3}, 3, v0", "s_lshl_b32 s46, s3, 4", f"v_add_u32 v{T3}, s46, v{T3}", f"v_lshlrev_b32 v{T3}, 11, v{T3}",
          f"v_bfe_u32 v{T0}, v0, 4, 1", f"v_lshlrev_b32 v{T0}, 2, v{T0}", f"v_and_b32 v{T1}, 7, v0", f"v_xor_b32 v{T0}, v{T0}, v{T1}",
          f"v_lshlrev_b32 v{VW[0]}, 4, v{T0}", f"v_add_u32 v{VW[0]}, v{VW[0]}, v{T3}",
          "s_lshl_b32 s46, s44, 7", f"v_add_u32 v{VW[0]}, s46, v{VW[0]}", f"v_add_u32 v{VW[1]}, {8*2048}, v{VW[0]}"]
    P += [f"v_lshrrev_b32 v{T0}, 5, v0", f"v_lshlrev_b32 v{T0}, 2, v{T0}", f"v_bfe_u32 v{T1}, v0, 2, 2",
          f"v_add_u32 v{T0}, v{T0}, v{T1}", f"v_lshlrev_b32 v{T0}, 7, v{T0}",
          f"v_bfe_u32 v{T1}, v0, 3, 1", f"v_lshlrev_b32 v{T1}, 6, v{T1}", f"v_add_u32 v{T0}, v{T0}, v{T1}",
          f"v_bfe_u32 v{T1}, v0, 4, 1", f"v_lshlrev_b32 v{T1}, 5, v{T1}", f"v_add_u32 v{T0}, v{T0}, v{T1}",
          f"v_and_b32 v{T1}, 3, v0", f"v_lshlrev_b32 v{T1}, 3, v{T1}", f"v_add_u32 v{WA0}, v{T0}, v{T1}",
          f"v_xor_b32 v{WB0}, 64, v{WA0}",
          "s_lshl_b32 s50, s3, 12", f"s_add_u32 s46, s50, {L_B}", f"v_add_u32 v{BA0}, s46, v{VL16}",
          f"v_mov_b32 v{WA}, v{WA0}", f"v_mov_b32 v{WB}, v{WB0}", f"v_mov_b32 v{BA}, v{BA0}"]
    P += [f"v_and_b32 v{T0}, 31, v0", "s_lshl_b32 s46, s43, 5", f"v_add_u32 v{T1}, s46, v{T0}", f"v_lshlrev_b32 v{VO}, 11, v{T1}",
          f"v_lshrrev_b32 v{T2}, 5, v0", f"v_lshlrev_b32 v{T2}, 4, v{T2}", f"v_add_u32 v{VO}, v{VO}, v{T2}",
          "s_lshl_b32 s46, s44, 7", f"v_add_u32 v{VO}, s46, v{VO}", f"v_lshlrev_b32 v{T1}, 2, v{T1}"]
    P += ["s_waitcnt lgkmcnt(0)"] + stamp(5) + srd(8, 4, 5, 2 * MB) + srd(12, 6, 7, 4 * MB) + srd(24, 40, 41, WS_SIZE)
    P += ["s_lshl_b32 s47, s43, 16", f"s_add_u32 s47, s47, {WS_O}", "s_mov_b32 s48, 0", "s_mov_b32 s49, 0",
          "s_lshl_b32 s53, s3, 11", "s_mov_b32 s51, 0"]
    def dma():
        o = [["s_add_u32 m0, s49, s53", f"buffer_load_dwordx4 v{VW[0]}, s[8:11], s48 offen lds"],
             ["s_add_u32 m0, m0, 1024", f"buffer_load_dwordx4 v{VW[1]}, s[8:11], s48 offen lds"],
             ["s_add_u32 m0, s49, s54", f"buffer_load_dwordx4 v{VL16}, s[24:27], s47 offen lds"]]
        for u in range(1, 4):
            o.append([None, f"buffer_load_dwordx4 v{VL16}, s[24:27], s47 offen offset:{1024*u} lds"])
        if "nowo" in EXP:
            o[0][1] = f"buffer_load_dwordx4 v{VL16}, s[24:27], s47 offen lds"
            o[1][1] = f"buffer_load_dwordx4 v{VL16}, s[24:27], s47 offen lds"
        if "noo" in EXP:
            for u in range(2, 6): o[u][1] = f"buffer_load_dwordx4 v{VW[0]}, s[8:11], s48 offen lds"
        return o
    def dma_adv():
        if "norot3" not in EXP:
            return ["s_add_u32 s56, s56, 4096", "s_and_b32 s56, s56, 0xffff", "s_add_u32 s47, s57, s56", "s_lshl_b32 s48, s56, 5",
                    f"s_add_u32 s49, s49, {STG}", f"s_cmp_ge_u32 s49, {NST*STG}", "s_cselect_b32 s49, 0, s49"]
        return ["s_add_u32 s47, s47, 4096", f"s_add_u32 s48, s48, {64*2048}", f"s_add_u32 s49, s49, {STG}",
                f"s_cmp_ge_u32 s49, {NST*STG}", "s_cselect_b32 s49, 0, s49"]
    P += [f"s_add_u32 s54, s50, {L_B}"]
    if "norot3" not in EXP:
        P += ["s_lshr_b32 s56, s2, 5", "s_lshl_b32 s56, s56, 1", "s_bfe_u32 s57, s2, 0x20003", "s_lshl_b32 s57, s57, 2",
              "s_add_u32 s56, s56, s57", "s_and_b32 s56, s56, 15", "s_lshl_b32 s56, s56, 12",
              "s_mov_b32 s57, s47", "s_add_u32 s47, s57, s56", "s_lshl_b32 s48, s56, 5"]
    YL = []
    YL += ["s_lshl_b32 s46, s44, 18", "s_lshl_b32 s55, s43, 11", "s_add_u32 s46, s46, s55", f"s_add_u32 s46, s46, {WS_Y1}"]
    for i in range(2):
        for p in range(2):
            YL += [f"s_add_u32 s55, s46, {i*131072 + p*4*MB}"]
            for t in range(2):
                YL += [f"buffer_load_dwordx4 {vr(Y+(i*2+p)*8+4*t,4)}, v{VL16}, s[24:27], s55 offen offset:{1024*t}"]
    YL += [f"s_mov_b32 s55, {WS_G}", f"buffer_load_dword v{VG}, v{T1}, s[24:27], s55 offen"]
    if "yearly" in EXP: P += YL
    P += stamp(6)
    for t in range(NST - 1 if "k3old" in EXP else NST):
        P += mix([], dma()) + dma_adv()
    P += stamp(7)
    if "ylate" in EXP: P += YL
    for r in range(ACC, ACC + 32): P += [f"v_mov_b32 v{r}, 0"]
    def reads(s_, ks):
        return [f"ds_read_b128 {vr(fr(s_,2),4)}, v{BA} offset:{ks*1024}",
                f"ds_read_b64_tr_b16 {vr(fr(s_,0),2)}, v{WA} offset:{ks*2048}",
                f"ds_read_b64_tr_b16 {vr(fr(s_,0)+2,2)}, v{WA} offset:{ks*2048+1024}",
                f"ds_read_b64_tr_b16 {vr(fr(s_,1),2)}, v{WB} offset:{ks*2048}",
                f"ds_read_b64_tr_b16 {vr(fr(s_,1)+2,2)}, v{WB} offset:{ks*2048+1024}"]
    def mfmas(s_, ks=0):
        if "nomf" in EXP: return ["s_nop 0", "s_nop 0"]
        return [mfma32(acc(0), fr(s_, 0), fr(s_, 2)), mfma32(acc(1), fr(s_, 1), fr(s_, 2))]
    def rd_adv():
        return [f"s_add_u32 s51, s51, {STG}", f"s_cmp_ge_u32 s51, {NST*STG}", "s_cselect_b32 s51, 0, s51",
                f"v_add_u32 v{WA}, s51, v{WA0}", f"v_add_u32 v{WB}, s51, v{WB0}", f"v_add_u32 v{BA}, s51, v{BA0}"]
    P += stamp(1)
    if "k3old" in EXP:
        pre, ktext, ktrace = kloop(N, 16, NST, 6, dma, dma_adv, reads, mfmas, rd_adv, 52, mid=(YL if ("yearly" not in EXP and "ylate" not in EXP) else []))
    else:
        def reads2(s_):
            o = []
            for ks in range(4):
                o += [f"ds_read_b128 {vr(fr2(s_,ks,2),4)}, v{BA} offset:{ks*1024}",
                      f"ds_read_b64_tr_b16 {vr(fr2(s_,ks,0),2)}, v{WA} offset:{ks*2048}",
                      f"ds_read_b64_tr_b16 {vr(fr2(s_,ks,0)+2,2)}, v{WA} offset:{ks*2048+1024}",
                      f"ds_read_b64_tr_b16 {vr(fr2(s_,ks,1),2)}, v{WB} offset:{ks*2048}",
                      f"ds_read_b64_tr_b16 {vr(fr2(s_,ks,1)+2,2)}, v{WB} offset:{ks*2048+1024}"]
            return o
        def mfmas2(s_):
            o = []
            for ks in range(4):
                o += [mfma32(acc(0), fr2(s_, ks, 0), fr2(s_, ks, 2)), mfma32(acc(1), fr2(s_, ks, 1), fr2(s_, ks, 2))]
            return o
        pre = [f"s_waitcnt vmcnt({6*(NST-1)})", "s_barrier"] + reads2(0) + rd_adv() + ["s_mov_b32 s52, 0"]
        def it(s_, do_dma, allowed, last, extra=[]):
            o = [f"s_waitcnt vmcnt({allowed}) lgkmcnt(0)"]
            if not last: o += ["s_barrier"]
            fill = (mix(reads2(1 - s_), dma() if do_dma else []) + (dma_adv() if do_dma else []) + rd_adv()) if not last else []
            return o + extra + spread(mfmas2(s_), fill)
        nmain = 16 - NST
        assert nmain % 2 == 0
        Bm = it(0, True, 6 * (NST - 2), False) + it(1, True, 6 * (NST - 2), False)
        tl = [f"s_add_u32 s52, s52, 1", f"s_cmp_lt_u32 s52, {nmain//2}", f"s_cbranch_scc1 {N}_loop"]
        rest = []
        for tt_ in range(nmain, 16):
            allowed = max(0, 15 - (tt_ + 1)) * 6 + (9 if tt_ > nmain else 0)
            rest += it(tt_ & 1, False, allowed, tt_ == 15, YL if tt_ == nmain else [])
        ktext = [f"{N}_loop:"] + Bm + tl + rest
        ktrace = Bm + tl + Bm + tl + rest
    E = ["s_nop 15", "s_waitcnt vmcnt(0)"] + stamp(2)
    E += [f"v_sub_f32 v20, 1.0, v{VG}", "v_cvt_pk_bf16_f32 v20, v20, v20", "v_lshlrev_b32 v20, 16, v20"]
    pk = 32
    for i in range(2):
        a = acc(i)
        for r in range(16): E += [f"v_mul_f32 v{a+r}, v20, v{a+r}"]
        for r in range(8):
            y1 = Y + (i * 2) * 8 + r; y2 = Y + (i * 2 + 1) * 8 + r
            E += [f"v_lshlrev_b32 v{T0}, 16, v{y1}", f"v_lshlrev_b32 v{T1}, 16, v{y2}", f"v_sub_f32 v{T0}, v{T0}, v{T1}",
                  f"v_and_b32 v{T2}, 0xffff0000, v{y1}", f"v_and_b32 v{T3}, 0xffff0000, v{y2}", f"v_sub_f32 v{T2}, v{T2}, v{T3}",
                  f"v_fmac_f32 v{a+2*r}, v{VG}, v{T0}", f"v_fmac_f32 v{a+2*r+1}, v{VG}, v{T2}",
                  f"v_cvt_pk_bf16_f32 v{pk+r}, v{a+2*r}, v{a+2*r+1}"]
        E += ["s_nop 1"]
        for t in range(2):
            E += [f"v_permlane32_swap_b32 v{pk+4*t}, v{pk+4*t+2}", f"v_permlane32_swap_b32 v{pk+4*t+1}, v{pk+4*t+3}"]
        for t in range(2):
            E += [f"buffer_store_dwordx4 {vr(pk+4*t,4)}, v{VO}, s[12:15], 0 offen offset:{i*64+t*32}"]
        pk += 8
    E += stamp(3) + ["s_waitcnt vmcnt(0)"] * STAMPS + stamp(4) + stamp_dump(8, 9, 3)
    E += [f"{N}_done:", "s_endpgm"]
    text = header(N) + P + pre + ktext + E
    errs = check_trace(P + pre + ktrace + E, N)
    return N, text, desc(N, 224), errs, (256, 256, NST * STG)

def build(kernels, path):
    hdr = open("gated_mix__spectral_fnet__softmax_full_mha__prompt.s.ref").read().split("; Override launch")[0]
    out = hdr
    for (N, text, d, errs, (g, b, lds)) in kernels:
        out += f"; @launch kernel={N} grid=({g},1,1) block=({b},1,1) lds={lds}\n"
    out += '.amdgcn_target "amdgcn-amd-amdhsa--gfx950"\n.text\n'
    seen = set()
    for (N, text, d, errs, _) in kernels:
        if N in seen: continue
        seen.add(N)
        for e in errs: print("HAZARD", e)
        for l in text:
            out += (l if (l.endswith(":") or l.startswith(".")) else "    " + l) + "\n"
    out += '.section .rodata,"a"\n'
    seen = set()
    for (N, text, d, errs, _) in kernels:
        if N in seen: continue
        seen.add(N)
        out += d
    if "st_plain" not in EXP and not any(e.startswith("st_") for e in EXP): EXP.add("st_nt"); EXP.add("sto_nt")
    for fl in ("sc1", "sc0 sc1", "nt", "sc0"):
        if "st_" + fl.replace(" ", "_") in EXP:
            import re as _re
            out = _re.sub(r"(buffer_store_dwordx[24] [^\n]*s\[24:27\][^\n]*)", lambda m: m.group(1) + " " + fl, out)
    for fl in ("sc1", "nt"):
        if "sto_" + fl in EXP:
            import re as _re
            out = _re.sub(r"(buffer_store_dwordx[24] [^\n]*s\[12:15\][^\n]*)", lambda m: m.group(1) + " " + fl, out)
    open(path, "w").write(out)

if __name__ == "__main__":
    if len(sys.argv) > 2 and sys.argv[2] == "stamps": STAMPS = True
    for a in sys.argv[3:]: EXP.add(a)
    ks = [gen_proj(), gen_mix(), gen_out()]
    build(ks, sys.argv[1] if len(sys.argv) > 1 else "k.s")
```

```python
import sys, struct
from asmlib import *

MB = 1 << 20
WS_AT, WS_BT, WS_Q, WS_K, WS_V, WS_O, WS_Y1, WS_Y2, WS_G = [i * 4 * MB for i in range(9)]
WS_SIZE = 40 * MB
LOG2E = 1.4426950408889634
QSCALE = (32 ** -0.5) * LOG2E

def f32bits(x):
    return struct.unpack("<I", struct.pack("<f", x))[0]

def srd(base, lo, hi, size):
    return [f"s_mov_b32 s{base}, s{lo}", f"s_mov_b32 s{base+1}, s{hi}",
            f"s_mov_b32 s{base+2}, {size}", f"s_mov_b32 s{base+3}, 0x00020000"]

def desc(name, nv, ns=102):
    acc = (nv + 3) // 4 * 4
    return f"""
.p2align 6
.amdhsa_kernel {name}
  .amdhsa_next_free_vgpr {nv}
  .amdhsa_next_free_sgpr {ns}
  .amdhsa_accum_offset {acc}
  .amdhsa_group_segment_fixed_size 0
  .amdhsa_kernarg_size 96
  .amdhsa_user_sgpr_count 2
  .amdhsa_user_sgpr_kernarg_segment_ptr 1
  .amdhsa_system_sgpr_workgroup_id_x 1
.end_amdhsa_kernel
"""

def mfma32(d, a, b, c=None):
    cs = vr(d, 16) if c is None else (str(c) if isinstance(c, str) else vr(c, 16))
    return f"v_mfma_f32_32x32x16_bf16 {vr(d,16)}, {vr(a,4)}, {vr(b,4)}, {cs}"
def mfma16(d, a, b):
    return f"v_mfma_f32_16x16x32_bf16 {vr(d,4)}, {vr(a,4)}, {vr(b,4)}, {vr(d,4)}"

STAMPS = False
EXP = set()
def stamp(i):
    if not STAMPS: return []
    return ([f"s_memrealtime s[68:69]"] if i == 0 else [f"s_memrealtime s[100:101]"]) + [f"s_memtime s[{70+2*i}:{71+2*i}]", "s_waitcnt lgkmcnt(0)"] + ([] if i == 0 else [f"s_sub_u32 s{71+2*i}, s100, s68"])
def stamp_dump(n, wgsel=0, slot=0, dbgoff=0):
    if not STAMPS: return []
    o = ["s_load_dwordx2 s[90:91], s[0:1], 80", "s_waitcnt lgkmcnt(0)",
         "s_mov_b32 s92, s90", "s_mov_b32 s93, s91", "s_mov_b32 s94, 256", "s_mov_b32 s95, 0x00020000",
         "s_mov_b64 exec, 1", f"s_mov_b32 s96, {dbgoff}", "s_cmp_lg_u32 s3, 0", "s_cselect_b32 s96, 0x1000, s96"]
    o += [f"s_cmp_lg_u32 s2, {wgsel}", "s_cselect_b32 s96, 0x1000, s96"]
    o += ["s_memrealtime s[98:99]", "s_load_dwordx2 s[60:61], s[0:1], 88", "s_waitcnt lgkmcnt(0)",
          "s_mov_b32 s62, 0x10000000", "s_mov_b32 s63, 0x00020000",
          "s_lshl_b32 s97, s2, 4", f"s_add_u32 s97, s97, {64*MB + slot*65536}",
          "v_mov_b32 v4, s68", "v_mov_b32 v5, s69", "v_mov_b32 v6, s98", "v_mov_b32 v7, s99", "v_mov_b32 v2, 0",
          "buffer_store_dwordx4 v[4:7], v2, s[60:63], s97 offen"]
    for i in range(n):
        o += [f"s_sub_u32 s97, s{70+2*i}, s70", "v_mov_b32 v1, s97", f"v_mov_b32 v2, {4*i}",
              "buffer_store_dword v1, v2, s[92:95], s96 offen"]
    o += ["s_cmp_lg_u32 s3, 0", "s_cselect_b32 s96, 0x1000, s96"]
    for i in range(1, n):
        o += [f"v_mov_b32 v1, s{71+2*i}", f"v_mov_b32 v2, {4*i + 32}", "buffer_store_dword v1, v2, s[92:95], s96 offen"]
    return o

def code_prefetch(nbytes, va, vd):
    if "cpf" not in EXP: return []
    o = ["s_getpc_b64 s[98:99]", f"v_mbcnt_lo_u32_b32 v{va}, -1, 0", f"v_mbcnt_hi_u32_b32 v{va}, -1, v{va}",
         f"v_lshlrev_b32 v{va}, 6, v{va}", f"v_mov_b32 v{va+1}, s99", f"v_add_co_u32 v{va}, vcc, s98, v{va}", "s_nop 1",
         f"v_addc_co_u32 v{va+1}, vcc, 0, v{va+1}, vcc"]
    n = (nbytes + 4095) // 4096
    for i in range(n):
        o += [f"global_load_dword v{vd+i}, v[{va}:{va+1}], off"]
        if i < n - 1:
            o += [f"v_add_co_u32 v{va}, vcc, 0x1000, v{va}", "s_nop 1", f"v_addc_co_u32 v{va+1}, vcc, 0, v{va+1}, vcc"]
    return o

def header(name):
    return [f".globl {name}", ".p2align 8", f".type {name},@function", f"{name}:"]

def gen_proj():
    N = "proj_kernel"
    STG = 53248
    L_HR, L_HI, L_W = 32768, 36864, 40960
    ACC = 96
    def acc(b, c): return ACC + (b * 5 + c) * 16
    def fr(s, i): return 32 + s * 28 + i * 4
    VX = list(range(1, 9)); VH = 9; VW = [10, 88, 89]
    XA0 = [11, 12, 13, 14]; HA0 = [15, 16, 17, 18]; WA0 = 19
    XA = [20, 21, 22, 23]; HA = [24, 25, 26, 27]; WA = 28
    VL16 = 29
    VG = 90
    T0, T1, T2, T3 = 30, 31, 92, 93
    P = []
    P += [f"s_cmp_ge_u32 s2, 256", f"s_cbranch_scc1 {N}_done"]
    P += stamp(0) + code_prefetch(5400, 94, 90)
    P += ["s_load_dwordx2 s[4:5], s[0:1], 0", "s_load_dwordx4 s[32:35], s[0:1], 24",
          "s_load_dwordx2 s[36:37], s[0:1], 48",
          "s_load_dwordx2 s[40:41], s[0:1], 88"]
    P += ["v_lshrrev_b32 v1, 6, v0", "v_and_b32 v0, 63, v0", "v_readfirstlane_b32 s3, v1"]
    P += ["s_and_b32 s42, s2, 7", "s_lshr_b32 s43, s2, 3",
          "s_and_b32 s44, s42, 1", "s_lshl_b32 s44, s44, 2", "s_and_b32 s45, s43, 3", "s_add_u32 s44, s44, s45",
          "s_lshr_b32 s42, s42, 1", "s_lshl_b32 s42, s42, 3", "s_lshr_b32 s43, s43, 2", "s_add_u32 s43, s43, s42"]
    P += ["s_mov_b32 s42, s44"]
    P += ["s_lshl_b32 s44, s42, 8", "s_lshl_b32 s45, s3, 6", "s_add_u32 s44, s44, s45",
          "s_lshl_b32 s50, s3, 13", "s_lshl_b32 s51, s3, 10"]
    P += [f"v_lshrrev_b32 v{T0}, 3, v0", f"v_and_b32 v{T1}, 7, v0", f"v_lshrrev_b32 v{T2}, 4, v0",
          f"v_lshlrev_b32 v{VL16}, 4, v0"]
    P += [f"v_add_u32 v{T3}, s44, v{T0}", f"v_lshlrev_b32 v{T3}, 11, v{T3}",
          f"v_xor_b32 v{VX[0]}, v{T1}, v{T2}", f"v_lshlrev_b32 v{VX[0]}, 4, v{VX[0]}",
          f"v_add_u32 v{VX[0]}, v{VX[0]}, v{T3}"]
    for q in range(1, 8):
        if q % 2 == 1:
            P += [f"v_xor_b32 v{VX[q]}, 64, v{VX[0]}", f"v_add_u32 v{VX[q]}, {q*8*2048}, v{VX[q]}"]
        else:
            P += [f"v_add_u32 v{VX[q]}, {q*8*2048}, v{VX[0]}"]
    P += ["s_lshl_b32 s45, s43, 5", "s_lshl_b32 s46, s3, 3", "s_add_u32 s45, s45, s46",
          f"v_add_u32 v{T3}, s45, v{T0}", f"v_lshlrev_b32 v{T3}, 11, v{T3}",
          "s_lshl_b32 s46, s3, 2", f"v_add_u32 v{VH}, s46, v{T2}", f"v_and_b32 v{VH}, 7, v{VH}",
          f"v_xor_b32 v{VH}, v{VH}, v{T1}", f"v_lshlrev_b32 v{VH}, 4, v{VH}", f"v_add_u32 v{VH}, v{VH}, v{T3}"]
    P += [f"v_lshrrev_b32 v{T3}, 2, v0", "s_lshl_b32 s46, s3, 4", f"v_add_u32 v{T3}, s46, v{T3}",
          "s_movk_i32 s46, 6144", f"v_mul_lo_u32 v{T3}, v{T3}, s46",
          f"v_and_b32 v{VW[0]}, 3, v0", f"v_lshlrev_b32 v{VW[0]}, 4, v{VW[0]}", f"v_add_u32 v{VW[0]}, v{VW[0]}, v{T3}",
          "s_lshl_b32 s46, s43, 6", f"v_add_u32 v{VW[0]}, s46, v{VW[0]}",
          f"v_add_u32 v{VW[1]}, 2048, v{VW[0]}", f"v_add_u32 v{VW[2]}, 4096, v{VW[0]}"]
    P += ["s_waitcnt lgkmcnt(0)"]
    P += srd(8, 4, 5, 4 * MB) + srd(12, 32, 33, 2 * MB) + srd(16, 34, 35, 2 * MB) + srd(20, 36, 37, 6 * MB)
    def dma():
        out = []
        for q in range(8):
            out.append([f"s_add_u32 m0, s53, {1024*q}", f"buffer_load_dwordx4 v{VX[q]}, s[8:11], s45 offen lds"])
        out.append([f"s_add_u32 m0, s54, {L_HR}", f"buffer_load_dwordx4 v{VH}, s[12:15], s45 offen lds"])
        out.append([f"s_add_u32 m0, s54, {L_HI}", f"buffer_load_dwordx4 v{VH}, s[16:19], s45 offen lds"])
        for c in range(3):
            out.append([f"s_add_u32 m0, s54, {L_W + 4096*c}", f"buffer_load_dwordx4 v{VW[c]}, s[20:23], s46 offen lds"])
        return out
    def dma_adv():
        return ["s_add_u32 s47, s47, %d" % STG, "s_cmp_ge_u32 s47, %d" % (3 * STG), "s_cselect_b32 s47, 0, s47",
                "s_add_u32 s53, s47, s50", "s_add_u32 s54, s47, s51",
                "s_add_u32 s45, s45, 128", "s_and_b32 s45, s45, 0x7ff", "s_mul_i32 s46, s45, 3072"]
    P += ["s_mov_b32 s47, 0", "s_mov_b32 s45, 0", "s_mov_b32 s46, 0", "s_mov_b32 s53, s50", "s_mov_b32 s54, s51"]
    for a_, b_ in dma():
        P += [a_, "s_nop 0", b_]
    P += dma_adv()
    P += stamp(1)
    F = []
    F += srd(24, 40, 41, WS_SIZE)
    F += [f"v_lshrrev_b32 v{T0}, 5, v0", f"v_lshrrev_b32 v{T1}, 1, v0", f"v_and_b32 v{T1}, 7, v{T1}",
          f"v_xor_b32 v{T0}, v{T0}, v{T1}",
          f"v_and_b32 v{T1}, 31, v0", f"v_lshlrev_b32 v{T1}, 7, v{T1}"]
    for ks in range(4):
        F += [f"v_xor_b32 v{T2}, {2*ks}, v{T0}", f"v_lshlrev_b32 v{T2}, 4, v{T2}", f"v_add_u32 v{T2}, v{T2}, v{T1}",
              f"v_add_u32 v{XA0[ks]}, s50, v{T2}", f"v_add_u32 v{HA0[ks]}, {L_HR}, v{T2}"]
    F += [f"v_lshrrev_b32 v{T0}, 5, v0", f"v_lshlrev_b32 v{T0}, 3, v{T0}", f"v_bfe_u32 v{T1}, v0, 2, 2",
          f"v_add_u32 v{T0}, v{T0}, v{T1}", f"v_lshlrev_b32 v{T0}, 6, v{T0}",
          f"v_bfe_u32 v{T1}, v0, 4, 1", f"v_lshlrev_b32 v{T1}, 5, v{T1}", f"v_add_u32 v{T0}, v{T0}, v{T1}",
          f"v_and_b32 v{T1}, 3, v0", f"v_lshlrev_b32 v{T1}, 3, v{T1}", f"v_add_u32 v{T0}, v{T0}, v{T1}",
          f"v_add_u32 v{WA0}, {L_W}, v{T0}"]
    for i in range(4):
        F += [f"v_mov_b32 v{XA[i]}, v{XA0[i]}", f"v_mov_b32 v{HA[i]}, v{HA0[i]}"]
    F += [f"v_mov_b32 v{WA}, v{WA0}", "s_mov_b32 s48, 0", "s_mov_b32 s49, 0"]
    for r in range(ACC, ACC + 160):
        F += [f"v_mov_b32 v{r}, 0"]
    d1 = dma()
    per = (len(F) + len(d1) - 1) // len(d1)
    for i, (a_, b_) in enumerate(d1):
        chunk = F[i * per:(i + 1) * per]
        P += [a_] + chunk[:1] + [b_] + chunk[1:]
    P += dma_adv()
    def reads(s, ks):
        return [f"ds_read_b128 {vr(fr(s,0),4)}, v{XA[ks]}",
                f"ds_read_b128 {vr(fr(s,2),4)}, v{HA[ks]}",
                f"ds_read_b128 {vr(fr(s,3),4)}, v{HA[ks]} offset:4096",
                f"ds_read_b64_tr_b16 {vr(fr(s,4),2)}, v{WA} offset:{ks*1024}",
                f"ds_read_b64_tr_b16 {vr(fr(s,4)+2,2)}, v{WA} offset:{ks*1024+256}",
                f"ds_read_b64_tr_b16 {vr(fr(s,5),2)}, v{WA} offset:{4096+ks*1024}",
                f"ds_read_b64_tr_b16 {vr(fr(s,5)+2,2)}, v{WA} offset:{4096+ks*1024+256}",
                f"ds_read_b64_tr_b16 {vr(fr(s,6),2)}, v{WA} offset:{8192+ks*1024}",
                f"ds_read_b64_tr_b16 {vr(fr(s,6)+2,2)}, v{WA} offset:{8192+ks*1024+256}",
                f"ds_read_b128 {vr(fr(s,1),4)}, v{XA[ks]} offset:4096"]
    def mfmas(s):
        out = []
        for b in range(2):
            X = fr(s, b)
            if "p16" in EXP:
                for c in range(5):
                    out += [mfma16(acc(b, c) + 8 * s, X, fr(s, 2 + c)), mfma16(acc(b, c) + 8 * s + 4, X, fr(s, 2 + c))]
                continue
            out += [mfma32(acc(b, 0), X, fr(s, 2)), mfma32(acc(b, 1), X, fr(s, 3)),
                    mfma32(acc(b, 2), fr(s, 4), X), mfma32(acc(b, 3), fr(s, 5), X),
                    mfma32(acc(b, 4), X, fr(s, 6))]
        return out
    def rd_adv():
        o = ["s_add_u32 s48, s48, %d" % STG, "s_cmp_ge_u32 s48, %d" % (3 * STG), "s_cselect_b32 s48, 0, s48"]
        for i in range(4):
            o += [f"v_add_u32 v{XA[i]}, s48, v{XA0[i]}", f"v_add_u32 v{HA[i]}, s48, v{HA0[i]}"]
        o += [f"v_add_u32 v{WA}, s48, v{WA0}"]
        return o
    P += stamp(2) + stamp(3)
    P += ["s_waitcnt vmcnt(13)", "s_barrier"] + stamp(4) + reads(0, 0)
    def body(do_dma, last):
        o = []
        d = dma() if do_dma else []
        def mix(rd, dd):
            out = []
            for i, r in enumerate(rd):
                if i < len(dd): out += [dd[i][0], r, dd[i][1]]
                else: out += [r]
            return out
        def mix2(rd, dd):
            out = []; di = 0
            for i, r in enumerate(rd):
                if i % 2 == 1 and di < len(dd): out += [dd[di][0], r, dd[di][1]]; di += 1
                else: out += [r]
            assert di == len(dd)
            return out
        if "k1d3" in EXP:
            o += ["s_waitcnt lgkmcnt(0)"]
            o += spread(mfmas(0), mix2(reads(1, 1), d[:5]))
            o += ["s_waitcnt lgkmcnt(0)"]
            o += spread(mfmas(1), mix2(reads(0, 2), d[5:9]))
            o += ["s_waitcnt lgkmcnt(0)"]
            o += spread(mfmas(0), mix2(reads(1, 3), d[9:]) + (dma_adv() if do_dma else []) + ([] if last else rd_adv()))
        else:
            o += ["s_waitcnt lgkmcnt(0)"]
            o += spread(mfmas(0), mix(reads(1, 1), d[:7]))
            o += ["s_waitcnt lgkmcnt(0)"]
            o += spread(mfmas(1), mix(reads(0, 2), d[7:]) + (dma_adv() if do_dma else []))
            o += ["s_waitcnt lgkmcnt(0)"]
            o += spread(mfmas(0), reads(1, 3) + ([] if last else rd_adv()))
        o += ["s_waitcnt lgkmcnt(0)"]
        m = mfmas(1)
        if last:
            o += m
        else:
            np_ = 1 if "k1n1" in EXP else (3 if "k1n3" in EXP else 2)
            o += m[:np_] + [f"s_waitcnt vmcnt({13 if do_dma else 0})", "s_barrier"] + spread(m[np_:], reads(0, 0))
        return o
    B = body(True, False)
    loop_tail = ["s_add_u32 s49, s49, 1", "s_cmp_lt_u32 s49, 14", f"s_cbranch_scc1 {N}_loop"]
    B14 = body(False, False)
    B15 = body(False, True)
    def blk_epi(b, c, pk, sreg):
        a = acc(b, c); o = []
        if c == 2:
            for r in range(16): o += [f"v_mul_f32 v{a+r}, s57, v{a+r}"]
        for r in range(8):
            src = r if (c != 4 or "a32" in EXP) else [0, 1, 4, 5, 2, 3, 6, 7][r]
            o += [f"v_cvt_pk_bf16_f32 v{pk+r}, v{a+2*src}, v{a+2*src+1}"]
        if c < 2:
            o += ["s_nop 1"]
            for t in range(2):
                o += [f"v_permlane32_swap_b32 v{pk+4*t}, v{pk+4*t+2}", f"v_permlane32_swap_b32 v{pk+4*t+1}, v{pk+4*t+3}"]
        for t in range(2):
            o += [f"buffer_store_dwordx4 {vr(pk+4*t,4)}, v{VL16}, s[24:27], s{sreg} offen offset:{(2*b+t)*1024}"]
        return o
    ADDR = ["s_lshl_b32 s45, s43, 17", "s_lshl_b32 s46, s42, 14", "s_add_u32 s45, s45, s46",
            "s_lshl_b32 s46, s3, 12", "s_add_u32 s45, s45, s46", f"s_mov_b32 s57, {hex(f32bits(QSCALE))}", "s_mov_b32 s46, s45"]
    if "newlast" in EXP:
        def reads1(s_, ks, rb):
            r = reads(s_, ks)
            return [f"ds_read_b128 {vr(fr(s_,rb),4)}, v{XA[ks]} offset:{4096*rb}"] + r[1:9]
        def mf1(s_, rb): return mfmas(s_)[5 * rb:5 * rb + 5]
        epi0 = []
        for c in range(5):
            epi0 += blk_epi(0, c, 2 + 8 * (c & 1), 45) + [f"s_add_u32 s45, s45, {4*MB}"]
        B15 = []
        for p in range(2):
            for ks in range(4):
                st = (p * 4 + ks) & 1
                B15 += ["s_waitcnt lgkmcnt(0)"]
                nxt = reads1(1 - st, ks + 1, p) if ks < 3 else (reads1(1 - st, 0, 1) if p == 0 else [])
                fill = list(nxt)
                if p == 0 and ks == 0: fill += ADDR
                if p == 1:
                    n = len(epi0)
                    lo = [0, 0, n // 3, 2 * n // 3][ks] if ks > 0 else 0
                    hi = [0, n // 3, 2 * n // 3, n][ks]
                    fill += epi0[lo:hi]
                B15 += spread(mf1(st, p), fill)
        E = stamp(5) + ["s_nop 11"]
        pk = 32
        for c in range(5):
            E += blk_epi(1, c, pk, 46) + [f"s_add_u32 s46, s46, {4*MB}"]
            pk = 32 + (pk - 32 + 8) % 56
    else:
        E = stamp(5) + ["s_nop 7"] + ADDR
        pk = 32
        for c in range(5):
            for b in range(2):
                E += blk_epi(b, c, pk, 45)
                pk = 32 + (pk - 32 + 8) % 56
            E += [f"s_add_u32 s45, s45, {4*MB}"]
    E += stamp(6) + ["s_waitcnt vmcnt(0)"] * STAMPS + stamp(7) + stamp_dump(8, 9)
    E += [f"{N}_done:", "s_endpgm"]
    text = header(N) + P + [f"{N}_loop:"] + B + loop_tail + B14 + B15 + E
    trace = P + B + loop_tail + B + loop_tail + B14 + B15 + E
    errs = check_trace(trace, N)
    return N, text, desc(N, 256), errs, (256, 256, 3 * STG)


ATT_OFF = 40.0
ATT_LMAX = 2.0 ** 60
def gen_attn(merged=False):
    N = "attn_kernel" if not merged else "mix_kernel_a"
    NST = 4; STG = 8192
    Q = {"A": 16, "B": 24}
    S = {"A": 32, "B": 48}
    Pk = {"A": 64, "B": 72}
    O = {"A": 80, "B": 96}
    L = {"A": 112, "B": 116}
    CN = {"A": 120, "B": 136}
    KF = [152, 160]
    VF = [168, 176]
    ONES = 184
    VL16 = 1; VRD = 2; VG = {"A": 3, "B": 4}; T0, T1, T2, T3 = 5, 6, 7, 8
    P = []
    if not merged:
        P += ["s_cmp_ge_u32 s2, 256", f"s_cbranch_scc1 {N}_done"]
        P += ["v_lshrrev_b32 v1, 6, v0", "v_and_b32 v0, 63, v0", "v_readfirstlane_b32 s3, v1"]
    P += stamp(0)
    P += ["s_load_dwordx2 s[40:41], s[0:1], 88", "s_load_dwordx2 s[4:5], s[0:1], 0", "s_load_dwordx2 s[38:39], s[0:1], 64"]
    P += ["s_and_b32 s42, s2, 7", "s_lshr_b32 s43, s2, 3", "s_lshl_b32 s42, s42, 2", "s_lshr_b32 s44, s43, 3",
          "s_add_u32 s42, s42, s44",
          "s_and_b32 s43, s43, 7",
          "s_lshl_b32 s43, s43, 3", "s_lshl_b32 s44, s3, 1", "s_add_u32 s43, s43, s44",
          "s_lshl_b32 s44, s42, 17"]
    P += [f"v_lshlrev_b32 v{VL16}, 4, v0"]
    P += ["s_waitcnt lgkmcnt(0)"] + srd(24, 40, 41, WS_SIZE) + srd(8, 4, 5, 4 * MB) + srd(28, 38, 39, 2048)
    P += ["s_lshl_b32 s45, s43, 11", "s_add_u32 s45, s45, s44", f"s_add_u32 s45, s45, {WS_Q}",
          f"s_add_u32 s46, s44, {WS_K}", f"s_add_u32 s47, s44, {WS_V}"]
    if "rot" in EXP: P += ["s_bfe_u32 s58, s2, 0x30003", "s_lshl_b32 s58, s58, 14"]
    else: P += ["s_mov_b32 s58, 0"]
    P += ["s_add_u32 s59, s46, s58"]
    for i in range(4):
        P += [f"buffer_load_dwordx4 {vr(16+4*i,4)}, v{VL16}, s[24:27], s45 offen offset:{1024*i}"]
    for i in range(4):
        P += [f"buffer_load_dwordx4 {vr(KF[0]+4*i,4)}, v{VL16}, s[24:27], s59 offen offset:{1024*i}"]
    P += ["s_lshl_b32 s51, s3, 10", "s_add_u32 s61, s58, s51", "s_add_u32 s60, s61, 2048", "s_and_b32 s60, s60, 0x1ffff",
          "s_add_u32 s48, s46, s60", "s_add_u32 s49, s47, s61", "s_mov_b32 s50, s51"]
    def dma():
        return [["s_mov_b32 m0, s50", f"buffer_load_dwordx4 v{VL16}, s[24:27], s48 offen lds"],
                ["s_add_u32 m0, s50, 4096", f"buffer_load_dwordx4 v{VL16}, s[24:27], s49 offen lds"]]
    def dma_adv():
        return ["s_add_u32 s60, s60, 4096", "s_and_b32 s60, s60, 0x1ffff", "s_add_u32 s61, s61, 4096", "s_and_b32 s61, s61, 0x1ffff",
                "s_add_u32 s48, s46, s60", "s_add_u32 s49, s47, s61", f"s_add_u32 s50, s50, {STG}",
                f"s_and_b32 s50, s50, {NST*STG-1}"]
    for t in range(NST - 1):
        for a, b in dma(): P += [a, "s_nop 0", b]
        P += dma_adv()
    GX = 192
    P += ["s_lshl_b32 s62, s2, 3", "s_lshl_b32 s45, s3, 1", "s_add_u32 s62, s62, s45", "s_lshl_b32 s45, s62, 11",
          f"v_lshlrev_b32 v{T0}, 5, v0"]
    P += [f"buffer_load_dwordx4 v[{GX}:{GX+3}], v{T0}, s[8:11], s45 offen",
          f"buffer_load_dwordx4 v[{GX+4}:{GX+7}], v{T0}, s[8:11], s45 offen offset:16",
          f"buffer_load_dwordx4 v[{GX+8}:{GX+11}], v{T0}, s[8:11], s45 offen offset:2048",
          f"buffer_load_dwordx4 v[{GX+12}:{GX+15}], v{T0}, s[8:11], s45 offen offset:2064",
          f"buffer_load_dwordx4 v[{GX+16}:{GX+19}], v{T0}, s[28:31], 0 offen",
          f"buffer_load_dwordx4 v[{GX+20}:{GX+23}], v{T0}, s[28:31], 0 offen offset:16"]
    for r in list(range(80, 120)) + list(range(Pk["B"], Pk["B"] + 8)) + list(range(VF[0], VF[0] + 16)):
        P += [f"v_mov_b32 v{r}, 0"]
    P += [f"v_bfe_u32 v{T0}, v0, 2, 1", f"v_bfe_u32 v{T1}, v0, 4, 1", f"v_cmp_eq_u32 vcc, v{T0}, v{T1}",
          f"v_mov_b32 v{T2}, 0x3f803f80", "s_nop 0", f"v_cndmask_b32 v{ONES}, 0, v{T2}, vcc"]
    for i in range(1, 4): P += [f"v_mov_b32 v{ONES+i}, v{ONES}"]
    P += [f"v_mov_b32 v{VRD}, v{VL16}", "s_mov_b32 s52, 0", "s_mov_b32 s53, 0", "s_mov_b32 s63, 0x3f803f80"]
    P += [f"s_waitcnt vmcnt({2*(NST-1)+6})"]
    for X in "AB":
        P += [mfma32(S[X], KF[0], Q[X], "0"), mfma32(S[X], KF[0] + 4, Q[X] + 4),
              mfma32(CN[X], KF[1], Q[X], "0"), mfma32(CN[X], KF[1] + 4, Q[X] + 4)]
    P += ["s_nop 15"]
    for X in "AB":
        m = T0 if X == "A" else T1
        P += [f"v_max3_f32 v{m}, v{S[X]}, v{S[X]+1}, v{S[X]+2}"]
        vals = [S[X] + i for i in range(3, 16)] + [CN[X] + i for i in range(16)]
        for i in range(0, 28, 2):
            P += [f"v_max3_f32 v{m}, v{m}, v{vals[i]}, v{vals[i+1]}"]
        P += [f"v_max_f32 v{m}, v{m}, v{vals[28]}"]
    P += [f"v_mov_b32 v{T2}, v{T0}", f"v_mov_b32 v{T3}, v{T1}", "s_nop 1",
          f"v_permlane32_swap_b32 v{T0}, v{T2}", f"v_permlane32_swap_b32 v{T1}, v{T3}",
          f"v_max_f32 v{T0}, v{T0}, v{T2}", f"v_max_f32 v{T1}, v{T1}, v{T3}",
          f"s_mov_b32 s54, {hex(f32bits(-ATT_OFF))}",
          f"v_sub_f32 v{T0}, s54, v{T0}", f"v_sub_f32 v{T1}, s54, v{T1}"]
    for i in range(16):
        P += [f"v_mov_b32 v{CN['A']+i}, v{T0}", f"v_mov_b32 v{CN['B']+i}, v{T1}"]
    P += ["s_nop 1", mfma32(S["A"], KF[0], Q["A"], CN["A"]), mfma32(S["A"], KF[0] + 4, Q["A"] + 4)]
    P += stamp(1)
    def slot(X, kset_qk, vset_pv, rd):
        Y = "B" if X == "A" else "A"
        mf = [mfma32(S[Y], KF[kset_qk], Q[Y], CN[Y]), mfma32(S[Y], KF[kset_qk] + 4, Q[Y] + 4),
              mfma32(O[Y], VF[vset_pv], Pk[Y]), mfma16(L[Y], ONES, Pk[Y]),
              mfma32(O[Y], VF[vset_pv] + 4, Pk[Y] + 4), mfma16(L[Y], ONES, Pk[Y] + 4)]
        if "a16" in EXP:
            def two(d, a, b): return [mfma16(d, a, b), mfma16(d + 4, a, b)]
            def twoc(d, a, b, c): return [f"v_mfma_f32_16x16x32_bf16 {vr(d,4)}, {vr(a,4)}, {vr(b,4)}, {vr(c,4)}", f"v_mfma_f32_16x16x32_bf16 {vr(d+4,4)}, {vr(a,4)}, {vr(b+4,4)}, {vr(c,4)}"]
            mf = [twoc(S[Y], KF[kset_qk], Q[Y], CN[Y]), twoc(S[Y] + 8, KF[kset_qk] + 4, Q[Y], CN[Y]),
                  two(O[Y], VF[vset_pv], Pk[Y]), [mfma16(L[Y], ONES, Pk[Y])],
                  two(O[Y] + 8, VF[vset_pv] + 4, Pk[Y] + 4), [mfma16(L[Y], ONES, Pk[Y] + 4)]]
        e = [f"v_exp_f32 v{S[X]+i}, v{S[X]+i}" for i in range(16)]
        if "noexp" in EXP: e = [f"v_mov_b32 v{S[X]+i}, v{S[X]+i}" for i in range(16)]
        c = [f"v_cvt_pk_bf16_f32 v{Pk[X]+j}, v{S[X]+2*j}, v{S[X]+2*j+1}" for j in range(8)]
        va = e[0:3] + [c[0]] + e[3:5] + [c[1]] + e[5:7] + [c[2]] + e[7:9] + [c[3]] + e[9:11] + [c[4]] + e[11:13] + [c[5]] + e[13:16] + [c[6], c[7]]
        o = []
        if "ldot" in EXP:
            mf = [mf[0], mf[1], mf[2], mf[4]]
            dots = [f"v_dot2c_f32_bf16 v{L[Y]+(j%4)}, s63, v{Pk[Y]+j}" for j in range(8)]
            for i in range(4):
                o += [mf[i]]
                if i < 2: o += rd[2*i:2*i+2]
                o += va[6*i:6*i+3] + dots[2*i:2*i+1] + va[6*i+3:6*i+6] + dots[2*i+1:2*i+2]
            return o
        if "ladd" in EXP:
            mf = [mf[0], mf[1], mf[2], mf[4]]
            adds = [f"v_add_f32 v{L[X]+(i%4)}, v{L[X]+(i%4)}, v{S[X]+i}" for i in range(16)]
            va2 = []
            ai = 0
            for k_, ins in enumerate(va):
                va2.append(ins)
                if ins.startswith("v_cvt"):
                    va2 += adds[ai:ai+2]; ai += 2
            for i in range(4):
                o += [mf[i]]
                if i < 2: o += rd[2*i:2*i+2]
                o += va2[10*i:10*i+10]
            return o
        for i in range(6):
            if isinstance(mf[i], list):
                o += [mf[i][0]] + va[4*i:4*i+2]
                if len(mf[i]) > 1: o += [mf[i][1]]
                if i < 2: o += rd[2*i:2*i+2]
                o += va[4*i+2:4*i+4]
                continue
            o += [mf[i]]
            if i < 2: o += rd[2*i:2*i+2]
            o += va[4*i:4*i+4]
        return o
    def rds(kb_par, half):
        return [f"ds_read_b128 {vr(KF[1-kb_par],4)}, v{VRD} offset:{half*2048}",
                f"ds_read_b128 {vr(KF[1-kb_par]+4,4)}, v{VRD} offset:{half*2048+1024}",
                f"ds_read_b128 {vr(VF[kb_par],4)}, v{VRD} offset:{4096+half*2048}",
                f"ds_read_b128 {vr(VF[kb_par]+4,4)}, v{VRD} offset:{4096+half*2048+1024}"]
    B = [f"s_waitcnt vmcnt({2*(NST-2)})", "s_barrier"]
    d = dma()
    B += [d[0][0], "s_nop 0", d[0][1], d[1][0], "s_nop 0", d[1][1]] + dma_adv()
    B += slot("A", 0, 1, rds(0, 0))
    B += ["s_waitcnt lgkmcnt(0)"]
    B += slot("B", 1, 0, [])
    B += slot("A", 1, 0, rds(1, 1))
    B += ["s_waitcnt lgkmcnt(0)"]
    B += [f"s_add_u32 s53, s53, {STG}", f"s_and_b32 s53, s53, {NST*STG-1}", f"v_add_u32 v{VRD}, s53, v{VL16}"]
    B += slot("B", 0, 1, [])
    tail = ["s_add_u32 s52, s52, 1", "s_cmp_lt_u32 s52, 32", f"s_cbranch_scc1 {N}_loop"]
    E = stamp(2)
    if "ldot" in EXP:
        E += ["s_nop 1", mfma32(O["B"], VF[1], Pk["B"]), mfma32(O["B"], VF[1] + 4, Pk["B"] + 4)]
        E += [f"v_dot2c_f32_bf16 v{L['B']+(j%4)}, s63, v{Pk['B']+j}" for j in range(8)] + ["s_nop 3"]
        for X in "AB":
            E += [f"v_add_f32 v{L[X]}, v{L[X]}, v{L[X]+1}", f"v_add_f32 v{L[X]+2}, v{L[X]+2}, v{L[X]+3}", f"v_add_f32 v{L[X]}, v{L[X]}, v{L[X]+2}",
                  f"v_mov_b32 v{T1}, v{L[X]}", "s_nop 1", f"v_permlane32_swap_b32 v{L[X]}, v{T1}", f"v_add_f32 v{L[X]}, v{L[X]}, v{T1}"]
        E += ["s_nop 7"]
    else:
        E += ["s_nop 1", mfma32(O["B"], VF[1], Pk["B"]), mfma16(L["B"], ONES, Pk["B"]),
              mfma32(O["B"], VF[1] + 4, Pk["B"] + 4), mfma16(L["B"], ONES, Pk["B"] + 4), "s_nop 15"]
    E += [f"s_mov_b32 s54, {hex(f32bits(ATT_LMAX))}",
          f"v_cmp_gt_f32 vcc, s54, v{L['A']}", f"v_cmp_gt_f32 s[56:57], s54, v{L['B']}", "s_nop 1",
          "s_and_b64 vcc, vcc, s[56:57]", "s_cmp_eq_u64 vcc, exec", f"s_cbranch_scc0 {N}_fallback"]
    E2 = [f"{N}_final:"]
    E2 += ["s_lshl_b32 s45, s43, 16", "s_lshl_b32 s46, s42, 11", "s_add_u32 s45, s45, s46", f"s_add_u32 s45, s45, {WS_O}"]
    for X in "AB":
        E2 += [f"v_rcp_f32 v{T0}, v{L[X]}", "s_nop 0"]
        for i in range(16):
            E2 += [f"v_mul_f32 v{O[X]+i}, v{O[X]+i}, v{T0}"]
        for j in range(8):
            E2 += [f"v_cvt_pk_bf16_f32 v{S[X]+j}, v{O[X]+2*j}, v{O[X]+2*j+1}"]
        for t in range(2):
            E2 += [f"buffer_store_dwordx4 {vr(S[X]+4*t,4)}, v{VL16}, s[24:27], s45 offen offset:{1024*t}"]
        E2 += ["s_add_u32 s45, s45, 65536"]
    A0, A1 = 64, 65
    E2 += ["s_waitcnt vmcnt(4)", f"v_mov_b32 v{A0}, 0", f"v_mov_b32 v{A1}, 0"]
    for i in range(8):
        w = GX + 16 + i
        E2 += [f"v_lshlrev_b32 v66, 16, v{w}", f"v_and_b32 v67, 0xffff0000, v{w}"]
        for r, a in ((0, A0), (1, A1)):
            x = GX + 8 * r + i
            E2 += [f"v_lshlrev_b32 v68, 16, v{x}", f"v_and_b32 v69, 0xffff0000, v{x}",
                  "v_mul_f32 v68, v68, v66", "v_mul_f32 v69, v69, v67",
                  "v_cvt_pk_bf16_f32 v70, v68, v69",
                  "v_lshlrev_b32 v68, 16, v70", "v_and_b32 v69, 0xffff0000, v70",
                  f"v_add_f32 v{a}, v{a}, v68", f"v_add_f32 v{a}, v{a}, v69"]
    for off in (0x041F, 0x081F, 0x101F, 0x201F, 0x401F):
        E2 += [f"ds_swizzle_b32 v66, v{A0} offset:{off}", f"ds_swizzle_b32 v67, v{A1} offset:{off}",
              "s_waitcnt lgkmcnt(0)", f"v_add_f32 v{A0}, v{A0}, v66", f"v_add_f32 v{A1}, v{A1}, v67"]
    E2 += ["s_nop 0", f"v_readlane_b32 s55, v{A0}, 32", f"v_readlane_b32 s56, v{A1}, 32", "s_nop 1",
          f"v_add_f32 v{A0}, s55, v{A0}", f"v_add_f32 v{A1}, s56, v{A1}",
          "v_cmp_eq_u32 vcc, 1, v0", "s_nop 1", f"v_cndmask_b32 v{A0}, v{A0}, v{A1}, vcc",
          f"v_cvt_pk_bf16_f32 v{A0}, v{A0}, v{A0}", f"v_lshlrev_b32 v{A0}, 16, v{A0}",
          f"v_mul_f32 v{A0}, {hex(f32bits(-LOG2E))}, v{A0}", f"v_exp_f32 v{A0}, v{A0}", "s_nop 0",
          f"v_add_f32 v{A0}, 1.0, v{A0}", f"v_rcp_f32 v{A0}, v{A0}", "s_nop 0",
          f"v_cvt_pk_bf16_f32 v{A0}, v{A0}, v{A0}", f"v_lshlrev_b32 v{VG['A']}, 16, v{A0}"]
    E2 += [f"v_lshlrev_b32 v{T0}, 2, v0", "s_lshl_b32 s45, s62, 2", f"s_add_u32 s45, s45, {WS_G}",
           "v_cmp_gt_u32 vcc, 2, v0", "s_and_saveexec_b64 s[58:59], vcc",
           f"buffer_store_dword v{VG['A']}, v{T0}, s[24:27], s45 offen", "s_mov_b64 exec, s[58:59]"]
    E2 += stamp(3) + ["s_waitcnt vmcnt(0)"] + stamp(4) + stamp_dump(5, 9, 1)
    E2 += [f"{N}_done:", "s_endpgm"]
    F = [f"{N}_fallback:", "s_waitcnt vmcnt(0)"]
    M = {"A": 9, "B": 10}; AL = 11
    for X in "AB":
        F += [f"v_mov_b32 v{M[X]}, 0xff7fffff", f"v_mov_b32 v{L[X]}, 0"]
        for i in range(16): F += [f"v_mov_b32 v{O[X]+i}, 0"]
    F += [f"s_add_u32 s46, s44, {WS_K}", f"s_add_u32 s47, s44, {WS_V}", "s_mov_b32 s52, 0"]
    FB = []
    FB += [f"buffer_load_dwordx4 {vr(KF[0],4)}, v{VL16}, s[24:27], s46 offen",
           f"buffer_load_dwordx4 {vr(KF[0]+4,4)}, v{VL16}, s[24:27], s46 offen offset:1024",
           f"buffer_load_dwordx4 {vr(VF[0],4)}, v{VL16}, s[24:27], s47 offen",
           f"buffer_load_dwordx4 {vr(VF[0]+4,4)}, v{VL16}, s[24:27], s47 offen offset:1024",
           "s_waitcnt vmcnt(0)"]
    for X in "AB":
        FB += [mfma32(S[X], KF[0], Q[X], "0"), mfma32(S[X], KF[0] + 4, Q[X] + 4), "s_nop 15"]
        FB += [f"v_max3_f32 v{T0}, v{S[X]}, v{S[X]+1}, v{M[X]}"]
        for i in range(2, 16, 2): FB += [f"v_max3_f32 v{T0}, v{T0}, v{S[X]+i}, v{S[X]+i+1}"]
        FB += [f"v_mov_b32 v{T1}, v{T0}", "s_nop 1", f"v_permlane32_swap_b32 v{T0}, v{T1}", f"v_max_f32 v{T0}, v{T0}, v{T1}",
               f"v_sub_f32 v{AL}, v{M[X]}, v{T0}", f"v_exp_f32 v{AL}, v{AL}", f"v_mov_b32 v{M[X]}, v{T0}",
               f"v_mul_f32 v{L[X]}, v{L[X]}, v{AL}"]
        for i in range(16):
            FB += [f"v_sub_f32 v{S[X]+i}, v{S[X]+i}, v{T0}", f"v_exp_f32 v{S[X]+i}, v{S[X]+i}", f"v_mul_f32 v{O[X]+i}, v{O[X]+i}, v{AL}"]
        for j in range(8):
            FB += [f"v_cvt_pk_bf16_f32 v{Pk[X]+j}, v{S[X]+2*j}, v{S[X]+2*j+1}",
                   f"v_lshlrev_b32 v{T1}, 16, v{Pk[X]+j}", f"v_and_b32 v{T2}, 0xffff0000, v{Pk[X]+j}",
                   f"v_add_f32 v{L[X]}, v{L[X]}, v{T1}", f"v_add_f32 v{L[X]}, v{L[X]}, v{T2}"]
        FB += ["s_nop 1", mfma32(O[X], VF[0], Pk[X]), mfma32(O[X], VF[0] + 4, Pk[X] + 4)]
    FB += ["s_nop 15", "s_add_u32 s46, s46, 2048", "s_add_u32 s47, s47, 2048", "s_add_u32 s52, s52, 1", "s_cmp_lt_u32 s52, 64",
           f"s_cbranch_scc1 {N}_fbloop"]
    FE = []
    for X in "AB":
        FE += [f"v_mov_b32 v{T1}, v{L[X]}", "s_nop 1", f"v_permlane32_swap_b32 v{L[X]}, v{T1}", f"v_add_f32 v{L[X]}, v{L[X]}, v{T1}"]
    FE += [f"s_branch {N}_final"]
    text = (header(N) if not merged else []) + P + [f"{N}_loop:"] + B + tail + E + E2 + F + [f"{N}_fbloop:"] + FB + FE
    errs = check_trace(P + B + tail + B + tail + E + E2, N)
    errs += check_trace(P + B + tail + E + F + FB + FB + FE + E2, N + "_fb")
    return N, text, desc(N, 216), errs, (256, 256, NST * STG)


def mix(rd, dd):
    out = []
    for i, r in enumerate(rd):
        if i < len(dd): out += [dd[i][0], r, dd[i][1]] if dd[i][0] else [r, dd[i][1]]
        else: out += [r]
    for j in range(len(rd), len(dd)):
        out += ([dd[j][0], "s_nop 0"] if dd[j][0] else []) + [dd[j][1]]
    return out

def kloop(N, nkt, nst, ndma, dma, dma_adv, reads, mfmas, rd_adv, cnt_sreg, npre=1, late=0, mid=[]):
    pre = [f"s_waitcnt vmcnt({ndma*(nst-2-late)})", "s_barrier"] + reads(0, 0) + [f"s_mov_b32 s{cnt_sreg}, 0"]
    for i in range(late):
        pre += mix([], dma()) + dma_adv()
    def body(do_dma, last, inflight):
        o = []
        d = dma() if do_dma else []
        h = (len(d) + 1) // 2
        o += ["s_waitcnt lgkmcnt(0)"]
        o += spread(mfmas(0, 0), mix(reads(1, 1), d[:h]))
        o += ["s_waitcnt lgkmcnt(0)"]
        o += spread(mfmas(1, 1), mix(reads(0, 2), d[h:]) + (dma_adv() if do_dma else []))
        o += ["s_waitcnt lgkmcnt(0)"]
        o += spread(mfmas(0, 2), reads(1, 3) + ([] if last else rd_adv()))
        o += ["s_waitcnt lgkmcnt(0)"]
        m = mfmas(1, 3)
        if last:
            o += m
        else:
            o += m[:npre] + [f"s_waitcnt vmcnt({inflight*ndma})", "s_barrier"] + spread(m[npre:], reads(0, 0))
        return o
    nmain = nkt - (nst - 1)
    B = body(True, False, nst - 2)
    tail = [f"s_add_u32 s{cnt_sreg}, s{cnt_sreg}, 1", f"s_cmp_lt_u32 s{cnt_sreg}, {nmain}", f"s_cbranch_scc1 {N}_loop"]
    rest = []
    for i in range(nst - 1):
        last = (i == nst - 2)
        rest += body(False, last, nst - 3 - i if not last else 0)
    text = [f"{N}_loop:"] + B + tail + mid + rest
    trace = B + tail + B + tail + mid + rest
    return pre, text, trace

def gen_ygemm(merged=False):
    N = "ygemm_kernel" if not merged else "mix_kernel_y"
    NST = 4; STG = 32768; L_B = 16384
    LB0 = 32768 if merged else 0
    ACC = 64
    def acc(i, j): return ACC + (i * 2 + j) * 16
    def fr(s, i): return 32 + s * 16 + i * 4
    VL16 = 1; VB = [2, 3, 4, 5]; AA0 = 6; BA0 = [7, 8, 9, 10]; AA = 11; BA = [12, 13, 14, 15]
    T0, T1, T2, T3 = 16, 17, 18, 19
    P = []
    if not merged:
        P += ["s_cmp_ge_u32 s2, 256", f"s_cbranch_scc1 {N}_done"]
        P += ["v_lshrrev_b32 v1, 6, v0", "v_and_b32 v0, 63, v0", "v_readfirstlane_b32 s3, v1"]
    P += stamp(0)
    P += ["s_and_b32 s42, s2, 1",
          "s_load_dwordx4 s[4:7], s[0:1], 8", "s_load_dwordx2 s[40:41], s[0:1], 88"]
    P += ["s_bfe_u32 s44, s2, 0x10001", "s_lshl_b32 s44, s44, 2", "s_bfe_u32 s45, s2, 0x20003", "s_add_u32 s44, s44, s45",
          "s_bfe_u32 s45, s2, 0x10002", "s_lshl_b32 s45, s45, 3", "s_lshr_b32 s46, s2, 5", "s_add_u32 s45, s45, s46"]
    P += [f"v_lshlrev_b32 v{VL16}, 4, v0"]
    P += [f"v_lshrrev_b32 v{T0}, 3, v0", f"v_and_b32 v{T1}, 7, v0", f"v_lshrrev_b32 v{T2}, 4, v0",
          "s_lshl_b32 s46, s45, 7", "s_lshl_b32 s47, s3, 5", "s_add_u32 s46, s46, s47",
          f"v_add_u32 v{T3}, s46, v{T0}", f"v_lshlrev_b32 v{T3}, 12, v{T3}",
          f"v_xor_b32 v{VB[0]}, v{T1}, v{T2}", f"v_lshlrev_b32 v{VB[0]}, 4, v{VB[0]}", f"v_add_u32 v{VB[0]}, v{VB[0]}, v{T3}"]
    for q in range(1, 4):
        if q % 2: P += [f"v_xor_b32 v{VB[q]}, 64, v{VB[0]}", f"v_add_u32 v{VB[q]}, {q*8*4096}, v{VB[q]}"]
        else: P += [f"v_add_u32 v{VB[q]}, {q*8*4096}, v{VB[0]}"]
    P += ["s_and_b32 s46, s3, 1", "s_lshl_b32 s46, s46, 13", f"s_add_u32 s46, s46, {LB0}", f"v_add_u32 v{AA0}, s46, v{VL16}",
          "s_lshr_b32 s46, s3, 1", "s_lshl_b32 s46, s46, 13", f"s_add_u32 s46, s46, {L_B + LB0}"]
    P += [f"v_lshrrev_b32 v{T0}, 5, v0", f"v_lshrrev_b32 v{T1}, 1, v0", f"v_and_b32 v{T1}, 7, v{T1}",
          f"v_xor_b32 v{T0}, v{T0}, v{T1}", f"v_and_b32 v{T1}, 31, v0", f"v_lshlrev_b32 v{T1}, 7, v{T1}",
          f"v_add_u32 v{T1}, s46, v{T1}"]
    for ks in range(4):
        P += [f"v_xor_b32 v{T2}, {2*ks}, v{T0}", f"v_lshlrev_b32 v{T2}, 4, v{T2}", f"v_add_u32 v{BA0[ks]}, v{T2}, v{T1}",
              f"v_mov_b32 v{BA[ks]}, v{BA0[ks]}"]
    P += [f"v_mov_b32 v{AA}, v{AA0}"]
    P += ["s_waitcnt lgkmcnt(0)", "s_cmp_eq_u32 s42, 0", "s_cselect_b32 s4, s4, s6", "s_cselect_b32 s5, s5, s7"] + srd(8, 4, 5, 8 * MB) + srd(24, 40, 41, WS_SIZE)
    P += ["s_lshl_b32 s47, s44, 2", "s_add_u32 s47, s47, s3", "s_lshl_b32 s47, s47, 17",
          f"s_mul_i32 s46, s42, {4*MB}", "s_add_u32 s47, s47, s46",
          "s_mov_b32 s48, 0", "s_lshl_b32 s50, s3, 12", "s_mov_b32 s49, s50", "s_mov_b32 s51, 0", "s_mov_b32 s57, s47"]
    if "yrot1" in EXP or "yrot2" in EXP:
        P += ["s_lshr_b32 s48, s2, 5", f"s_lshl_b32 s48, s48, {8 if 'yrot2' in EXP else 7}", "s_lshl_b32 s56, s48, 5", "s_add_u32 s47, s57, s56"]
    if "rot" in EXP:
        P += ["s_lshr_b32 s48, s2, 5", "s_lshl_b32 s48, s48, 2", "s_bfe_u32 s56, s2, 0x20003", "s_lshl_b32 s56, s56, 3",
              "s_add_u32 s48, s48, s56", "s_and_b32 s48, s48, 31", "s_lshl_b32 s48, s48, 7",
              "s_lshl_b32 s56, s48, 5", "s_add_u32 s47, s57, s56"]
    def dma():
        o = [[f"s_add_u32 m0, s49, {LB0}", f"buffer_load_dwordx4 v{VL16}, s[24:27], s47 offen lds"]]
        for u in range(1, 4):
            o.append([None, f"buffer_load_dwordx4 v{VL16}, s[24:27], s47 offen offset:{1024*u} lds"])
        for q in range(4):
            o.append([f"s_add_u32 m0, s49, {LB0 + L_B + 1024*q}", f"buffer_load_dwordx4 v{VB[q]}, s[8:11], s48 offen lds"])
        if "noydma" in EXP: o = [[a_, "s_nop 0"] for a_, b_ in o]
        return o
    def dma_adv():
        return ["s_add_u32 s48, s48, 128", "s_and_b32 s48, s48, 0xfff", "s_lshl_b32 s56, s48, 5", "s_add_u32 s47, s57, s56",
                f"s_add_u32 s49, s49, {STG}", f"s_and_b32 s49, s49, {NST*STG-1}"]
    LATE = 0 if "late0" in EXP else (2 if "late2" in EXP else 1)
    for t in range(NST - 1 - LATE):
        P += mix([], dma()) + dma_adv()
    for r in range(ACC, ACC + 64): P += [f"v_mov_b32 v{r}, 0"]
    def reads(s_, ks):
        if "noyrd" in EXP: return ["s_nop 0"] * 4
        return [f"ds_read_b128 {vr(fr(s_,0),4)}, v{AA} offset:{ks*1024}",
                f"ds_read_b128 {vr(fr(s_,2),4)}, v{BA[ks]}",
                f"ds_read_b128 {vr(fr(s_,3),4)}, v{BA[ks]} offset:4096",
                f"ds_read_b128 {vr(fr(s_,1),4)}, v{AA} offset:{4096+ks*1024}"]
    def mfmas(s_, ks=0):
        if "noy" in EXP: return ["s_nop 0"] * 4
        if "y16" in EXP:
            o = []
            for (i, j) in ((0, 0), (0, 1), (1, 0), (1, 1)):
                o += [mfma16(acc(i, j) + 8 * s_, fr(s_, i), fr(s_, 2 + j)), mfma16(acc(i, j) + 8 * s_ + 4, fr(s_, i), fr(s_, 2 + j))]
            return o
        return [mfma32(acc(0, 0), fr(s_, 0), fr(s_, 2)), mfma32(acc(0, 1), fr(s_, 0), fr(s_, 3)),
                mfma32(acc(1, 0), fr(s_, 1), fr(s_, 2)), mfma32(acc(1, 1), fr(s_, 1), fr(s_, 3))]
    def rd_adv():
        o = [f"s_add_u32 s51, s51, {STG}", f"s_and_b32 s51, s51, {NST*STG-1}", f"v_add_u32 v{AA}, s51, v{AA0}"]
        for i in range(4): o += [f"v_add_u32 v{BA[i]}, s51, v{BA0[i]}"]
        return o
    P += stamp(1)
    pre, ktext, ktrace = kloop(N, 32, NST, 8, dma, dma_adv, reads, mfmas, rd_adv, 52, late=LATE)
    E = ["s_nop 15"] + stamp(2)
    E += ["s_lshl_b32 s46, s44, 2", "s_and_b32 s47, s3, 1", "s_lshl_b32 s47, s47, 1", "s_add_u32 s46, s46, s47", "s_lshl_b32 s46, s46, 17",
          "s_lshl_b32 s47, s45, 2", "s_lshr_b32 s48, s3, 1", "s_lshl_b32 s48, s48, 1", "s_add_u32 s47, s47, s48", "s_lshl_b32 s47, s47, 11",
          "s_add_u32 s46, s46, s47", f"s_mul_i32 s47, s42, {4*MB}", "s_add_u32 s46, s46, s47", f"s_add_u32 s46, s46, {WS_Y1}"]
    pk = 32
    for i in range(2):
        for j in range(2):
            a = acc(i, j)
            for r in range(8): E += [f"v_cvt_pk_bf16_f32 v{pk+r}, v{a+2*r}, v{a+2*r+1}"]
            for t in range(2):
                E += [f"buffer_store_dwordx4 {vr(pk+4*t,4)}, v{VL16}, s[24:27], s46 offen offset:{j*2048+t*1024}"]
            pk = 32 + (pk - 32 + 8) % 32
        E += ["s_add_u32 s46, s46, 131072"]
    E += stamp(3) + ["s_waitcnt vmcnt(0)"] * STAMPS + stamp(4) + stamp_dump(5, 9, 2, 128 if merged else 0)
    E += [f"{N}_done:", "s_endpgm"]
    text = (header(N) if not merged else []) + P + pre + ktext + E
    errs = check_trace(P + pre + ktrace + E, N)
    return N, text, desc(N, 128), errs, (256, 256, NST * STG)

def gen_ygemm16(merged=False):
    N = "ygemm_kernel" if not merged else "mix_kernel_y"
    NST = 4; STG = 32768; L_B = 16384
    LB0 = 32768 if merged else 0
    ACC = 72
    def acc(i, j): return ACC + (i * 4 + j) * 4
    def fa(s, i): return 24 + s * 8 + i * 4
    def fb(s, j): return 40 + s * 16 + j * 4
    VL16 = 1; VB = [2, 3, 4, 5]; AA0 = 6; BA0 = [7, 8]; AA = 11; BA = [12, 13]; VY = 14
    T0, T1, T2, T3 = 16, 17, 18, 19
    P = []
    if not merged:
        P += ["s_cmp_ge_u32 s2, 256", f"s_cbranch_scc1 {N}_done"]
        P += ["v_lshrrev_b32 v1, 6, v0", "v_and_b32 v0, 63, v0", "v_readfirstlane_b32 s3, v1"]
    P += stamp(0)
    P += ["s_and_b32 s42, s2, 1",
          "s_load_dwordx4 s[4:7], s[0:1], 8", "s_load_dwordx2 s[40:41], s[0:1], 88"]
    P += ["s_bfe_u32 s44, s2, 0x10001", "s_lshl_b32 s44, s44, 2", "s_bfe_u32 s45, s2, 0x20003", "s_add_u32 s44, s44, s45",
          "s_bfe_u32 s45, s2, 0x10002", "s_lshl_b32 s45, s45, 3", "s_lshr_b32 s46, s2, 5", "s_add_u32 s45, s45, s46"]
    P += [f"v_lshlrev_b32 v{VL16}, 4, v0"]
    P += [f"v_lshrrev_b32 v{T0}, 3, v0", f"v_and_b32 v{T1}, 7, v0", f"v_lshrrev_b32 v{T2}, 4, v0",
          "s_lshl_b32 s46, s45, 7", "s_lshl_b32 s47, s3, 5", "s_add_u32 s46, s46, s47",
          f"v_add_u32 v{T3}, s46, v{T0}", f"v_lshlrev_b32 v{T3}, 12, v{T3}",
          f"v_xor_b32 v{VB[0]}, v{T1}, v{T2}", f"v_lshlrev_b32 v{VB[0]}, 4, v{VB[0]}", f"v_add_u32 v{VB[0]}, v{VB[0]}, v{T3}"]
    for q in range(1, 4):
        if q % 2: P += [f"v_xor_b32 v{VB[q]}, 64, v{VB[0]}", f"v_add_u32 v{VB[q]}, {q*8*4096}, v{VB[q]}"]
        else: P += [f"v_add_u32 v{VB[q]}, {q*8*4096}, v{VB[0]}"]
    P += [f"v_and_b32 v{T0}, 15, v0", f"v_lshrrev_b32 v{T1}, 4, v0",
          f"v_and_b32 v{T2}, 1, v{T1}", f"v_lshlrev_b32 v{T2}, 5, v{T2}", f"v_add_u32 v{T2}, v{T2}, v{T0}", f"v_lshlrev_b32 v{T2}, 4, v{T2}",
          f"v_lshrrev_b32 v{T3}, 1, v{T1}",
          f"v_lshlrev_b32 v{VY}, 3, v{T3}", f"v_add_u32 v{VY}, v{VY}, v{T2}",
          f"v_lshlrev_b32 v{T3}, 10, v{T3}", f"v_add_u32 v{T2}, v{T2}, v{T3}",
          "s_and_b32 s46, s3, 1", "s_lshl_b32 s46, s46, 13", f"s_add_u32 s46, s46, {LB0}", f"v_add_u32 v{AA0}, s46, v{T2}",
          "s_lshr_b32 s46, s3, 1", "s_lshl_b32 s46, s46, 13", f"s_add_u32 s46, s46, {L_B + LB0}",
          f"v_lshrrev_b32 v{T2}, 1, v{T0}", f"v_xor_b32 v{T2}, v{T2}, v{T1}",
          f"v_lshlrev_b32 v{T3}, 7, v{T0}", f"v_add_u32 v{T3}, s46, v{T3}"]
    for kk in range(2):
        P += [f"v_xor_b32 v{T0}, {4*kk}, v{T2}", f"v_lshlrev_b32 v{T0}, 4, v{T0}", f"v_add_u32 v{BA0[kk]}, v{T0}, v{T3}",
              f"v_mov_b32 v{BA[kk]}, v{BA0[kk]}"]
    P += [f"v_mov_b32 v{AA}, v{AA0}"]
    P += ["s_waitcnt lgkmcnt(0)", "s_cmp_eq_u32 s42, 0", "s_cselect_b32 s4, s4, s6", "s_cselect_b32 s5, s5, s7"] + srd(8, 4, 5, 8 * MB) + srd(24, 40, 41, WS_SIZE)
    P += ["s_lshl_b32 s47, s44, 2", "s_add_u32 s47, s47, s3", "s_lshl_b32 s47, s47, 17",
          f"s_mul_i32 s46, s42, {4*MB}", "s_add_u32 s47, s47, s46",
          "s_mov_b32 s48, 0", "s_lshl_b32 s50, s3, 12", "s_mov_b32 s49, s50", "s_mov_b32 s51, 0", "s_mov_b32 s57, s47"]
    if "yrot1" in EXP or "yrot2" in EXP:
        P += ["s_lshr_b32 s48, s2, 5", f"s_lshl_b32 s48, s48, {8 if 'yrot2' in EXP else 7}", "s_lshl_b32 s56, s48, 5", "s_add_u32 s47, s57, s56"]
    if "rot" in EXP:
        P += ["s_lshr_b32 s48, s2, 5", "s_lshl_b32 s48, s48, 2", "s_bfe_u32 s56, s2, 0x20003", "s_lshl_b32 s56, s56, 3",
              "s_add_u32 s48, s48, s56", "s_and_b32 s48, s48, 31", "s_lshl_b32 s48, s48, 7",
              "s_lshl_b32 s56, s48, 5", "s_add_u32 s47, s57, s56"]
    def dma():
        o = [[f"s_add_u32 m0, s49, {LB0}", f"buffer_load_dwordx4 v{VL16}, s[24:27], s47 offen lds"]]
        for u in range(1, 4):
            o.append([None, f"buffer_load_dwordx4 v{VL16}, s[24:27], s47 offen offset:{1024*u} lds"])
        for q in range(4):
            o.append([f"s_add_u32 m0, s49, {LB0 + L_B + 1024*q}", f"buffer_load_dwordx4 v{VB[q]}, s[8:11], s48 offen lds"])
        if "noydma" in EXP: o = [[a_, "s_nop 0"] for a_, b_ in o]
        return o
    def dma_adv():
        return ["s_add_u32 s48, s48, 128", "s_and_b32 s48, s48, 0xfff", "s_lshl_b32 s56, s48, 5", "s_add_u32 s47, s57, s56",
                f"s_add_u32 s49, s49, {STG}", f"s_and_b32 s49, s49, {NST*STG-1}"]
    LATE = 0 if "late0" in EXP else (2 if "late2" in EXP else 1)
    for t in range(NST - 1 - LATE):
        P += mix([], dma()) + dma_adv()
    for r in range(ACC, ACC + 64): P += [f"v_mov_b32 v{r}, 0"]
    def reads(s_, ks):
        kk, eh = ks >> 1, ks & 1
        o = [f"ds_read_b128 {vr(fa(s_,0),4)}, v{AA} offset:{eh*4096+kk*2048}"]
        if eh == 0:
            o += [f"ds_read_b128 {vr(fb(kk,j),4)}, v{BA[kk]} offset:{j*2048}" for j in range(4)]
        o += [f"ds_read_b128 {vr(fa(s_,1),4)}, v{AA} offset:{eh*4096+kk*2048+256}"]
        return o
    def mfmas(s_, ks=0):
        kk, eh = ks >> 1, ks & 1
        return [mfma16(acc(2 * eh + i, j), fa(s_, i), fb(kk, j)) for i in range(2) for j in range(4)]
    def rd_adv():
        o = [f"s_add_u32 s51, s51, {STG}", f"s_and_b32 s51, s51, {NST*STG-1}", f"v_add_u32 v{AA}, s51, v{AA0}"]
        for i in range(2): o += [f"v_add_u32 v{BA[i]}, s51, v{BA0[i]}"]
        return o
    P += stamp(1)
    pre, ktext, ktrace = kloop(N, 32, NST, 8, dma, dma_adv, reads, mfmas, rd_adv, 52, npre=2, late=LATE)
    E = ["s_nop 15"] + stamp(2)
    E += ["s_lshl_b32 s46, s44, 2", "s_and_b32 s47, s3, 1", "s_lshl_b32 s47, s47, 1", "s_add_u32 s46, s46, s47", "s_lshl_b32 s46, s46, 17",
          "s_lshl_b32 s47, s45, 2", "s_lshr_b32 s48, s3, 1", "s_lshl_b32 s48, s48, 1", "s_add_u32 s47, s47, s48", "s_lshl_b32 s47, s47, 11",
          "s_add_u32 s46, s46, s47", f"s_mul_i32 s47, s42, {4*MB}", "s_add_u32 s46, s46, s47", f"s_add_u32 s46, s46, {WS_Y1}"]
    pk = 24
    for i in range(4):
        for j in range(4):
            a = acc(i, j)
            E += [f"v_cvt_pk_bf16_f32 v{pk}, v{a}, v{a+1}", f"v_cvt_pk_bf16_f32 v{pk+1}, v{a+2}, v{a+3}",
                  f"buffer_store_dwordx2 {vr(pk,2)}, v{VY}, s[24:27], s46 offen offset:{(i&1)*1024 + (j&1)*256 + (j>>1)*2048}"]
            pk = 24 + (pk - 24 + 2) % 32
        if i == 1: E += ["s_add_u32 s46, s46, 131072"]
    E += stamp(3) + ["s_waitcnt vmcnt(0)"] * STAMPS + stamp(4) + stamp_dump(5, 9, 2, 128 if merged else 0)
    E += [f"{N}_done:", "s_endpgm"]
    text = (header(N) if not merged else []) + P + pre + ktext + E
    errs = check_trace(P + pre + ktrace + E, N)
    return N, text, desc(N, 136), errs, (256, 256, NST * STG)


def mfma16c(d, a, b, c):
    cs = c if isinstance(c, str) else vr(c, 4)
    return f"v_mfma_f32_16x16x32_bf16 {vr(d,4)}, {vr(a,4)}, {vr(b,4)}, {cs}"

def gen_attn16():
    N = "mix_kernel_a"
    NST = 4; STG = 8192
    def Q(qb): return 16 + 4 * qb
    S = {"A": 32, "B": 48}
    Pk = {"A": 64, "B": 72}
    def O(qb, db=0): return 80 + 8 * qb + 4 * db
    def L(qb): return 112 + 4 * qb
    def CN(qb): return 128 + 4 * qb
    KF = [144, 152]; VF = [160, 168]; ONES = 176
    QB0 = {"A": 0, "B": 2}
    VL16 = 1; VRD = 2; VG = 3; VPAT = 4; T0, T1, T2, T3 = 5, 6, 7, 8; VO = 9
    P = []
    P += stamp(0)
    P += ["s_load_dwordx2 s[40:41], s[0:1], 88", "s_load_dwordx2 s[4:5], s[0:1], 0", "s_load_dwordx2 s[38:39], s[0:1], 64"]
    P += ["s_and_b32 s42, s2, 7", "s_lshr_b32 s43, s2, 3", "s_lshl_b32 s42, s42, 2", "s_lshr_b32 s44, s43, 3",
          "s_add_u32 s42, s42, s44", "s_and_b32 s43, s43, 7",
          "s_lshl_b32 s43, s43, 3", "s_lshl_b32 s44, s3, 1", "s_add_u32 s43, s43, s44",
          "s_lshl_b32 s44, s42, 17"]
    P += [f"v_lshlrev_b32 v{VL16}, 4, v0", f"v_and_b32 v{T0}, 15, v0", f"v_bfe_u32 v{T1}, v0, 4, 1", f"v_lshlrev_b32 v{T1}, 5, v{T1}",
          f"v_add_u32 v{T0}, v{T0}, v{T1}", f"v_lshlrev_b32 v{T0}, 4, v{T0}", f"v_lshrrev_b32 v{T1}, 5, v0",
          f"v_lshlrev_b32 v{T2}, 10, v{T1}", f"v_add_u32 v{VPAT}, v{T0}, v{T2}", f"v_lshlrev_b32 v{T2}, 3, v{T1}", f"v_add_u32 v{VO}, v{T0}, v{T2}"]
    P += ["s_waitcnt lgkmcnt(0)"] + srd(24, 40, 41, WS_SIZE) + srd(8, 4, 5, 4 * MB) + srd(28, 38, 39, 2048)
    P += ["s_lshl_b32 s45, s43, 11", "s_add_u32 s45, s45, s44", f"s_add_u32 s45, s45, {WS_Q}",
          f"s_add_u32 s46, s44, {WS_K}", f"s_add_u32 s47, s44, {WS_V}"]
    for qb in range(4):
        P += [f"buffer_load_dwordx4 {vr(Q(qb),4)}, v{VPAT}, s[24:27], s45 offen offset:{(qb&1)*256 + (qb>>1)*2048}"]
    for i in range(4):
        P += [f"buffer_load_dwordx4 {vr(KF[0]+4*i,4)}, v{VPAT}, s[24:27], s46 offen offset:{(i&1)*256 + (i>>1)*2048}"]
    P += ["s_lshl_b32 s51, s3, 10", "s_mov_b32 s61, s51", "s_add_u32 s60, s61, 2048",
          "s_add_u32 s48, s46, s60", "s_add_u32 s49, s47, s61", "s_mov_b32 s50, s51"]
    def dma():
        return [["s_mov_b32 m0, s50", f"buffer_load_dwordx4 v{VL16}, s[24:27], s48 offen lds"],
                ["s_add_u32 m0, s50, 4096", f"buffer_load_dwordx4 v{VL16}, s[24:27], s49 offen lds"]]
    def dma_adv():
        return ["s_add_u32 s60, s60, 4096", "s_and_b32 s60, s60, 0x1ffff", "s_add_u32 s61, s61, 4096", "s_and_b32 s61, s61, 0x1ffff",
                "s_add_u32 s48, s46, s60", "s_add_u32 s49, s47, s61", f"s_add_u32 s50, s50, {STG}",
                f"s_and_b32 s50, s50, {NST*STG-1}"]
    for t in range(NST - 1):
        for a, b in dma(): P += [a, "s_nop 0", b]
        P += dma_adv()
    GX = 192
    P += ["s_lshl_b32 s62, s2, 3", "s_lshl_b32 s45, s3, 1", "s_add_u32 s62, s62, s45", "s_lshl_b32 s45, s62, 11",
          f"v_lshlrev_b32 v{T0}, 5, v0"]
    P += [f"buffer_load_dwordx4 v[{GX}:{GX+3}], v{T0}, s[8:11], s45 offen",
          f"buffer_load_dwordx4 v[{GX+4}:{GX+7}], v{T0}, s[8:11], s45 offen offset:16",
          f"buffer_load_dwordx4 v[{GX+8}:{GX+11}], v{T0}, s[8:11], s45 offen offset:2048",
          f"buffer_load_dwordx4 v[{GX+12}:{GX+15}], v{T0}, s[8:11], s45 offen offset:2064",
          f"buffer_load_dwordx4 v[{GX+16}:{GX+19}], v{T0}, s[28:31], 0 offen",
          f"buffer_load_dwordx4 v[{GX+20}:{GX+23}], v{T0}, s[28:31], 0 offen offset:16"]
    for r in list(range(112, 128)) + list(range(Pk["B"], Pk["B"] + 8)) + list(range(VF[0], VF[0] + 16)):
        P += [f"v_mov_b32 v{r}, 0"]
    for i in range(4): P += [f"v_mov_b32 v{ONES+i}, 0x3f803f80"]
    P += [f"v_mov_b32 v{VRD}, v{VPAT}", "s_mov_b32 s52, 0", "s_mov_b32 s53, 0"]
    P += [f"s_waitcnt vmcnt({2*(NST-1)+6})"]
    def TM(qb): return (32 + 16 * qb) if qb < 2 else (80 + 16 * (qb - 2))
    for qb in range(4):
        for i in range(4):
            P += [mfma16c(TM(qb) + 4 * i, KF[0] + 4 * i, Q(qb), "0")]
    P += ["s_nop 7"]
    MX = [10, 11, 12, 13]
    for qb in range(4):
        t = TM(qb); m = MX[qb]
        P += [f"v_max3_f32 v{m}, v{t}, v{t+1}, v{t+2}"]
        for i in range(3, 15, 2): P += [f"v_max3_f32 v{m}, v{m}, v{t+i}, v{t+i+1}"]
        P += [f"v_max_f32 v{m}, v{m}, v{t+15}"]
    for qb in range(4): P += [f"ds_swizzle_b32 v{T0+qb}, v{MX[qb]} offset:0x401F"]
    P += ["s_waitcnt lgkmcnt(0)"]
    for qb in range(4): P += [f"v_max_f32 v{MX[qb]}, v{MX[qb]}, v{T0+qb}"]
    for qb in range(4): P += [f"v_mov_b32 v{T0+qb}, v{MX[qb]}"]
    P += ["s_nop 1"]
    for qb in range(4): P += [f"v_permlane32_swap_b32 v{MX[qb]}, v{T0+qb}"]
    P += [f"s_mov_b32 s54, {hex(f32bits(-ATT_OFF))}"]
    for qb in range(4):
        P += [f"v_max_f32 v{MX[qb]}, v{MX[qb]}, v{T0+qb}", f"v_sub_f32 v{MX[qb]}, s54, v{MX[qb]}"]
        for i in range(4): P += [f"v_mov_b32 v{CN(qb)+i}, v{MX[qb]}"]
    for r in range(80, 112): P += [f"v_mov_b32 v{r}, 0"]
    def qk(Y, kset):
        return [mfma16c(S[Y] + (qi * 2 + kb) * 4, KF[kset] + 4 * kb, Q(QB0[Y] + qi), CN(QB0[Y] + qi)) for qi in range(2) for kb in range(2)]
    def pv(Y, vset):
        o = []
        for qi in range(2):
            qb = QB0[Y] + qi
            o += [mfma16(O(qb, 0), VF[vset], Pk[Y] + 4 * qi), mfma16(O(qb, 1), VF[vset] + 4, Pk[Y] + 4 * qi), mfma16(L(qb), ONES, Pk[Y] + 4 * qi)]
        return o
    P += qk("A", 0) + ["s_nop 7"]
    P += stamp(1)
    def slot(X, kset_qk, vset_pv, rd, extra=[]):
        Y = "B" if X == "A" else "A"
        mf = qk(Y, kset_qk) + pv(Y, vset_pv)
        e = [f"v_exp_f32 v{S[X]+i}, v{S[X]+i}" for i in range(16)]
        c = [f"v_cvt_pk_bf16_f32 v{Pk[X]+j}, v{S[X]+2*j}, v{S[X]+2*j+1}" for j in range(8)]
        va = e[0:3] + [c[0]] + e[3:5] + [c[1]] + e[5:7] + [c[2]] + e[7:9] + [c[3]] + e[9:11] + [c[4]] + e[11:13] + [c[5]] + e[13:16] + [c[6], c[7]]
        cnt = [2, 2, 3, 2, 3, 2, 3, 2, 3, 2]
        o = []; vi = 0
        for i in range(10):
            o += [mf[i]]
            if i < 4 and rd: o += [rd[i]]
            if i < len(extra): o += extra[i][:1]
            o += va[vi:vi + cnt[i]]; vi += cnt[i]
            if i < len(extra): o += extra[i][1:]
        assert vi == 24
        return o
    def rds(kb_par, half):
        return [f"ds_read_b128 {vr(KF[1-kb_par],4)}, v{VRD} offset:{half*2048}",
                f"ds_read_b128 {vr(KF[1-kb_par]+4,4)}, v{VRD} offset:{half*2048+256}",
                f"ds_read_b128 {vr(VF[kb_par],4)}, v{VRD} offset:{4096+half*2048}",
                f"ds_read_b128 {vr(VF[kb_par]+4,4)}, v{VRD} offset:{4096+half*2048+256}"]
    B = [f"s_waitcnt vmcnt({2*(NST-2)})", "s_barrier"]
    d = dma()
    if "newtop" not in EXP:
        B += [d[0][0], "s_nop 0", d[0][1], d[1][0], "s_nop 0", d[1][1]] + dma_adv()
        B += slot("A", 0, 1, rds(0, 0))
        B += ["s_waitcnt lgkmcnt(0)"]
        B += slot("B", 1, 0, [])
    else:
        adv = dma_adv()
        B += slot("A", 0, 1, rds(0, 0), [[], [], [], [], d[0], d[1]])
        B += ["s_waitcnt lgkmcnt(0)"]
        B += slot("B", 1, 0, [], [adv[0:2], adv[2:4], adv[4:6], adv[6:8]])
    B += slot("A", 1, 0, rds(1, 1))
    B += ["s_waitcnt lgkmcnt(0)"]
    B += slot("B", 0, 1, [], [[f"s_add_u32 s53, s53, {STG}", f"s_and_b32 s53, s53, {NST*STG-1}"], [f"v_add_u32 v{VRD}, s53, v{VPAT}"]])
    tail = ["s_add_u32 s52, s52, 1", "s_cmp_lt_u32 s52, 32", f"s_cbranch_scc1 {N}_loop"]
    E = stamp(2)
    E += ["s_nop 1"] + pv("B", 1) + ["s_nop 7"]
    E += [f"s_mov_b32 s54, {hex(f32bits(ATT_LMAX))}",
          f"v_max3_f32 v{T0}, v{L(0)}, v{L(1)}, v{L(2)}", f"v_cmp_gt_f32 vcc, s54, v{T0}", f"v_cmp_gt_f32 s[56:57], s54, v{L(3)}",
          f"v_cmp_o_f32 s[58:59], v{L(0)}, v{L(1)}", f"v_cmp_o_f32 s[64:65], v{L(2)}, v{L(3)}", "s_nop 1",
          "s_and_b64 vcc, vcc, s[56:57]", "s_and_b64 vcc, vcc, s[58:59]", "s_and_b64 vcc, vcc, s[64:65]",
          "s_cmp_eq_u64 vcc, exec", f"s_cbranch_scc0 {N}_fallback"]
    E2 = [f"{N}_final:"]
    E2 += ["s_lshl_b32 s45, s43, 16", "s_lshl_b32 s46, s42, 11", "s_add_u32 s45, s45, s46", f"s_add_u32 s45, s45, {WS_O}"]
    for qb in range(4):
        E2 += [f"v_rcp_f32 v{T0}, v{L(qb)}", "s_nop 0"]
        for i in range(8): E2 += [f"v_mul_f32 v{O(qb)+i}, v{O(qb)+i}, v{T0}"]
        for db in range(2):
            pk = 32 + qb * 4 + db * 2
            E2 += [f"v_cvt_pk_bf16_f32 v{pk}, v{O(qb,db)}, v{O(qb,db)+1}", f"v_cvt_pk_bf16_f32 v{pk+1}, v{O(qb,db)+2}, v{O(qb,db)+3}",
                   f"buffer_store_dwordx2 {vr(pk,2)}, v{VO}, s[24:27], s45 offen offset:{(qb&1)*256 + db*1024}"]
        if qb == 1: E2 += ["s_add_u32 s45, s45, 65536"]
    A0, A1 = 64, 65
    E2 += ["s_waitcnt vmcnt(8)", f"v_mov_b32 v{A0}, 0", f"v_mov_b32 v{A1}, 0"]
    for i in range(8):
        w = GX + 16 + i
        E2 += [f"v_lshlrev_b32 v66, 16, v{w}", f"v_and_b32 v67, 0xffff0000, v{w}"]
        for r, a in ((0, A0), (1, A1)):
            x = GX + 8 * r + i
            E2 += [f"v_lshlrev_b32 v68, 16, v{x}", f"v_and_b32 v69, 0xffff0000, v{x}",
                  "v_mul_f32 v68, v68, v66", "v_mul_f32 v69, v69, v67",
                  "v_cvt_pk_bf16_f32 v70, v68, v69",
                  "v_lshlrev_b32 v68, 16, v70", "v_and_b32 v69, 0xffff0000, v70",
                  f"v_add_f32 v{a}, v{a}, v68", f"v_add_f32 v{a}, v{a}, v69"]
    for off in (0x041F, 0x081F, 0x101F, 0x201F, 0x401F):
        E2 += [f"ds_swizzle_b32 v66, v{A0} offset:{off}", f"ds_swizzle_b32 v67, v{A1} offset:{off}",
              "s_waitcnt lgkmcnt(0)", f"v_add_f32 v{A0}, v{A0}, v66", f"v_add_f32 v{A1}, v{A1}, v67"]
    E2 += ["s_nop 0", f"v_readlane_b32 s55, v{A0}, 32", f"v_readlane_b32 s56, v{A1}, 32", "s_nop 1",
          f"v_add_f32 v{A0}, s55, v{A0}", f"v_add_f32 v{A1}, s56, v{A1}",
          "v_cmp_eq_u32 vcc, 1, v0", "s_nop 1", f"v_cndmask_b32 v{A0}, v{A0}, v{A1}, vcc",
          f"v_cvt_pk_bf16_f32 v{A0}, v{A0}, v{A0}", f"v_lshlrev_b32 v{A0}, 16, v{A0}",
          f"v_mul_f32 v{A0}, {hex(f32bits(-LOG2E))}, v{A0}", f"v_exp_f32 v{A0}, v{A0}", "s_nop 0",
          f"v_add_f32 v{A0}, 1.0, v{A0}", f"v_rcp_f32 v{A0}, v{A0}", "s_nop 0",
          f"v_cvt_pk_bf16_f32 v{A0}, v{A0}, v{A0}", f"v_lshlrev_b32 v{VG}, 16, v{A0}"]
    E2 += [f"v_lshlrev_b32 v{T0}, 2, v0", "s_lshl_b32 s45, s62, 2", f"s_add_u32 s45, s45, {WS_G}",
           "v_cmp_gt_u32 vcc, 2, v0", "s_and_saveexec_b64 s[58:59], vcc",
           f"buffer_store_dword v{VG}, v{T0}, s[24:27], s45 offen", "s_mov_b64 exec, s[58:59]"]
    E2 += stamp(3) + ["s_waitcnt vmcnt(0)"] + stamp(4) + stamp_dump(5, 9, 1)
    E2 += [f"{N}_done:", "s_endpgm"]
    F = [f"{N}_fallback:", "s_waitcnt vmcnt(0)"]
    AL = 14
    for qb in range(4):
        F += [f"v_mov_b32 v{MX[qb]}, 0xff7fffff", f"v_mov_b32 v{L(qb)}, 0"]
        for i in range(8): F += [f"v_mov_b32 v{O(qb)+i}, 0"]
    F += [f"s_add_u32 s46, s44, {WS_K}", f"s_add_u32 s47, s44, {WS_V}", "s_mov_b32 s52, 0"]
    FB = [f"buffer_load_dwordx4 {vr(KF[0],4)}, v{VPAT}, s[24:27], s46 offen",
          f"buffer_load_dwordx4 {vr(KF[0]+4,4)}, v{VPAT}, s[24:27], s46 offen offset:256",
          f"buffer_load_dwordx4 {vr(VF[0],4)}, v{VPAT}, s[24:27], s47 offen",
          f"buffer_load_dwordx4 {vr(VF[0]+4,4)}, v{VPAT}, s[24:27], s47 offen offset:256",
          "s_waitcnt vmcnt(0)"]
    for qb in range(4):
        s0 = 32; p0 = 64
        FB += [mfma16c(s0, KF[0], Q(qb), "0"), mfma16c(s0 + 4, KF[0] + 4, Q(qb), "0"), "s_nop 7"]
        FB += [f"v_max3_f32 v{T0}, v{s0}, v{s0+1}, v{MX[qb]}", f"v_max3_f32 v{T0}, v{T0}, v{s0+2}, v{s0+3}",
               f"v_max3_f32 v{T0}, v{T0}, v{s0+4}, v{s0+5}", f"v_max3_f32 v{T0}, v{T0}, v{s0+6}, v{s0+7}",
               f"ds_swizzle_b32 v{T1}, v{T0} offset:0x401F", "s_waitcnt lgkmcnt(0)", f"v_max_f32 v{T0}, v{T0}, v{T1}",
               f"v_mov_b32 v{T1}, v{T0}", "s_nop 1", f"v_permlane32_swap_b32 v{T0}, v{T1}", f"v_max_f32 v{T0}, v{T0}, v{T1}",
               f"v_sub_f32 v{AL}, v{MX[qb]}, v{T0}", f"v_exp_f32 v{AL}, v{AL}", f"v_mov_b32 v{MX[qb]}, v{T0}",
               f"v_mul_f32 v{L(qb)}, v{L(qb)}, v{AL}"]
        for i in range(8):
            FB += [f"v_sub_f32 v{s0+i}, v{s0+i}, v{T0}", f"v_exp_f32 v{s0+i}, v{s0+i}", f"v_mul_f32 v{O(qb)+i}, v{O(qb)+i}, v{AL}"]
        for j in range(4):
            FB += [f"v_cvt_pk_bf16_f32 v{p0+j}, v{s0+2*j}, v{s0+2*j+1}",
                   f"v_lshlrev_b32 v{T1}, 16, v{p0+j}", f"v_and_b32 v{T2}, 0xffff0000, v{p0+j}",
                   f"v_add_f32 v{L(qb)}, v{L(qb)}, v{T1}", f"v_add_f32 v{L(qb)}, v{L(qb)}, v{T2}"]
        FB += ["s_nop 1", mfma16(O(qb, 0), VF[0], p0), mfma16(O(qb, 1), VF[0] + 4, p0), "s_nop 7"]
    FB += ["s_add_u32 s46, s46, 2048", "s_add_u32 s47, s47, 2048", "s_add_u32 s52, s52, 1", "s_cmp_lt_u32 s52, 64",
           f"s_cbranch_scc1 {N}_fbloop"]
    FE = []
    for qb in range(4):
        FE += [f"ds_swizzle_b32 v{T1}, v{L(qb)} offset:0x401F", "s_waitcnt lgkmcnt(0)", f"v_add_f32 v{L(qb)}, v{L(qb)}, v{T1}",
               f"v_mov_b32 v{T1}, v{L(qb)}", "s_nop 1", f"v_permlane32_swap_b32 v{L(qb)}, v{T1}", f"v_add_f32 v{L(qb)}, v{L(qb)}, v{T1}"]
    FE += [f"s_branch {N}_final"]
    text = P + [f"{N}_loop:"] + B + tail + E + E2 + F + [f"{N}_fbloop:"] + FB + FE
    errs = check_trace(P + B + tail + B + tail + E + E2, N)
    errs += check_trace(P + B + tail + E + F + FB + FB + FE + E2, N + "_fb")
    return N, text, desc(N, 216), errs, (256, 256, NST * STG)


def gen_attn16x8():
    N = "mix_kernel_a"
    NST = 4; STG = 8192
    def Q(qi): return 16 + 4 * qi
    S = [32, 48]
    Pk = [64, 72]
    def O(qi, db=0): return 80 + 8 * qi + 4 * db
    def L(qi): return 96 + 4 * qi
    def CN(qi): return 104 + 4 * qi
    KF = [112, 120]; VF = [128, 136]; ONES = 144
    GX = 148
    VL16 = 1; VRD = 2; VG = 3; VPAT = 4; T0, T1, T2, T3 = 5, 6, 7, 8; VO = 9
    P = []
    P += stamp(0)
    P += ["s_load_dwordx2 s[40:41], s[0:1], 88", "s_load_dwordx2 s[4:5], s[0:1], 0", "s_load_dwordx2 s[38:39], s[0:1], 64"]
    P += ["s_and_b32 s42, s2, 7", "s_lshr_b32 s43, s2, 3", "s_lshl_b32 s42, s42, 2", "s_lshr_b32 s44, s43, 3",
          "s_add_u32 s42, s42, s44", "s_and_b32 s43, s43, 7",
          "s_lshl_b32 s43, s43, 3", "s_add_u32 s43, s43, s3",
          "s_lshl_b32 s44, s42, 17"]
    P += [f"v_lshlrev_b32 v{VL16}, 4, v0", f"v_and_b32 v{T0}, 15, v0", f"v_bfe_u32 v{T1}, v0, 4, 1", f"v_lshlrev_b32 v{T1}, 5, v{T1}",
          f"v_add_u32 v{T0}, v{T0}, v{T1}", f"v_lshlrev_b32 v{T0}, 4, v{T0}", f"v_lshrrev_b32 v{T1}, 5, v0",
          f"v_lshlrev_b32 v{T2}, 10, v{T1}", f"v_add_u32 v{VPAT}, v{T0}, v{T2}", f"v_lshlrev_b32 v{T2}, 3, v{T1}", f"v_add_u32 v{VO}, v{T0}, v{T2}"]
    P += ["s_waitcnt lgkmcnt(0)"] + srd(24, 40, 41, WS_SIZE) + srd(8, 4, 5, 4 * MB) + srd(28, 38, 39, 2048)
    P += ["s_lshl_b32 s45, s43, 11", "s_add_u32 s45, s45, s44", f"s_add_u32 s45, s45, {WS_Q}",
          f"s_add_u32 s46, s44, {WS_K}", f"s_add_u32 s47, s44, {WS_V}"]
    for qi in range(2):
        P += [f"buffer_load_dwordx4 {vr(Q(qi),4)}, v{VPAT}, s[24:27], s45 offen offset:{qi*256}"]
    for i in range(4):
        P += [f"buffer_load_dwordx4 {vr(KF[0]+4*i,4)}, v{VPAT}, s[24:27], s46 offen offset:{(i&1)*256 + (i>>1)*2048}"]
    P += ["s_and_b32 s51, s3, 3", "s_lshl_b32 s51, s51, 10", "s_cmp_lt_u32 s3, 4",
          "s_cselect_b32 s61, s46, s47", "s_cselect_b32 s60, 4096, 0", "s_cselect_b32 s50, 0, 4096",
          "s_add_u32 s60, s60, s51", "s_add_u32 s50, s50, s51", "s_add_u32 s48, s61, s60"]
    def dma():
        return [["s_mov_b32 m0, s50", f"buffer_load_dwordx4 v{VL16}, s[24:27], s48 offen lds"]]
    def dma_adv():
        return ["s_add_u32 s60, s60, 4096", "s_and_b32 s60, s60, 0x1ffff", "s_add_u32 s48, s61, s60",
                f"s_add_u32 s50, s50, {STG}", f"s_and_b32 s50, s50, {NST*STG-1}"]
    for t in range(NST - 1):
        for a, b in dma(): P += [a, "s_nop 0", b]
        P += dma_adv()
    P += ["s_lshl_b32 s62, s2, 3", "s_add_u32 s62, s62, s3", "s_lshl_b32 s45, s62, 11", f"v_lshlrev_b32 v{T0}, 5, v0"]
    P += [f"buffer_load_dwordx4 v[{GX}:{GX+3}], v{T0}, s[8:11], s45 offen",
          f"buffer_load_dwordx4 v[{GX+4}:{GX+7}], v{T0}, s[8:11], s45 offen offset:16",
          f"buffer_load_dwordx4 v[{GX+8}:{GX+11}], v{T0}, s[28:31], 0 offen",
          f"buffer_load_dwordx4 v[{GX+12}:{GX+15}], v{T0}, s[28:31], 0 offen offset:16"]
    for r in list(range(80, 104)) + list(range(Pk[1], Pk[1] + 8)) + list(range(VF[1], VF[1] + 8)):
        P += [f"v_mov_b32 v{r}, 0"]
    for i in range(4): P += [f"v_mov_b32 v{ONES+i}, 0x3f803f80"]
    P += [f"v_mov_b32 v{VRD}, v{VPAT}", "s_mov_b32 s52, 0", "s_mov_b32 s53, 0"]
    P += [f"s_waitcnt vmcnt({(NST-1)+4})"]
    def TM(qi): return 32 + 16 * qi
    for qi in range(2):
        for i in range(4):
            P += [mfma16c(TM(qi) + 4 * i, KF[0] + 4 * i, Q(qi), "0")]
    P += ["s_nop 7"]
    MX = [10, 11]
    for qi in range(2):
        t = TM(qi); m = MX[qi]
        P += [f"v_max3_f32 v{m}, v{t}, v{t+1}, v{t+2}"]
        for i in range(3, 15, 2): P += [f"v_max3_f32 v{m}, v{m}, v{t+i}, v{t+i+1}"]
        P += [f"v_max_f32 v{m}, v{m}, v{t+15}"]
    for qi in range(2): P += [f"ds_swizzle_b32 v{T0+qi}, v{MX[qi]} offset:0x401F"]
    P += ["s_waitcnt lgkmcnt(0)"]
    for qi in range(2): P += [f"v_max_f32 v{MX[qi]}, v{MX[qi]}, v{T0+qi}"]
    for qi in range(2): P += [f"v_mov_b32 v{T0+qi}, v{MX[qi]}"]
    P += ["s_nop 1"]
    for qi in range(2): P += [f"v_permlane32_swap_b32 v{MX[qi]}, v{T0+qi}"]
    P += [f"s_mov_b32 s54, {hex(f32bits(-ATT_OFF))}"]
    for qi in range(2):
        P += [f"v_max_f32 v{MX[qi]}, v{MX[qi]}, v{T0+qi}", f"v_sub_f32 v{MX[qi]}, s54, v{MX[qi]}"]
        for i in range(4): P += [f"v_mov_b32 v{CN(qi)+i}, v{MX[qi]}"]
    def qk(par):
        return [mfma16c(S[par] + (qi * 2 + kb) * 4, KF[par] + 4 * kb, Q(qi), CN(qi)) for qi in range(2) for kb in range(2)]
    def pv(par):
        o = []
        for qi in range(2):
            o += [mfma16(O(qi, 0), VF[par], Pk[par] + 4 * qi), mfma16(O(qi, 1), VF[par] + 4, Pk[par] + 4 * qi), mfma16(L(qi), ONES, Pk[par] + 4 * qi)]
        return o
    P += ["s_nop 1"] + qk(0) + ["s_nop 7"]
    P += stamp(1)
    def slot(X, half):
        Y = 1 - X
        mf = qk(Y) + pv(Y)
        rd = [f"ds_read_b128 {vr(KF[X],4)}, v{VRD} offset:{half*2048}",
              f"ds_read_b128 {vr(KF[X]+4,4)}, v{VRD} offset:{half*2048+256}",
              f"ds_read_b128 {vr(VF[X],4)}, v{VRD} offset:{4096+half*2048}",
              f"ds_read_b128 {vr(VF[X]+4,4)}, v{VRD} offset:{4096+half*2048+256}"]
        e = [f"v_exp_f32 v{S[X]+i}, v{S[X]+i}" for i in range(16)]
        c = [f"v_cvt_pk_bf16_f32 v{Pk[X]+j}, v{S[X]+2*j}, v{S[X]+2*j+1}" for j in range(8)]
        va = e[0:3] + [c[0]] + e[3:5] + [c[1]] + e[5:7] + [c[2]] + e[7:9] + [c[3]] + e[9:11] + [c[4]] + e[11:13] + [c[5]] + e[13:16] + [c[6], c[7]]
        cnt = [2, 2, 3, 2, 3, 2, 3, 2, 3, 2]
        o = []; vi = 0
        for i in range(10):
            o += [mf[i]]
            if i < 4: o += [rd[i]]
            o += va[vi:vi + cnt[i]]; vi += cnt[i]
        return o
    B = [f"s_waitcnt vmcnt({NST-2})", "s_barrier"]
    d = dma()
    B += [d[0][0], "s_nop 0", d[0][1]] + dma_adv()
    B += slot(0, 0)
    B += ["s_waitcnt lgkmcnt(0)"]
    B += slot(1, 1)
    B += ["s_waitcnt lgkmcnt(0)", f"s_add_u32 s53, s53, {STG}", f"s_and_b32 s53, s53, {NST*STG-1}", f"v_add_u32 v{VRD}, s53, v{VPAT}"]
    tail = ["s_add_u32 s52, s52, 1", "s_cmp_lt_u32 s52, 32", f"s_cbranch_scc1 {N}_loop"]
    E = stamp(2)
    E += ["s_nop 1"] + pv(1) + ["s_nop 7"]
    E += [f"s_mov_b32 s54, {hex(f32bits(ATT_LMAX))}",
          f"v_cmp_gt_f32 vcc, s54, v{L(0)}", f"v_cmp_gt_f32 s[56:57], s54, v{L(1)}", "s_nop 1",
          "s_and_b64 vcc, vcc, s[56:57]", "s_cmp_eq_u64 vcc, exec", f"s_cbranch_scc0 {N}_fallback"]
    E2 = [f"{N}_final:"]
    E2 += ["s_lshl_b32 s45, s43, 16", "s_lshl_b32 s46, s42, 11", "s_add_u32 s45, s45, s46", f"s_add_u32 s45, s45, {WS_O}"]
    for qi in range(2):
        E2 += [f"v_rcp_f32 v{T0}, v{L(qi)}", "s_nop 0"]
        for i in range(8): E2 += [f"v_mul_f32 v{O(qi)+i}, v{O(qi)+i}, v{T0}"]
        for db in range(2):
            pk = 32 + qi * 4 + db * 2
            E2 += [f"v_cvt_pk_bf16_f32 v{pk}, v{O(qi,db)}, v{O(qi,db)+1}", f"v_cvt_pk_bf16_f32 v{pk+1}, v{O(qi,db)+2}, v{O(qi,db)+3}",
                   f"buffer_store_dwordx2 {vr(pk,2)}, v{VO}, s[24:27], s45 offen offset:{qi*256 + db*1024}"]
    A0 = 64
    E2 += ["s_waitcnt vmcnt(4)", f"v_mov_b32 v{A0}, 0"]
    for i in range(8):
        w = GX + 8 + i; x = GX + i
        E2 += [f"v_lshlrev_b32 v66, 16, v{w}", f"v_and_b32 v67, 0xffff0000, v{w}",
               f"v_lshlrev_b32 v68, 16, v{x}", f"v_and_b32 v69, 0xffff0000, v{x}",
               "v_mul_f32 v68, v68, v66", "v_mul_f32 v69, v69, v67", "v_cvt_pk_bf16_f32 v70, v68, v69",
               "v_lshlrev_b32 v68, 16, v70", "v_and_b32 v69, 0xffff0000, v70",
               f"v_add_f32 v{A0}, v{A0}, v68", f"v_add_f32 v{A0}, v{A0}, v69"]
    for off in (0x041F, 0x081F, 0x101F, 0x201F, 0x401F):
        E2 += [f"ds_swizzle_b32 v66, v{A0} offset:{off}", "s_waitcnt lgkmcnt(0)", f"v_add_f32 v{A0}, v{A0}, v66"]
    E2 += ["s_nop 0", f"v_readlane_b32 s55, v{A0}, 32", "s_nop 1", f"v_add_f32 v{A0}, s55, v{A0}",
          f"v_cvt_pk_bf16_f32 v{A0}, v{A0}, v{A0}", f"v_lshlrev_b32 v{A0}, 16, v{A0}",
          f"v_mul_f32 v{A0}, {hex(f32bits(-LOG2E))}, v{A0}", f"v_exp_f32 v{A0}, v{A0}", "s_nop 0",
          f"v_add_f32 v{A0}, 1.0, v{A0}", f"v_rcp_f32 v{A0}, v{A0}", "s_nop 0",
          f"v_cvt_pk_bf16_f32 v{A0}, v{A0}, v{A0}", f"v_lshlrev_b32 v{VG}, 16, v{A0}"]
    E2 += [f"v_lshlrev_b32 v{T0}, 2, v0", "s_lshl_b32 s45, s62, 2", f"s_add_u32 s45, s45, {WS_G}",
           "v_cmp_gt_u32 vcc, 1, v0", "s_and_saveexec_b64 s[58:59], vcc",
           f"buffer_store_dword v{VG}, v{T0}, s[24:27], s45 offen", "s_mov_b64 exec, s[58:59]"]
    E2 += stamp(3) + ["s_waitcnt vmcnt(0)"] + stamp(4) + stamp_dump(5, 9, 1)
    E2 += [f"{N}_done:", "s_endpgm"]
    F = [f"{N}_fallback:", "s_waitcnt vmcnt(0)"]
    AL = 14
    for qi in range(2):
        F += [f"v_mov_b32 v{MX[qi]}, 0xff7fffff", f"v_mov_b32 v{L(qi)}, 0"]
        for i in range(8): F += [f"v_mov_b32 v{O(qi)+i}, 0"]
    F += [f"s_add_u32 s46, s44, {WS_K}", f"s_add_u32 s47, s44, {WS_V}", "s_mov_b32 s52, 0"]
    FB = [f"buffer_load_dwordx4 {vr(KF[0],4)}, v{VPAT}, s[24:27], s46 offen",
          f"buffer_load_dwordx4 {vr(KF[0]+4,4)}, v{VPAT}, s[24:27], s46 offen offset:256",
          f"buffer_load_dwordx4 {vr(VF[0],4)}, v{VPAT}, s[24:27], s47 offen",
          f"buffer_load_dwordx4 {vr(VF[0]+4,4)}, v{VPAT}, s[24:27], s47 offen offset:256",
          "s_waitcnt vmcnt(0)"]
    for qi in range(2):
        s0 = 32; p0 = 64
        FB += [mfma16c(s0, KF[0], Q(qi), "0"), mfma16c(s0 + 4, KF[0] + 4, Q(qi), "0"), "s_nop 7"]
        FB += [f"v_max3_f32 v{T0}, v{s0}, v{s0+1}, v{MX[qi]}", f"v_max3_f32 v{T0}, v{T0}, v{s0+2}, v{s0+3}",
               f"v_max3_f32 v{T0}, v{T0}, v{s0+4}, v{s0+5}", f"v_max3_f32 v{T0}, v{T0}, v{s0+6}, v{s0+7}",
               f"ds_swizzle_b32 v{T1}, v{T0} offset:0x401F", "s_waitcnt lgkmcnt(0)", f"v_max_f32 v{T0}, v{T0}, v{T1}",
               f"v_mov_b32 v{T1}, v{T0}", "s_nop 1", f"v_permlane32_swap_b32 v{T0}, v{T1}", f"v_max_f32 v{T0}, v{T0}, v{T1}",
               f"v_sub_f32 v{AL}, v{MX[qi]}, v{T0}", f"v_exp_f32 v{AL}, v{AL}", f"v_mov_b32 v{MX[qi]}, v{T0}",
               f"v_mul_f32 v{L(qi)}, v{L(qi)}, v{AL}"]
        for i in range(8):
            FB += [f"v_sub_f32 v{s0+i}, v{s0+i}, v{T0}", f"v_exp_f32 v{s0+i}, v{s0+i}", f"v_mul_f32 v{O(qi)+i}, v{O(qi)+i}, v{AL}"]
        for j in range(4):
            FB += [f"v_cvt_pk_bf16_f32 v{p0+j}, v{s0+2*j}, v{s0+2*j+1}",
                   f"v_lshlrev_b32 v{T1}, 16, v{p0+j}", f"v_and_b32 v{T2}, 0xffff0000, v{p0+j}",
                   f"v_add_f32 v{L(qi)}, v{L(qi)}, v{T1}", f"v_add_f32 v{L(qi)}, v{L(qi)}, v{T2}"]
        FB += ["s_nop 1", mfma16(O(qi, 0), VF[0], p0), mfma16(O(qi, 1), VF[0] + 4, p0), "s_nop 7"]
    FB += ["s_add_u32 s46, s46, 2048", "s_add_u32 s47, s47, 2048", "s_add_u32 s52, s52, 1", "s_cmp_lt_u32 s52, 64",
           f"s_cbranch_scc1 {N}_fbloop"]
    FE = []
    for qi in range(2):
        FE += [f"ds_swizzle_b32 v{T1}, v{L(qi)} offset:0x401F", "s_waitcnt lgkmcnt(0)", f"v_add_f32 v{L(qi)}, v{L(qi)}, v{T1}",
               f"v_mov_b32 v{T1}, v{L(qi)}", "s_nop 1", f"v_permlane32_swap_b32 v{L(qi)}, v{T1}", f"v_add_f32 v{L(qi)}, v{L(qi)}, v{T1}"]
    FE += [f"s_branch {N}_final"]
    text = P + [f"{N}_loop:"] + B + tail + E + E2 + F + [f"{N}_fbloop:"] + FB + FE
    errs = check_trace(P + B + tail + B + tail + B + tail + E + E2, N)
    errs += check_trace(P + B + tail + E + F + FB + FB + FE + E2, N + "_fb")
    return N, text, None, errs, None

def gen_mix():
    N = "mix_kernel"
    X8 = "x8" in EXP
    _, ta, _, ea, _ = gen_attn16x8() if X8 else (gen_attn(True) if "a32" in EXP else gen_attn16())
    _, ty, _, ey, _ = gen_ygemm(True) if "y32" in EXP else gen_ygemm16(True)
    na = 8 if X8 else 4
    H = header(N) + ["s_cmp_ge_u32 s2, 256", "s_cbranch_scc1 mix_kernel_a_done"] + code_prefetch(9500, 184, 186) + [
         "v_lshrrev_b32 v1, 6, v0", "v_and_b32 v0, 63, v0", "v_readfirstlane_b32 s3, v1", "s_nop 3",
         f"s_cmp_ge_u32 s3, {na}", "s_cbranch_scc1 mix_kernel_ystart"]
    text = H + (["s_setprio 1"] if "prioa" in EXP else []) + ta + ["mix_kernel_ystart:", f"s_sub_u32 s3, s3, {na}"] + (["s_setprio 1"] if "prioy" in EXP else []) + ty
    return N, text, desc(N, 168 if X8 else 216), ea + ey, (256, 64 * (na + 4), 163840)

def gen_out():
    N = "out_kernel"
    NST = 4 if "o4" in EXP else 6; STG = 24576; L_B = 8192
    ACC = 64
    def acc(i): return ACC + i * 16
    def fr(s, i): return 32 + s * 12 + i * 4
    def fr2(s, ks, i): return 128 + s * 48 + ks * 12 + i * 4
    VL16 = 1; VW = [2, 3]; WA0 = 4; BA0 = 5; WA = 6; BA = 7; VG = 8; VO = 9; WB0 = 10; WB = 11
    T0, T1, T2, T3 = 16, 17, 18, 19
    Y = 96
    P = ["s_cmp_ge_u32 s2, 256", f"s_cbranch_scc1 {N}_done"]
    P += stamp(0) + code_prefetch(4000, 24, 26)
    P += ["s_load_dwordx2 s[4:5], s[0:1], 56", "s_load_dwordx2 s[6:7], s[0:1], 72", "s_load_dwordx2 s[40:41], s[0:1], 88"]
    P += ["v_lshrrev_b32 v1, 6, v0", "v_and_b32 v0, 63, v0", "v_readfirstlane_b32 s3, v1"]
    P += ["s_and_b32 s45, s2, 3", "s_lshl_b32 s45, s45, 2", "s_bfe_u32 s46, s2, 0x20003", "s_add_u32 s45, s45, s46",
          "s_bfe_u32 s44, s2, 0x10002", "s_lshl_b32 s44, s44, 3", "s_lshr_b32 s46, s2, 5", "s_add_u32 s44, s44, s46",
          "s_lshl_b32 s43, s45, 2", "s_add_u32 s43, s43, s3"]
    P += [f"v_lshlrev_b32 v{VL16}, 4, v0"]
    P += [f"v_lshrrev_b32 v{T3}, 3, v0", "s_lshl_b32 s46, s3, 4", f"v_add_u32 v{T3}, s46, v{T3}", f"v_lshlrev_b32 v{T3}, 11, v{T3}",
          f"v_bfe_u32 v{T0}, v0, 4, 1", f"v_lshlrev_b32 v{T0}, 2, v{T0}", f"v_and_b32 v{T1}, 7, v0", f"v_xor_b32 v{T0}, v{T0}, v{T1}",
          f"v_lshlrev_b32 v{VW[0]}, 4, v{T0}", f"v_add_u32 v{VW[0]}, v{VW[0]}, v{T3}",
          "s_lshl_b32 s46, s44, 7", f"v_add_u32 v{VW[0]}, s46, v{VW[0]}", f"v_add_u32 v{VW[1]}, {8*2048}, v{VW[0]}"]
    P += [f"v_lshrrev_b32 v{T0}, 5, v0", f"v_lshlrev_b32 v{T0}, 2, v{T0}", f"v_bfe_u32 v{T1}, v0, 2, 2",
          f"v_add_u32 v{T0}, v{T0}, v{T1}", f"v_lshlrev_b32 v{T0}, 7, v{T0}",
          f"v_bfe_u32 v{T1}, v0, 3, 1", f"v_lshlrev_b32 v{T1}, 6, v{T1}", f"v_add_u32 v{T0}, v{T0}, v{T1}",
          f"v_bfe_u32 v{T1}, v0, 4, 1", f"v_lshlrev_b32 v{T1}, 5, v{T1}", f"v_add_u32 v{T0}, v{T0}, v{T1}",
          f"v_and_b32 v{T1}, 3, v0", f"v_lshlrev_b32 v{T1}, 3, v{T1}", f"v_add_u32 v{WA0}, v{T0}, v{T1}",
          f"v_xor_b32 v{WB0}, 64, v{WA0}",
          "s_lshl_b32 s50, s3, 12", f"s_add_u32 s46, s50, {L_B}", f"v_add_u32 v{BA0}, s46, v{VL16}",
          f"v_mov_b32 v{WA}, v{WA0}", f"v_mov_b32 v{WB}, v{WB0}", f"v_mov_b32 v{BA}, v{BA0}"]
    P += [f"v_and_b32 v{T0}, 31, v0", "s_lshl_b32 s46, s43, 5", f"v_add_u32 v{T1}, s46, v{T0}", f"v_lshlrev_b32 v{VO}, 11, v{T1}",
          f"v_lshrrev_b32 v{T2}, 5, v0", f"v_lshlrev_b32 v{T2}, 4, v{T2}", f"v_add_u32 v{VO}, v{VO}, v{T2}",
          "s_lshl_b32 s46, s44, 7", f"v_add_u32 v{VO}, s46, v{VO}", f"v_lshlrev_b32 v{T1}, 2, v{T1}"]
    P += ["s_waitcnt lgkmcnt(0)"] + stamp(5) + srd(8, 4, 5, 2 * MB) + srd(12, 6, 7, 4 * MB) + srd(24, 40, 41, WS_SIZE)
    P += ["s_lshl_b32 s47, s43, 16", f"s_add_u32 s47, s47, {WS_O}", "s_mov_b32 s48, 0", "s_mov_b32 s49, 0",
          "s_lshl_b32 s53, s3, 11", "s_mov_b32 s51, 0"]
    def dma():
        o = [["s_add_u32 m0, s49, s53", f"buffer_load_dwordx4 v{VW[0]}, s[8:11], s48 offen lds"],
             ["s_add_u32 m0, m0, 1024", f"buffer_load_dwordx4 v{VW[1]}, s[8:11], s48 offen lds"],
             ["s_add_u32 m0, s49, s54", f"buffer_load_dwordx4 v{VL16}, s[24:27], s47 offen lds"]]
        for u in range(1, 4):
            o.append([None, f"buffer_load_dwordx4 v{VL16}, s[24:27], s47 offen offset:{1024*u} lds"])
        if "nowo" in EXP:
            o[0][1] = f"buffer_load_dwordx4 v{VL16}, s[24:27], s47 offen lds"
            o[1][1] = f"buffer_load_dwordx4 v{VL16}, s[24:27], s47 offen lds"
        if "noo" in EXP:
            for u in range(2, 6): o[u][1] = f"buffer_load_dwordx4 v{VW[0]}, s[8:11], s48 offen lds"
        return o
    def dma_adv():
        if "norot3" not in EXP:
            return ["s_add_u32 s56, s56, 4096", "s_and_b32 s56, s56, 0xffff", "s_add_u32 s47, s57, s56", "s_lshl_b32 s48, s56, 5",
                    f"s_add_u32 s49, s49, {STG}", f"s_cmp_ge_u32 s49, {NST*STG}", "s_cselect_b32 s49, 0, s49"]
        return ["s_add_u32 s47, s47, 4096", f"s_add_u32 s48, s48, {64*2048}", f"s_add_u32 s49, s49, {STG}",
                f"s_cmp_ge_u32 s49, {NST*STG}", "s_cselect_b32 s49, 0, s49"]
    P += [f"s_add_u32 s54, s50, {L_B}"]
    if "norot3" not in EXP:
        P += ["s_lshr_b32 s56, s2, 5", "s_lshl_b32 s56, s56, 1", "s_bfe_u32 s57, s2, 0x20003", "s_lshl_b32 s57, s57, 2",
              "s_add_u32 s56, s56, s57", "s_and_b32 s56, s56, 15", "s_lshl_b32 s56, s56, 12",
              "s_mov_b32 s57, s47", "s_add_u32 s47, s57, s56", "s_lshl_b32 s48, s56, 5"]
    YL = []
    YL += ["s_lshl_b32 s46, s44, 18", "s_lshl_b32 s55, s43, 11", "s_add_u32 s46, s46, s55", f"s_add_u32 s46, s46, {WS_Y1}"]
    for i in range(2):
        for p in range(2):
            YL += [f"s_add_u32 s55, s46, {i*131072 + p*4*MB}"]
            for t in range(2):
                YL += [f"buffer_load_dwordx4 {vr(Y+(i*2+p)*8+4*t,4)}, v{VL16}, s[24:27], s55 offen offset:{1024*t}"]
    YL += [f"s_mov_b32 s55, {WS_G}", f"buffer_load_dword v{VG}, v{T1}, s[24:27], s55 offen"]
    if "yearly" in EXP: P += YL
    P += stamp(6)
    for t in range(NST - 1 if "k3old" in EXP else NST):
        P += mix([], dma()) + dma_adv()
    P += stamp(7)
    if "ylate" in EXP: P += YL
    for r in range(ACC, ACC + 32): P += [f"v_mov_b32 v{r}, 0"]
    def reads(s_, ks):
        return [f"ds_read_b128 {vr(fr(s_,2),4)}, v{BA} offset:{ks*1024}",
                f"ds_read_b64_tr_b16 {vr(fr(s_,0),2)}, v{WA} offset:{ks*2048}",
                f"ds_read_b64_tr_b16 {vr(fr(s_,0)+2,2)}, v{WA} offset:{ks*2048+1024}",
                f"ds_read_b64_tr_b16 {vr(fr(s_,1),2)}, v{WB} offset:{ks*2048}",
                f"ds_read_b64_tr_b16 {vr(fr(s_,1)+2,2)}, v{WB} offset:{ks*2048+1024}"]
    def mfmas(s_, ks=0):
        if "nomf" in EXP: return ["s_nop 0", "s_nop 0"]
        return [mfma32(acc(0), fr(s_, 0), fr(s_, 2)), mfma32(acc(1), fr(s_, 1), fr(s_, 2))]
    def rd_adv():
        return [f"s_add_u32 s51, s51, {STG}", f"s_cmp_ge_u32 s51, {NST*STG}", "s_cselect_b32 s51, 0, s51",
                f"v_add_u32 v{WA}, s51, v{WA0}", f"v_add_u32 v{WB}, s51, v{WB0}", f"v_add_u32 v{BA}, s51, v{BA0}"]
    P += stamp(1)
    if "k3old" in EXP:
        pre, ktext, ktrace = kloop(N, 16, NST, 6, dma, dma_adv, reads, mfmas, rd_adv, 52, mid=(YL if ("yearly" not in EXP and "ylate" not in EXP) else []))
    else:
        def reads2(s_):
            o = []
            for ks in range(4):
                o += [f"ds_read_b128 {vr(fr2(s_,ks,2),4)}, v{BA} offset:{ks*1024}",
                      f"ds_read_b64_tr_b16 {vr(fr2(s_,ks,0),2)}, v{WA} offset:{ks*2048}",
                      f"ds_read_b64_tr_b16 {vr(fr2(s_,ks,0)+2,2)}, v{WA} offset:{ks*2048+1024}",
                      f"ds_read_b64_tr_b16 {vr(fr2(s_,ks,1),2)}, v{WB} offset:{ks*2048}",
                      f"ds_read_b64_tr_b16 {vr(fr2(s_,ks,1)+2,2)}, v{WB} offset:{ks*2048+1024}"]
            return o
        def mfmas2(s_):
            o = []
            for ks in range(4):
                o += [mfma32(acc(0), fr2(s_, ks, 0), fr2(s_, ks, 2)), mfma32(acc(1), fr2(s_, ks, 1), fr2(s_, ks, 2))]
            return o
        pre = [f"s_waitcnt vmcnt({6*(NST-1)})", "s_barrier"] + reads2(0) + rd_adv() + ["s_mov_b32 s52, 0"]
        def it(s_, do_dma, allowed, last, extra=[]):
            o = [f"s_waitcnt vmcnt({allowed}) lgkmcnt(0)"]
            if not last: o += ["s_barrier"]
            fill = (mix(reads2(1 - s_), dma() if do_dma else []) + (dma_adv() if do_dma else []) + rd_adv()) if not last else []
            return o + extra + spread(mfmas2(s_), fill)
        nmain = 16 - NST
        assert nmain % 2 == 0
        Bm = it(0, True, 6 * (NST - 2), False) + it(1, True, 6 * (NST - 2), False)
        tl = [f"s_add_u32 s52, s52, 1", f"s_cmp_lt_u32 s52, {nmain//2}", f"s_cbranch_scc1 {N}_loop"]
        rest = []
        for tt_ in range(nmain, 16):
            allowed = max(0, 15 - (tt_ + 1)) * 6 + (9 if tt_ > nmain else 0)
            rest += it(tt_ & 1, False, allowed, tt_ == 15, YL if tt_ == nmain else [])
        ktext = [f"{N}_loop:"] + Bm + tl + rest
        ktrace = Bm + tl + Bm + tl + rest
    E = ["s_nop 15", "s_waitcnt vmcnt(0)"] + stamp(2)
    E += [f"v_sub_f32 v20, 1.0, v{VG}", "v_cvt_pk_bf16_f32 v20, v20, v20", "v_lshlrev_b32 v20, 16, v20"]
    pk = 32
    for i in range(2):
        a = acc(i)
        for r in range(16): E += [f"v_mul_f32 v{a+r}, v20, v{a+r}"]
        for r in range(8):
            y1 = Y + (i * 2) * 8 + r; y2 = Y + (i * 2 + 1) * 8 + r
            E += [f"v_lshlrev_b32 v{T0}, 16, v{y1}", f"v_lshlrev_b32 v{T1}, 16, v{y2}", f"v_sub_f32 v{T0}, v{T0}, v{T1}",
                  f"v_and_b32 v{T2}, 0xffff0000, v{y1}", f"v_and_b32 v{T3}, 0xffff0000, v{y2}", f"v_sub_f32 v{T2}, v{T2}, v{T3}",
                  f"v_fmac_f32 v{a+2*r}, v{VG}, v{T0}", f"v_fmac_f32 v{a+2*r+1}, v{VG}, v{T2}",
                  f"v_cvt_pk_bf16_f32 v{pk+r}, v{a+2*r}, v{a+2*r+1}"]
        E += ["s_nop 1"]
        for t in range(2):
            E += [f"v_permlane32_swap_b32 v{pk+4*t}, v{pk+4*t+2}", f"v_permlane32_swap_b32 v{pk+4*t+1}, v{pk+4*t+3}"]
        for t in range(2):
            E += [f"buffer_store_dwordx4 {vr(pk+4*t,4)}, v{VO}, s[12:15], 0 offen offset:{i*64+t*32}"]
        pk += 8
    E += stamp(3) + ["s_waitcnt vmcnt(0)"] * STAMPS + stamp(4) + stamp_dump(8, 9, 3)
    E += [f"{N}_done:", "s_endpgm"]
    text = header(N) + P + pre + ktext + E
    errs = check_trace(P + pre + ktrace + E, N)
    return N, text, desc(N, 224), errs, (256, 256, NST * STG)

def build(kernels, path):
    hdr = open("gated_mix__spectral_fnet__softmax_full_mha__prompt.s.ref").read().split("; Override launch")[0]
    out = hdr
    for (N, text, d, errs, (g, b, lds)) in kernels:
        out += f"; @launch kernel={N} grid=({g},1,1) block=({b},1,1) lds={lds}\n"
    out += '.amdgcn_target "amdgcn-amd-amdhsa--gfx950"\n.text\n'
    seen = set()
    for (N, text, d, errs, _) in kernels:
        if N in seen: continue
        seen.add(N)
        for e in errs: print("HAZARD", e)
        for l in text:
            out += (l if (l.endswith(":") or l.startswith(".")) else "    " + l) + "\n"
    out += '.section .rodata,"a"\n'
    seen = set()
    for (N, text, d, errs, _) in kernels:
        if N in seen: continue
        seen.add(N)
        out += d
    if "st_plain" not in EXP and not any(e.startswith("st_") for e in EXP): EXP.add("st_nt"); EXP.add("sto_nt")
    for fl in ("sc1", "sc0 sc1", "nt", "sc0"):
        if "st_" + fl.replace(" ", "_") in EXP:
            import re as _re
            out = _re.sub(r"(buffer_store_dwordx[24] [^\n]*s\[24:27\][^\n]*)", lambda m: m.group(1) + " " + fl, out)
    for fl in ("sc1", "nt"):
        if "sto_" + fl in EXP:
            import re as _re
            out = _re.sub(r"(buffer_store_dwordx[24] [^\n]*s\[12:15\][^\n]*)", lambda m: m.group(1) + " " + fl, out)
    open(path, "w").write(out)

if __name__ == "__main__":
    if len(sys.argv) > 2 and sys.argv[2] == "stamps": STAMPS = True
    for a in sys.argv[3:]: EXP.add(a)
    ks = [gen_proj(), gen_mix(), gen_out()]
    build(ks, sys.argv[1] if len(sys.argv) > 1 else "k.s")
```
